```python
import torch

def _softmax(x, axis=-1):
    return torch.softmax(x, dim=axis)
def _gelu(x):
    return torch.nn.functional.gelu(x, approximate="tanh")
def _silu(x):
    return torch.nn.functional.silu(x)
def _sigmoid(x):
    return torch.sigmoid(x)
def _layernorm(x, axis=-1, eps=1e-5):
    m = x.mean(dim=axis, keepdim=True)
    v = x.var(dim=axis, keepdim=True, unbiased=False)
    return (x - m) / torch.sqrt(v + eps)
def _scatter_add(tgt, idx, src, axis=0):
    return tgt.clone().index_add_(axis, idx, src)
def _segment_sum(src, seg, n):
    out = torch.zeros((n,) + src.shape[1:], dtype=src.dtype)
    return out.index_add_(0, seg, src)
def _pad(x, pw):
    flat = tuple(v for pair in reversed(pw) for v in pair)
    return torch.nn.functional.pad(x, flat)

kernel_name = 'recurrent_scan__mha_block_cached__swiglu_ffn__prompt'

def setup_inputs():

    _w = (lambda a: (lambda t: t.to(torch.bfloat16) if t.is_floating_point() else t)(torch.as_tensor(a)))
    def _A_setup():
        B, Sq, D = 1, 2048, 576
        H, Sk, Dh = 32, 2048, 128
        return {
            "x": _w((lambda *s: torch.randn(*s, dtype=torch.bfloat16) * 0.05)(B, Sq, D)),
            "k_cache": _w((lambda *s: torch.randn(*s, dtype=torch.bfloat16) * 0.8)(B, H, Sk, Dh)),
            "v_cache": _w((lambda *s: torch.randn(*s, dtype=torch.bfloat16) * 0.2)(B, H, Sk, Dh)),
            "wq": _w((lambda *s: torch.randn(*s, dtype=torch.bfloat16) * 0.8)(D, H * Dh) * (D ** -0.5)),
            "wo": _w((lambda *s: torch.randn(*s, dtype=torch.bfloat16) * 0.2)(H * Dh, D) * ((H * Dh) ** -0.5)),
        }
    _A_in = _A_setup()

    def _B_setup():
        B, S, D, F = 1, 2048, 576, 4608
        return {
            "x": _w((lambda *s: torch.randn(*s, dtype=torch.bfloat16) * 0.05)(B, S, D)),
            "w_gate": _w((lambda *s: torch.randn(*s, dtype=torch.bfloat16) * 0.1)(D, F)),
            "w_up": _w((lambda *s: torch.randn(*s, dtype=torch.bfloat16) * 0.1)(D, F)),
            "w_down": _w((lambda *s: torch.randn(*s, dtype=torch.bfloat16) * 0.1)(F, D)),
        }
    _B_in = _B_setup()

    return {
        "A_x": _A_in["x"],
        "A_k_cache": _A_in["k_cache"],
        "A_v_cache": _A_in["v_cache"],
        "A_wq": _A_in["wq"],
        "A_wo": _A_in["wo"],
        "B_x": _B_in["x"],
        "B_w_gate": _B_in["w_gate"],
        "B_w_up": _B_in["w_up"],
        "B_w_down": _B_in["w_down"],
    }

def reference(A_x, A_k_cache, A_v_cache, A_wq, A_wo, B_x, B_w_gate, B_w_up, B_w_down):
    def _A_ref(x, k_cache, v_cache, wq, wo):
        B, Sq, D = x.shape
        H, Dh = 32, 128
        q = (lambda x, *d: x.permute(*d))((x @ wq).reshape(B, Sq, H, Dh), 0, 2, 1, 3)
        scores = torch.einsum("bhqd,bhkd->bhqk", q, k_cache) * (Dh ** -0.5)
        p = _softmax(scores, axis=-1)
        o = torch.einsum("bhqk,bhkd->bhqd", p, v_cache)
        return (lambda x, *d: x.permute(*d))(o, 0, 2, 1, 3).reshape(B, Sq, H * Dh) @ wo

    def _B_ref(x, w_gate, w_up, w_down):
        g = _silu(x @ w_gate)
        u = x @ w_up
        return (g * u) @ w_down

    x = A_x
    xn = _layernorm(x, axis=-1)
    s = _A_ref(xn, A_k_cache, A_v_cache, A_wq, A_wo)
    g = _silu(_B_ref(xn, B_w_gate, B_w_up, B_w_down))
    return x + s * g
```

```python
import re

REG_RE = re.compile(r'^(-|abs\()?([vas])(\d+)\)?$')
RNG_RE = re.compile(r'^(-)?([vas])\[(\d+):(\d+)\]$')


def regs_of(tok):
    tok = tok.strip()
    m = REG_RE.match(tok)
    if m:
        return [m.group(2) + m.group(3)]
    m = RNG_RE.match(tok)
    if m:
        return [m.group(2) + str(i) for i in range(int(m.group(3)), int(m.group(4)) + 1)]
    if tok in ('vcc', 'exec', 'm0', 'scc'):
        return [tok]
    if tok in ('vcc_lo', 'vcc_hi'):
        return ['vcc']
    if tok in ('exec_lo', 'exec_hi'):
        return ['exec']
    return []


TRANS = ('v_exp_f32', 'v_log_f32', 'v_rcp_f32', 'v_rsq_f32', 'v_sqrt_f32', 'v_sin_f32', 'v_cos_f32', 'v_rcp_iflag_f32')


class Ins:
    __slots__ = ('text', 'op', 'kind', 'reads', 'writes', 'ops', 'meta')

    def __init__(self, text, **meta):
        self.text = text
        self.meta = meta
        t = text.split(';')[0].strip()
        if t.endswith(':') or t.startswith('.') or not t:
            self.op = t
            self.kind = 'label'
            self.reads = []
            self.writes = []
            self.ops = []
            return
        parts = t.split(None, 1)
        op = parts[0]
        self.op = op
        rest = parts[1] if len(parts) > 1 else ''
        ops = []
        cur = ''
        depth = 0
        for ch in rest:
            if ch in '[(':
                depth += 1
            if ch in '])':
                depth -= 1
            if ch == ',' and depth == 0:
                ops.append(cur.strip())
                cur = ''
            else:
                cur += ch
        if cur.strip():
            ops.append(cur.strip())
        mods = ''
        if ops:
            last = ops[-1].split(None, 1)
            ops[-1] = last[0]
            mods = last[1] if len(last) > 1 else ''
        self.ops = ops
        R = []
        W = []
        base = re.sub(r'_(e32|e64|dpp|sdwa)$', '', op)
        if op.startswith('v_mfma'):
            self.kind = 'mfma'
            W = regs_of(ops[0])
            R = regs_of(ops[1]) + regs_of(ops[2]) + regs_of(ops[3])
            self.meta['A'] = regs_of(ops[1])
            self.meta['B'] = regs_of(ops[2])
            self.meta['C'] = regs_of(ops[3])
            self.meta['passes'] = 4 if '16x16x32' in op else 8
        elif op.startswith('ds_read') or op.startswith('ds_bpermute') or op.startswith('ds_swizzle'):
            self.kind = 'ds'
            W = regs_of(ops[0])
            for o in ops[1:]:
                R += regs_of(o)
        elif op.startswith('ds_write'):
            self.kind = 'ds'
            for o in ops:
                R += regs_of(o)
        elif op.startswith('buffer_load') or op.startswith('global_load'):
            self.kind = 'vmem'
            if ' lds' in (' ' + mods) or op.startswith('global_load_lds'):
                for o in ops:
                    R += regs_of(o)
                R.append('m0')
                self.meta['dma'] = True
            else:
                W = regs_of(ops[0])
                for o in ops[1:]:
                    R += regs_of(o)
        elif op.startswith('buffer_store') or op.startswith('global_store'):
            self.kind = 'vmem'
            for o in ops:
                R += regs_of(o)
            self.meta['store'] = True
            dtok = ops[0] if op.startswith('buffer') else ops[1]
            self.meta['data'] = regs_of(dtok)
            self.meta['wide'] = op.endswith('x4') or op.endswith('x3')
        elif op.startswith('buffer_atomic') or op.startswith('global_atomic'):
            self.kind = 'vmem'
            for o in ops:
                R += regs_of(o)
            if 'sc0' in mods:
                W = regs_of(ops[0])
        elif op in ('buffer_wbl2', 'buffer_inv'):
            self.kind = 'vmem'
        elif op == 's_waitcnt':
            self.kind = 'wait'
            m = re.search(r'vmcnt\((\d+)\)', t)
            self.meta['vm'] = int(m.group(1)) if m else None
            m = re.search(r'lgkmcnt\((\d+)\)', t)
            self.meta['lgkm'] = int(m.group(1)) if m else None
        elif op == 's_nop':
            self.kind = 'nop'
            self.meta['n'] = int(ops[0], 0) + 1
        elif op == 's_barrier':
            self.kind = 'barrier'
        elif op.startswith('s_cbranch') or op == 's_branch' or op == 's_endpgm':
            self.kind = 'branch'
            if 'scc' in op:
                R = ['scc']
            if 'vcc' in op:
                R = ['vcc']
            if 'exec' in op:
                R = ['exec']
        elif op.startswith('s_load') or op in ('s_memtime', 's_memrealtime'):
            self.kind = 'smem'
            W = regs_of(ops[0])
            for o in ops[1:]:
                R += regs_of(o)
        elif op.startswith('s_'):
            self.kind = 'salu'
            if op.startswith('s_cmp') or op.startswith('s_bitcmp'):
                for o in ops:
                    R += regs_of(o)
                W = ['scc']
            elif op in ('s_setprio', 's_sleep'):
                pass
            else:
                W = regs_of(ops[0])
                for o in ops[1:]:
                    R += regs_of(o)
                if 'saveexec' in op:
                    W = W + ['exec', 'scc']
                    R = R + ['exec']
                elif op.startswith('s_cselect') or op.startswith('s_addc') or op.startswith('s_subb') or op.startswith('s_cmov'):
                    R = R + ['scc']
                    if not op.startswith('s_cselect') and not op.startswith('s_cmov'):
                        W = W + ['scc']
                elif not (op.startswith('s_mov') or op.startswith('s_mul') or op.startswith('s_getreg')):
                    W = W + ['scc']
                if op in ('s_addk_i32', 's_mulk_i32') or op.startswith('s_cmov'):
                    R = R + regs_of(ops[0])
        elif op.startswith('v_'):
            self.kind = 'trans' if base in TRANS else 'valu'
            if base.startswith('v_cmp'):
                W = regs_of(ops[0])
                for o in ops[1:]:
                    R += regs_of(o)
                if base.startswith('v_cmpx'):
                    W = W + ['exec']
            elif base.startswith('v_permlane') and 'swap' in base:
                W = regs_of(ops[0]) + regs_of(ops[1])
                R = list(W)
                self.meta['permlane'] = True
            elif base in ('v_add_co_u32', 'v_sub_co_u32', 'v_subrev_co_u32', 'v_addc_co_u32', 'v_subb_co_u32', 'v_div_scale_f32'):
                W = regs_of(ops[0]) + regs_of(ops[1])
                for o in ops[2:]:
                    R += regs_of(o)
            else:
                W = regs_of(ops[0])
                for o in ops[1:]:
                    R += regs_of(o)
                if base in ('v_fmac_f32', 'v_dot2c_f32_bf16', 'v_writelane_b32') or op.endswith('_dpp'):
                    R = R + W
                if base == 'v_cndmask_b32' and len(ops) == 3:
                    R.append('vcc')
                if base == 'v_div_fmas_f32':
                    R.append('vcc')
            if op.endswith('_dpp'):
                self.meta['dpp'] = True
            if base in ('v_readfirstlane_b32', 'v_readlane_b32'):
                self.meta['readlane'] = True
        else:
            raise ValueError('unknown instruction: ' + text)
        self.reads = R
        self.writes = W


class Prog:
    def __init__(self):
        self.ins = []
        self.marks = {}

    def __call__(self, text, **meta):
        for line in text.split('\n'):
            line = line.strip()
            if line:
                self.ins.append(Ins(line, **meta))

    def add(self, ins):
        self.ins.append(ins)

    def mark(self, name):
        self.marks[name] = len(self.ins)

    def text(self):
        out = []
        for i in self.ins:
            if i.kind == 'label':
                out.append(i.text)
            else:
                out.append('    ' + i.text)
        return '\n'.join(out) + '\n'

    def seg(self, a, b):
        return self.ins[self.marks[a]:self.marks[b]]


def check_trace(trace, name='', verbose=True, fix=False):
    errs = []
    vm = []
    lg = []
    pos = 0
    last_mfma_w = {}
    last_mfma_c = {}
    last_valu_w = {}
    last_trans_w = {}
    last_valu_sw = {}
    last_salu_m0 = -100
    last_store_data = {}
    need_raw = {4: 8, 8: 12}
    need_cwar = {4: 3, 8: 7}
    need_cpart = {4: 6, 8: 10}

    def err(i, ins, msg, deficit=None):
        if fix and deficit is not None:
            ins.meta['nop_new'] = max(ins.meta.get('nop_new', 0), deficit)
        errs.append(f'{name}[{i}] {ins.text}  :: {msg}')

    for i, ins in enumerate(trace):
        k = ins.kind
        if k == 'label':
            continue
        if k == 'wait':
            if ins.meta['vm'] is not None:
                while len(vm) > ins.meta['vm']:
                    vm.pop(0)
            if ins.meta['lgkm'] is not None:
                n = ins.meta['lgkm']
                if n > 0 and any(x[2] == 'smem' for x in lg):
                    err(i, ins, 'counted lgkmcnt with smem outstanding')
                while len(lg) > n:
                    lg.pop(0)
            pos += 1
            continue
        if k == 'nop':
            pos += ins.meta['n']
            continue
        touched = set(ins.reads) | set(ins.writes)
        for (j, w, kk) in vm:
            bad = touched & set(w)
            if bad:
                err(i, ins, f'touches {sorted(bad)[:4]} pending from vmem [{j}] {trace[j].text}')
        for (j, w, kk) in lg:
            bad = touched & set(w)
            if bad:
                err(i, ins, f'touches {sorted(bad)[:4]} pending from lgkm [{j}] {trace[j].text}')
        if k == 'mfma':
            for r in ins.meta['A'] + ins.meta['B']:
                if r in last_mfma_w:
                    p, ps, pi = last_mfma_w[r]
                    if pos - p - 1 < need_raw[ps]:
                        err(i, ins, f'mfma A/B reads {r} too early after mfma write', need_raw[ps] - (pos - p - 1))
            C = ins.meta['C']
            for r in C:
                if r in last_mfma_w:
                    p, ps, pi = last_mfma_w[r]
                    if pi.writes != C or ps != ins.meta['passes']:
                        if pos - p - 1 < need_cpart[ps]:
                            err(i, ins, f'mfma C partially overlaps recent D ({r})', need_cpart[ps] - (pos - p - 1))
            for r in ins.writes:
                if r in last_mfma_w and r not in C:
                    p, ps, pi = last_mfma_w[r]
                    if pos - p - 1 < need_raw[ps]:
                        err(i, ins, f'mfma WAW on {r} close to previous mfma write (conservative)', need_raw[ps] - (pos - p - 1))
            for r in ins.reads:
                if r in last_valu_w and pos - last_valu_w[r] - 1 < 2:
                    err(i, ins, f'mfma reads {r} <2 after valu write', 2 - (pos - last_valu_w[r] - 1))
        elif k in ('valu', 'trans', 'ds', 'vmem'):
            for r in touched:
                if r in last_mfma_w:
                    p, ps, pi = last_mfma_w[r]
                    if pos - p - 1 < need_raw[ps]:
                        err(i, ins, f'{k} touches {r} {pos-p-1} states after mfma write (need {need_raw[ps]})', need_raw[ps] - (pos - p - 1))
        if k in ('valu', 'trans'):
            for r in ins.writes:
                if r in last_mfma_c:
                    p, ps = last_mfma_c[r]
                    if pos - p - 1 < need_cwar[ps]:
                        err(i, ins, f'valu overwrites {r} read as srcC too early', need_cwar[ps] - (pos - p - 1))
                if r in last_store_data and pos - last_store_data[r] - 1 < 2:
                    err(i, ins, f'valu overwrites store data {r} too early', 2 - (pos - last_store_data[r] - 1))
            if k == 'valu':
                for r in ins.reads:
                    if r in last_trans_w and pos - last_trans_w[r] - 1 < 1:
                        err(i, ins, f'valu reads trans result {r} with 0 wait states', 1)
            if ins.meta.get('permlane') or ins.meta.get('dpp'):
                for r in ins.reads:
                    if r in last_valu_w and pos - last_valu_w[r] - 1 < 2:
                        err(i, ins, f'permlane/dpp reads {r} <2 after valu write', 2 - (pos - last_valu_w[r] - 1))
            if ins.meta.get('readlane'):
                for r in ins.reads:
                    if r in last_valu_w and pos - last_valu_w[r] - 1 < 1:
                        err(i, ins, f'readlane reads {r} <1 after valu write', 1)
            for r in ins.reads:
                if r in last_valu_sw and pos - last_valu_sw[r] - 1 < 2:
                    err(i, ins, f'valu reads sgpr {r} <2 after valu write', 2 - (pos - last_valu_sw[r] - 1))
            if ins.op.startswith('v_div_fmas') and 'vcc' in last_valu_sw and pos - last_valu_sw['vcc'] - 1 < 4:
                err(i, ins, 'div_fmas <4 after vcc write', 4 - (pos - last_valu_sw['vcc'] - 1))
        if k == 'ds' or (k == 'vmem' and not ins.meta.get('store')):
            for r in ins.writes:
                if r in last_store_data and pos - last_store_data[r] - 1 < 1:
                    err(i, ins, f'load overwrites store data {r} too early', 1)
        if k == 'vmem':
            for r in ins.reads:
                if r in last_valu_sw and pos - last_valu_sw[r] - 1 < 5:
                    err(i, ins, f'vmem reads sgpr {r} <5 after valu write', 5 - (pos - last_valu_sw[r] - 1))
            if ins.meta.get('dma') and pos - last_salu_m0 - 1 < 1:
                err(i, ins, 'dma <1 after m0 write', 1)
        if k in ('salu', 'branch'):
            for r in ins.reads:
                if r in last_valu_sw and pos - last_valu_sw[r] - 1 < 1 and r not in ('vcc', 'exec'):
                    err(i, ins, f'salu reads sgpr {r} right after valu write (pad)', 1)
        if k == 'mfma':
            for r in ins.writes:
                last_mfma_w[r] = (pos, ins.meta['passes'], ins)
                last_valu_w.pop(r, None)
            for r in ins.meta['C']:
                last_mfma_c[r] = (pos, ins.meta['passes'])
        elif k in ('valu', 'trans'):
            for r in ins.writes:
                last_mfma_w.pop(r, None)
                if r[0] in 'va' and r != 'vcc':
                    last_valu_w[r] = pos
                    if k == 'trans':
                        last_trans_w[r] = pos
                    else:
                        last_trans_w.pop(r, None)
                else:
                    last_valu_sw[r] = pos
        elif k == 'salu':
            for r in ins.writes:
                last_valu_sw.pop(r, None)
            if 'm0' in ins.writes:
                last_salu_m0 = pos
        if k == 'ds':
            lg.append((i, ins.writes, 'ds'))
            if len(lg) > 15 and not ins.meta.get('ovf_ok'):
                pass
            for r in ins.writes:
                last_mfma_w.pop(r, None)
                last_valu_w.pop(r, None)
        if k == 'smem':
            lg.append((i, ins.writes, 'smem'))
        if k == 'vmem':
            vm.append((i, ins.writes, 'vm'))
            if len(vm) > 63:
                err(i, ins, f'more than 63 vmem outstanding ({len(vm)})')
            if ins.meta.get('store') and ins.meta.get('wide'):
                for r in ins.meta['data']:
                    last_store_data[r] = pos
            for r in ins.writes:
                last_mfma_w.pop(r, None)
                last_valu_w.pop(r, None)
        pos += 1
    if verbose:
        for e in errs[:40]:
            print('HAZARD', e)
        if len(errs) > 40:
            print('...', len(errs) - 40, 'more')
    return errs


def autowait(trace, max_iter=20):
    for ins in trace:
        ins.meta.pop('pre', None)
    for _ in range(max_iter):
        changed = False
        vm = []
        lg = []
        for ins in trace:
            if ins.kind == 'label':
                continue
            pre = ins.meta.get('pre')

            def tighten(key, n):
                nonlocal pre, changed
                if pre is None:
                    pre = ins.meta['pre'] = {}
                if key not in pre or pre[key] > n:
                    pre[key] = n
                    changed = True
            if pre:
                if 'vm' in pre:
                    del vm[:max(0, len(vm) - pre['vm'])]
                if 'lgkm' in pre:
                    del lg[:max(0, len(lg) - pre['lgkm'])]
            if ins.kind == 'wait':
                if ins.meta['vm'] is not None:
                    del vm[:max(0, len(vm) - ins.meta['vm'])]
                if ins.meta['lgkm'] is not None:
                    del lg[:max(0, len(lg) - ins.meta['lgkm'])]
                continue
            touched = set(ins.reads) | set(ins.writes)
            need = None
            for j in range(len(vm) - 1, -1, -1):
                if touched & vm[j][0] or (vm[j][1] is not None and vm[j][1] in ins.meta.get('wait_tags', ())):
                    need = len(vm) - 1 - j
                    break
            if need is not None:
                tighten('vm', need)
                del vm[:len(vm) - need]
            need = None
            for j in range(len(lg) - 1, -1, -1):
                if touched & lg[j][0]:
                    need = len(lg) - 1 - j
                    break
            if need is not None:
                if any(x[1] == 'smem' for x in lg):
                    need = 0
                need = min(need, 15)
                tighten('lgkm', need)
                del lg[:len(lg) - need]
            if ins.meta.get('wait_lgkm0') and lg:
                tighten('lgkm', 0)
                lg = []
            if ins.kind == 'vmem':
                vm.append((set(ins.writes), ins.meta.get('tag')))
            elif ins.kind == 'ds':
                lg.append((set(ins.writes), 'ds'))
            elif ins.kind == 'smem':
                lg.append((set(ins.writes), 'smem'))
        if not changed:
            return
    raise RuntimeError('autowait did not converge')


def wait_text(pre):
    s = 's_waitcnt'
    if 'vm' in pre:
        s += f" vmcnt({pre['vm']})"
    if 'lgkm' in pre:
        s += f" lgkmcnt({pre['lgkm']})"
    return s


def expand(trace):
    out = []
    for ins in trace:
        pre = ins.meta.get('pre')
        if pre:
            out.append(Ins(wait_text(pre)))
        if ins.meta.get('nop'):
            out.append(Ins(f"s_nop {ins.meta['nop'] - 1}"))
        out.append(ins)
    return out


def render(ins_list):
    out = []
    for i in ins_list:
        pre = i.meta.get('pre')
        if pre:
            out.append('    ' + wait_text(pre))
        if i.meta.get('nop'):
            out.append(f"    s_nop {i.meta['nop'] - 1}")
        out.append(i.text if i.kind == 'label' else '    ' + i.text)
    return '\n'.join(out) + '\n'


def I(text, **meta):
    return Ins(text, **meta)


def weave(p, mfmas, gaps):
    for i, m in enumerate(mfmas):
        p.add(m)
        for f in gaps[i] if i < len(gaps) else []:
            p.add(f)


class Item:
    def __init__(self, ins, pre=(), nb=0):
        self.ins = ins if isinstance(ins, Ins) else Ins(ins)
        self.pre = [x if isinstance(x, Ins) else Ins(x) for x in pre]
        self.nb = nb
        k = self.ins.kind
        self.cost = 2 if k == 'trans' else (0 if k in ('salu', 'nop', 'barrier', 'wait') else 1)
        self.first = k in ('ds', 'vmem')
        self.reads = set(self.ins.reads)
        self.writes = set(self.ins.writes)
        for x in self.pre:
            self.reads |= set(x.reads)
            self.writes |= set(x.writes)


def gap_used(g):
    return sum(2 if x.kind == 'trans' else (1 if x.kind in ('valu', 'ds', 'vmem') else 0) for x in g)


def fill(gaps, stream, start=0, end=None, look=14, lat=2, cap=2):
    end = len(gaps) if end is None else end
    pend = list(stream)
    placed_w = {}
    debt = 0.0
    for gi in range(start, end):
        g = gaps[gi]
        free_left = sum(max(0, cap - gap_used(gaps[j])) for j in range(gi, end))
        need = sum(x.cost for x in pend)
        left = end - gi
        extra = 0
        if need > free_left:
            debt += (need - free_left) / left
            while debt >= 1.0 - 1e-9:
                extra += 1
                debt -= 1.0
        if gi == end - 1:
            extra = 10 ** 6
        while pend:
            room = cap + extra - gap_used(g)
            pick = None
            cands = []
            blocked_r, blocked_w = set(), set()
            for j, it in enumerate(pend[:look]):
                ok = not (it.reads & blocked_w or it.writes & blocked_w or it.writes & blocked_r)
                if ok and it.nb > gi and gi != end - 1:
                    ok = False
                if ok and gi != end - 1:
                    if any(gi - placed_w.get(r, -99) < lat for r in it.reads if r[0] in 'va' and r != 'vcc'):
                        ok = False
                    if it.cost > room:
                        ok = False
                    if it.first and gap_used(g) > 0:
                        ok = False
                if ok:
                    cands.append(j)
                blocked_r |= it.reads
                blocked_w |= it.writes
            if cands:
                pick = cands[0]
                if gi == end - 1:
                    lastw = set()
                    for x in g[-2:]:
                        lastw |= set(x.writes)
                    good = [j for j in cands if not (pend[j].reads & lastw)]
                    if good:
                        pick = good[0]
                elif gap_used(g) == 0:
                    big = [j for j in cands if pend[j].first] or [j for j in cands if pend[j].cost == 2]
                    if big:
                        pick = big[0]
            if pick is None:
                break
            it = pend.pop(pick)
            g.extend(it.pre)
            g.append(it.ins)
            for r in it.writes:
                placed_w[r] = gi
    assert not pend


def settle(traces, name, show=True):
    allins = [i for t in traces for i in t]
    autowait(allins)
    for _ in range(50):
        errs = []
        for t in traces:
            errs += check_trace(expand(t), name, verbose=False, fix=True)
        if not errs:
            break
        seen = set()
        applied = 0
        last = -10 ** 9
        for n, i in enumerate(allins):
            if id(i) in seen:
                continue
            seen.add(id(i))
            d = i.meta.pop('nop_new', 0)
            if d and n - last > 24:
                i.meta['nop'] = i.meta.get('nop', 0) + d
                applied += 1
                last = n
        if not applied:
            for e in errs[:40]:
                print('HAZARD', e)
            raise SystemExit(f'{name}: {len(errs)} unresolved hazards')
    else:
        raise SystemExit('settle did not converge')
    if show:
        seen = set()
        for i in allins:
            if id(i) not in seen and i.meta.get('nop'):
                print(f"  [{name}] pad {i.meta['nop']} before: {i.text}")
            seen.add(id(i))
```

```python
from asmlib import *

KA_X, KA_K, KA_V, KA_WQ, KA_WO, KA_BX, KA_WG, KA_WU, KA_WD, KA_OUT, KA_DBG, KA_WS = [8 * i for i in range(12)]

XN_OFF = 0
XN_MB = 18 * 1024
XN_BYTES = 128 * XN_MB
HF_OFF = 0x400000
HF_MB = 144 * 1024
HF_BYTES = 128 * HF_MB
OF_OFF = 0x1800000
OF_MB = 128 * 1024
OF_BYTES = 128 * OF_MB

X_BYTES = 2048 * 576 * 2
KV_HEAD = 2048 * 128 * 2
WQ_BYTES = 576 * 4096 * 2
WG_BYTES = 576 * 4608 * 2
WO_BYTES = 4096 * 576 * 2
WD_BYTES = 4608 * 576 * 2


def vr(b, n=1):
    return f'v{b}' if n == 1 else f'v[{b}:{b + n - 1}]'


def ar(b, n=1):
    return f'a{b}' if n == 1 else f'a[{b}:{b + n - 1}]'


def sr(b, n=1):
    return f's{b}' if n == 1 else f's[{b}:{b + n - 1}]'


def header(name):
    return (f'.globl {name}\n.p2align 8\n.type {name},@function\n{name}:\n')


def descriptor(name, vgpr, sgpr, accum):
    return (f'.amdhsa_kernel {name}\n'
            f'  .amdhsa_next_free_vgpr {vgpr}\n'
            f'  .amdhsa_next_free_sgpr {sgpr}\n'
            f'  .amdhsa_accum_offset {accum}\n'
            f'  .amdhsa_group_segment_fixed_size 0\n'
            f'  .amdhsa_kernarg_size 96\n'
            f'  .amdhsa_user_sgpr_count 2\n'
            f'  .amdhsa_user_sgpr_kernarg_segment_ptr 1\n'
            f'  .amdhsa_system_sgpr_workgroup_id_x 1\n'
            f'  .amdhsa_float_denorm_mode_32 3\n'
            f'.end_amdhsa_kernel\n')


def srd(p, d, base, off_sgpr=None, off_imm=0, nbytes=0, nbytes_minus_off=False):
    if off_imm:
        p(f's_add_u32 s{d}, s{base}, {off_imm}')
        p(f's_addc_u32 s{d + 1}, s{base + 1}, 0')
        if off_sgpr is not None:
            p(f's_add_u32 s{d}, s{d}, s{off_sgpr}')
            p(f's_addc_u32 s{d + 1}, s{d + 1}, 0')
    elif off_sgpr is not None:
        p(f's_add_u32 s{d}, s{base}, s{off_sgpr}')
        p(f's_addc_u32 s{d + 1}, s{base + 1}, 0')
    else:
        p(f's_mov_b32 s{d}, s{base}')
        p(f's_mov_b32 s{d + 1}, s{base + 1}')
    if nbytes_minus_off:
        p(f's_sub_u32 s{d + 2}, {nbytes}, s{off_sgpr}')
    else:
        p(f's_mov_b32 s{d + 2}, {nbytes}')
    p(f's_mov_b32 s{d + 3}, 0x20000')


def finish(p, trace, name):
    settle([trace], name)
    return render(p.ins)
```

```python
from common import *

S_ACT, S_W, S_X, S_OUT = 8, 12, 16, 20
sW, sRT, sCT, sT0, sT1, sT2, sMBS, sCNT, sLB, sWOFF, sNL2E, sMASK = 32, 33, 34, 35, 36, 37, 38, 39, 40, 41, 42, 43
sMB = 44
vLANE, vL16, vL16B, vXO = 1, 2, 3, 4
vWD = 5
vA = 9
vX = 14
vT = 24
vWF = 48
vACC = 80
D = 6


def mfma(d, a, b, c):
    return I(f'v_mfma_f32_16x16x32_bf16 {d}, {a}, {b}, {c}')


def loads(pos):
    slot = (pos + D) & 7
    out = []
    for pc in range(4):
        pre = [f's_add_u32 m0, s{sLB}, {slot * 4096}', f's_add_u32 s{sT0}, s{sWOFF}, {pos * 32 * 1152}'] if pc == 0 else []
        out.append(Item(I(f'buffer_load_dwordx4 v{vWD + pc}, {sr(S_W, 4)}, s{sT0} offen offset:{1024 * pc} lds', tag=('W', slot)), pre=pre))
    for mb in range(5):
        out.append(Item(f'buffer_load_dwordx4 {ar(slot * 20 + mb * 4, 4)}, v{vL16 if pos < 4 else vL16B}, {sr(S_ACT, 4)}, s{sMB + mb} offen offset:{1024 * (pos & 3)}'))
    return out


def reads(slot):
    out = []
    for nb in range(4):
        for t in range(2):
            meta = dict(wait_tags=[('W', slot)]) if (nb == 0 and t == 0) else {}
            out.append(I(f'ds_read_b64_tr_b16 {vr(vWF + (slot & 1) * 16 + nb * 4 + 2 * t, 2)}, v{vA + nb} offset:{slot * 4096 + t * 2048}', **meta))
    return out


def body(p, nload, last):
    for i in range(8):
        mf = [mfma(vr(vACC + (nb * 5 + mb) * 4, 4), vr(vWF + (i & 1) * 16 + nb * 4, 4), ar(i * 20 + mb * 4, 4),
                   vr(vACC + (nb * 5 + mb) * 4, 4)) for nb in range(4) for mb in range(5)]
        gaps = [[] for _ in range(20)]
        if i < nload:
            for n, it in enumerate(loads(i)):
                gaps[n].extend(it.pre)
                gaps[n].append(it.ins)
        if not (last and i == 7):
            for n, x in enumerate(reads((i + 1) & 7)):
                gaps[9 + n].append(x)
        if i == 7 and not last:
            for mb in range(5):
                gaps[18].append(I(f's_add_u32 s{sMB + mb}, s{sMB + mb}, 8192'))
            gaps[18].append(I(f's_add_u32 s{sWOFF}, s{sWOFF}, {8 * 32 * 1152}'))
            gaps[19].append(I(f's_sub_u32 s{sCNT}, s{sCNT}, 1'))
            gaps[19].append(I(f's_cmp_lg_u32 s{sCNT}, 0'))
        weave(p, mf, gaps)


def gen_fin(name='fin_kernel'):
    p = Prog()
    p.mark('start')
    p(f's_lshr_b32 s{sT0}, s2, 3')
    p(f's_cmp_ge_u32 s{sT0}, 30')
    p('s_cbranch_scc1 L_fin_end')
    p(f's_and_b32 s{sT1}, s2, 7')
    p(f's_mul_i32 s{sT1}, s{sT1}, 30')
    p(f's_add_u32 s{sT0}, s{sT0}, s{sT1}')
    p(f's_cmp_ge_u32 s{sT0}, 234')
    p('s_cbranch_scc1 L_fin_end')
    p(f's_load_dwordx2 s[4:5], s[0:1], {KA_X}')
    p(f's_load_dwordx2 s[6:7], s[0:1], {KA_WO}')
    p(f's_load_dwordx4 s[24:27], s[0:1], {KA_WD}')
    p(f's_load_dwordx2 s[28:29], s[0:1], {KA_WS}')
    p(f's_mul_i32 s{sRT}, s{sT0}, 7282')
    p(f's_lshr_b32 s{sRT}, s{sRT}, 16')
    p(f's_mul_i32 s{sT1}, s{sRT}, 9')
    p(f's_sub_u32 s{sCT}, s{sT0}, s{sT1}')
    p('v_lshrrev_b32 v2, 6, v0')
    p(f'v_and_b32 v{vLANE}, 63, v0')
    p(f'v_readfirstlane_b32 s{sW}, v2')
    p(f'v_lshlrev_b32 v{vL16}, 4, v{vLANE}')
    p(f'v_add_u32 v{vL16B}, 4096, v{vL16}')
    t0, t1, t2 = vT, vT + 1, vT + 2
    p(f'v_lshrrev_b32 v{t0}, 3, v{vLANE}')
    p(f'v_lshrrev_b32 v{t1}, 4, v{vLANE}')
    p(f'v_lshlrev_b32 v{t1}, 1, v{t1}')
    p(f'v_and_b32 v{t2}, 7, v{vLANE}')
    p(f'v_xor_b32 v{t1}, v{t1}, v{t2}')
    p(f'v_mul_u32_u24 v{t0}, 1152, v{t0}')
    p(f'v_lshl_add_u32 v{vWD}, v{t1}, 4, v{t0}')
    for pc in range(1, 4):
        p(f'v_add_u32 v{vWD + pc}, {pc * (9216 - 1024)}, v{vWD}')
    p(f's_lshl_b32 s{sLB}, s{sW}, 15')
    p(f's_cmp_ge_u32 s{sW}, 2')
    p(f's_mov_b32 s{sMBS}, {HF_MB}')
    p(f's_mov_b32 s{sT2}, {HF_OFF}')
    p(f's_mov_b32 s30, {WD_BYTES}')
    p(f's_cselect_b32 s{sMBS}, {OF_MB}, s{sMBS}')
    p(f's_cselect_b32 s30, {WO_BYTES}, s30')
    p(f's_cselect_b32 s{sCNT}, 7, 8')
    p(f's_cselect_b32 s{sT1}, 64, 72')
    p(f's_cselect_b32 s{sT2}, {OF_OFF}, s{sT2}')
    p(f's_and_b32 s{sT0}, s{sW}, 1')
    p(f's_mul_i32 s{sT1}, s{sT1}, s{sT0}')
    p('s_waitcnt lgkmcnt(0)')
    p(f's_cmp_ge_u32 s{sW}, 2')
    p('s_cselect_b64 s[6:7], s[6:7], s[24:25]')
    p(f's_mul_i32 s{sT0}, s{sT1}, {32 * 1152}')
    p(f's_lshl_b32 s31, s{sCT}, 7')
    p(f's_add_u32 s{sT0}, s{sT0}, s31')
    p(f's_add_u32 s{S_W}, s6, s{sT0}')
    p(f's_addc_u32 s{S_W + 1}, s7, 0')
    p(f's_sub_u32 s{S_W + 2}, s30, s{sT0}')
    p(f's_mov_b32 s{S_W + 3}, 0x20000')
    p(f's_mul_i32 s{sT0}, s{sRT}, 5')
    p(f's_mul_i32 s{sT0}, s{sT0}, s{sMBS}')
    p(f's_lshl_b32 s{sT1}, s{sT1}, 10')
    p(f's_add_u32 s{sT0}, s{sT0}, s{sT1}')
    p(f's_lshl_b32 s30, s{sMBS}, 7')
    p(f's_sub_u32 s{S_ACT + 2}, s30, s{sT0}')
    p(f's_add_u32 s{sT0}, s{sT0}, s{sT2}')
    p(f's_add_u32 s{S_ACT}, s28, s{sT0}')
    p(f's_addc_u32 s{S_ACT + 1}, s29, 0')
    p(f's_mov_b32 s{S_ACT + 3}, 0x20000')
    for mb in range(5):
        p(f's_mul_i32 s{sMB + mb}, s{sMBS}, {mb}')
    p(f's_mov_b32 s{sWOFF}, 0')
    for st in range(D):
        for pc in range(4):
            if pc == 0:
                p(f's_add_u32 m0, s{sLB}, {st * 4096}')
                p(f's_mov_b32 s{sT0}, {st * 32 * 1152}')
            p(f'buffer_load_dwordx4 v{vWD + pc}, {sr(S_W, 4)}, s{sT0} offen offset:{1024 * pc} lds', tag=('W', st))
        for mb in range(5):
            p(f'buffer_load_dwordx4 {ar(st * 20 + mb * 4, 4)}, v{vL16 if st < 4 else vL16B}, {sr(S_ACT, 4)}, s{sMB + mb} offen offset:{1024 * (st & 3)}')
    for mb in range(5):
        p(f's_add_u32 s{sMB + mb}, s{sMB + mb}, {D * 1024}')
    p(f's_mov_b32 s{sWOFF}, {D * 32 * 1152}')
    srd(p, S_X, 4, nbytes=X_BYTES)
    srd(p, S_OUT, 26, nbytes=X_BYTES)
    p(f'v_lshrrev_b32 v{t0}, 4, v0')
    p(f's_mul_i32 s{sT0}, s{sRT}, 80')
    p(f'v_add_u32 v{t0}, s{sT0}, v{t0}')
    p(f'v_mul_u32_u24 v{t0}, 1152, v{t0}')
    p(f'v_and_b32 v{t1}, 15, v0')
    p(f'v_lshl_add_u32 v{vXO}, v{t1}, 3, v{t0}')
    p(f'v_add_u32 v{vXO}, s31, v{vXO}')
    for i in range(5):
        p(f's_mov_b32 s{sT0}, {i * 16 * 1152}')
        p(f'buffer_load_dwordx2 {vr(vX + 2 * i, 2)}, v{vXO}, {sr(S_X, 4)}, s{sT0} offen')
    p(f'v_lshrrev_b32 v{t0}, 2, v{vLANE}')
    p(f'v_and_b32 v{t1}, 3, v{vLANE}')
    p(f'v_lshlrev_b32 v{t1}, 3, v{t1}')
    p(f'v_lshl_add_u32 v{t2}, v{t0}, 7, v{t1}')
    p(f'v_add_u32 v{t2}, s{sLB}, v{t2}')
    p(f'v_bfe_u32 v{t0}, v{vLANE}, 3, 2')
    for nb in range(4):
        p(f'v_xor_b32 v{t1}, {nb}, v{t0}')
        p(f'v_lshl_add_u32 v{vA + nb}, v{t1}, 5, v{t2}')
    for i in range(80):
        p(f'v_mov_b32 v{vACC + i}, 0')
    p(f's_mov_b32 s{sNL2E}, 0xbfb8aa3b')
    p(f's_mov_b32 s{sMASK}, 0xffff0000')
    for x in reads(0):
        p.add(x)
    p.mark('loop')
    p('.p2align 6')
    p('L_fin_loop:')
    body(p, 8, False)
    p('s_cbranch_scc1 L_fin_loop')
    p.mark('tail')
    body(p, 8 - D, True)
    p(f'v_and_b32 v{t0}, 15, v{vLANE}')
    p(f'v_mul_u32_u24 v{t0}, 272, v{t0}')
    p(f'v_lshrrev_b32 v{t1}, 4, v{vLANE}')
    p(f'v_lshl_add_u32 v{t0}, v{t1}, 4, v{t0}')
    p(f'v_add_u32 v{t0}, s{sLB}, v{t0}')
    p(f'v_lshrrev_b32 v{t1}, 4, v0')
    p(f'v_mul_u32_u24 v{t1}, 272, v{t1}')
    p(f'v_and_b32 v{t2}, 15, v0')
    p(f'v_lshl_add_u32 v{t1}, v{t2}, 4, v{t1}')
    p(f'v_add_u32 v{t2}, 65536, v{t1}')
    for nb in range(4):
        for mb in range(5):
            p(f'ds_write_b128 v{t0}, {vr(vACC + (nb * 5 + mb) * 4, 4)} offset:{mb * 16 * 272 + nb * 64}')
    p('s_waitcnt lgkmcnt(0)')
    p('s_barrier')
    R = vACC
    for i in range(5):
        for part in range(4):
            p(f'ds_read_b128 {vr(R + i * 16 + part * 4, 4)}, v{t1 if part < 2 else t2} offset:{(part & 1) * 32768 + i * 16 * 272}')
    for i in range(5):
        b = R + i * 16
        e = vWF + (i & 1) * 16
        for r in range(4):
            p(f'v_add_f32 v{b + r}, v{b + r}, v{b + 4 + r}')
        for r in range(4):
            p(f'v_mul_f32 v{e + r}, s{sNL2E}, v{b + r}')
        for r in range(4):
            p(f'v_exp_f32 v{e + r}, v{e + r}')
        for r in range(4):
            p(f'v_add_f32 v{b + 8 + r}, v{b + 8 + r}, v{b + 12 + r}')
        for r in range(4):
            p(f'v_add_f32 v{e + r}, 1.0, v{e + r}')
        for r in range(4):
            p(f'v_rcp_f32 v{e + r}, v{e + r}')
        for dd in range(2):
            p(f'v_lshlrev_b32 v{e + 4 + 2 * dd}, 16, v{vX + 2 * i + dd}')
            p(f'v_and_b32 v{e + 5 + 2 * dd}, s{sMASK}, v{vX + 2 * i + dd}')
        for r in range(4):
            p(f'v_mul_f32 v{b + r}, v{b + r}, v{e + r}')
        for r in range(4):
            p(f'v_fmac_f32 v{e + 4 + r}, v{b + r}, v{b + 8 + r}')
        for dd in range(2):
            p(f'v_cvt_pk_bf16_f32 v{e + 8 + dd}, v{e + 4 + 2 * dd}, v{e + 5 + 2 * dd}')
        p(f's_mov_b32 s{sT0}, {i * 16 * 1152}')
        p(f'buffer_store_dwordx2 {vr(e + 8, 2)}, v{vXO}, {sr(S_OUT, 4)}, s{sT0} offen')
    p('L_fin_end:')
    p('s_endpgm')
    p.mark('fin')
    S = p.seg
    settle([S('start', 'tail') + S('loop', 'tail') + S('loop', 'fin')], name)
    return header(name) + render(p.ins), descriptor(name, 320, 64, 160)
```

```python
from common import *


def row_sum(p, v, t):
    p('s_nop 1')
    p(f'v_add_f32_dpp v{v}, v{v}, v{v} row_ror:8 row_mask:0xf bank_mask:0xf')
    p(f'v_mov_b32 v{t}, v{v}')
    p('s_nop 1')
    p(f'v_permlane16_swap_b32 v{t}, v{v}')
    p(f'v_add_f32 v{v}, v{v}, v{t}')
    p(f'v_mov_b32 v{t}, v{v}')
    p('s_nop 1')
    p(f'v_permlane32_swap_b32 v{t}, v{v}')
    p(f'v_add_f32 v{v}, v{v}, v{t}')


def gen_ln(name='ln_kernel'):
    p = Prog()
    p('s_cmp_ge_u32 s2, 256')
    p('s_cbranch_scc1 L_ln_end')
    p(f's_load_dwordx2 s[4:5], s[0:1], {KA_X}')
    p(f's_load_dwordx2 s[6:7], s[0:1], {KA_WS}')
    p('v_and_b32 v1, 7, v0')
    p('v_lshrrev_b32 v2, 3, v0')
    p('v_mul_u32_u24 v3, 1152, v1')
    p('v_lshl_add_u32 v3, v2, 4, v3')
    p('v_lshlrev_b32 v4, 8, v2')
    p('v_lshl_add_u32 v4, v1, 4, v4')
    p('s_mul_i32 s16, s2, 9216')
    p('s_lshr_b32 s17, s2, 1')
    p(f's_mul_i32 s17, s17, {XN_MB}')
    p('s_and_b32 s18, s2, 1')
    p('s_lshl_b32 s18, s18, 7')
    p('s_add_u32 s17, s17, s18')
    p('s_waitcnt lgkmcnt(0)')
    srd(p, 8, 4, nbytes=X_BYTES)
    srd(p, 12, 6, off_imm=XN_OFF, nbytes=XN_BYTES)
    RAW = 8
    F = 48
    for i in range(9):
        p(f'buffer_load_dwordx4 {vr(RAW + 4 * i, 4)}, v3, s[8:11], s16 offen offset:{128 * i}')
    p('s_mov_b32 s20, 0xffff0000')
    for d in range(36):
        p(f'v_lshlrev_b32 v{F + 2 * d}, 16, v{RAW + d}')
        p(f'v_and_b32 v{F + 2 * d + 1}, s20, v{RAW + d}')
        if d == 0:
            p(f'v_add_f32 v5, v{F}, v{F + 1}')
        elif d == 1:
            p(f'v_add_f32 v6, v{F + 2}, v{F + 3}')
        else:
            p(f'v_add_f32 v5, v5, v{F + 2 * d}')
            p(f'v_add_f32 v6, v6, v{F + 2 * d + 1}')
    p('v_add_f32 v5, v5, v6')
    row_sum(p, 5, 7)
    p('v_mul_f32 v5, 0x3ae38e39, v5')
    for d in range(72):
        p(f'v_sub_f32 v{44 + d % 2}, v{F + d}, v5')
        if d < 2:
            p(f'v_mul_f32 v{46 + d % 2}, v{44 + d % 2}, v{44 + d % 2}')
        else:
            p(f'v_fmac_f32 v{46 + d % 2}, v{44 + d % 2}, v{44 + d % 2}')
    p('v_add_f32 v6, v46, v47')
    row_sum(p, 6, 7)
    p('v_mul_f32 v6, 0x3ae38e39, v6')
    p('v_cvt_pk_bf16_f32 v7, v5, v6')
    p('v_lshlrev_b32 v5, 16, v7')
    p('v_and_b32 v6, s20, v7')
    p('v_add_f32 v6, 0x3727c5ac, v6')
    p('v_cvt_pk_bf16_f32 v6, v6, v6')
    p('v_and_b32 v6, s20, v6')
    p('v_sqrt_f32 v6, v6')
    p('s_nop 0')
    p('v_cvt_pk_bf16_f32 v6, v6, v6')
    p('v_and_b32 v6, s20, v6')
    p('v_rcp_f32 v6, v6')
    for i in range(9):
        for dd in range(4):
            d = 4 * i + dd
            a, b = F + 2 * d, F + 2 * d + 1
            p(f'v_sub_f32 v{a}, v{a}, v5')
            p(f'v_sub_f32 v{b}, v{b}, v5')
            p(f'v_cvt_pk_bf16_f32 v44, v{a}, v{b}')
            p(f'v_lshlrev_b32 v{a}, 16, v44')
            p(f'v_and_b32 v{b}, s20, v44')
            p(f'v_mul_f32 v{a}, v{a}, v6')
            p(f'v_mul_f32 v{b}, v{b}, v6')
            p(f'v_cvt_pk_bf16_f32 v{RAW + d}, v{a}, v{b}')
        p(f's_add_u32 s21, s17, {2048 * i}')
        p(f'buffer_store_dwordx4 {vr(RAW + 4 * i, 4)}, v4, s[12:15], s21 offen')
    p('L_ln_end:')
    p('s_endpgm')
    body = finish(p, p.ins, name)
    return header(name) + body, descriptor(name, 120, 32, 120)
```

```python
from common import *

S_XN, S_WG, S_WU, S_WQ, S_K, S_V, S_HF, S_OF, S_WX = 8, 12, 16, 20, 24, 28, 32, 36, 40
sW, sH, sRB, sHB2 = 52, 53, 54, 55
sT0, sT1, sT2 = 56, 57, 58
sOFF = 59
sXq, sHq, sOq = 60, 64, 68
sLW, sLX, sLK = 72, 73, 74
sMASK, sNL2E, sSCALE, sTILE, sCNT, sSTO, sBIG = 75, 76, 77, 78, 79, 80, 81
vLANE, vL16, vWG, vWX, vWQ = 1, 2, 3, 4, 5
vA = 6
vTMP = 10
vWF = 24
vXNV = 48
vSG = 80
vACC0, vACC1 = 112, 176
vWF2 = 240
vKD, vVD = 240, 244
vS = 112
vP = 144
vNEGM = 208
vVA = 224
vKA = 232
vL = 236
vRL = 246
aO, aK, aV = 0, 128, 160

RING0, SLOT = 40960, 24576
CH = 12288


def slot_base(e):
    return RING0 + SLOT * ((e + 4) % 5)


def xn_reg(qb, ks):
    i = ks * 4 + qb
    return vr(vXNV + 4 * (i - 64), 4) if i >= 64 else ar(4 * i, 4)


def q_reg(ks, qb):
    return vr((vSG if ks < 2 else vXNV) + ((ks & 1) * 4 + qb) * 4, 4)


def q_base(ks, qb):
    return (vSG if ks < 2 else vXNV) + ((ks & 1) * 4 + qb) * 4


def mfma(d, a, b, c):
    return I(f'v_mfma_f32_16x16x32_bf16 {d}, {a}, {b}, {c}')


PASSES = ['G', 'U', 'G', 'U', 'X', 'Q', 'Q']


def w_dma(c):
    ps, cc = divmod(c, 6)
    kind = PASSES[ps]
    e = c // 2
    lds = slot_base(e) + (c & 1) * CH
    out = []
    for i in range(3):
        if kind in 'GU':
            srd_, vo, sl = (S_WG if kind == 'G' else S_WU), vWG, sLW
            so = (cc * 96 + i * 32) * 9216 + (ps // 2) * 128
            l = lds + i * 4096
        elif kind == 'Q':
            srd_, vo, sl = S_WQ, vWQ, sLW
            so = (cc * 96 + i * 32) * 8192 + (ps - 5) * 128
            l = lds + i * 4096
        else:
            srd_, vo, sl = S_WX, vWX, sLX
            so = (cc * 96 + i * 16) * 9216
            l = lds + i * 1024
        out.append(Item(I(f'buffer_load_dwordx4 v{vo}, {sr(srd_, 4)}, s{sOFF} offen lds', tag=('W', e)),
                        pre=[f's_add_u32 m0, s{sl}, {l}', f's_mov_b32 s{sOFF}, {so}']))
    return out


def kv_dma(which, slot, soff_imm=None):
    out = []
    base = (0 if which == 'K' else 65536) + slot * 16384
    for pc in range(4):
        pre = []
        if pc == 0:
            pre.append(f's_add_u32 m0, s{sLK}, {base}')
            if soff_imm is not None:
                pre.append(f's_mov_b32 s{sOFF}, {soff_imm}')
            else:
                pre.append(f's_add_u32 s{sOFF}, s{sTILE}, {(4 if which == "K" else 3) * 16384}')
        vo = vKD + pc if which == 'K' else vVD + (pc & 1)
        srd_ = S_K if which == 'K' else S_V
        out.append(Item(I(f'buffer_load_dwordx4 v{vo}, {sr(srd_, 4)}, s{sOFF} offen offset:{1024 * pc} lds',
                          tag=(which, slot)), pre=pre))
    return out


def xn_loads(c):
    out = []
    for qb in range(4):
        for kk in range(3):
            pre = [f's_add_u32 s{sT0}, s{sXq + qb}, {c * 3072}'] if kk == 0 else []
            out.append(Item(I(f'buffer_load_dwordx4 {xn_reg(qb, 3 * c + kk)}, v{vL16}, {sr(S_XN, 4)}, s{sT0} offen offset:{1024 * kk}'),
                            pre=pre))
    return out


def emit_items(p, items):
    for it in items:
        for x in it.pre:
            p.add(x)
        p.add(it.ins)


def addr_gu(base):
    t0, t1, t2 = vTMP, vTMP + 1, vTMP + 2
    L = [f'v_lshrrev_b32 v{t0}, 4, v{vLANE}',
         f'v_bfe_u32 v{t1}, v{vLANE}, 2, 2',
         f'v_lshl_add_u32 v{t2}, v{t0}, 3, v{t1}',
         f'v_lshlrev_b32 v{t2}, 7, v{t2}',
         f'v_and_b32 v{t0}, 1, v{t0}',
         f'v_lshrrev_b32 v{t1}, 1, v{t1}',
         f'v_lshl_or_b32 v{t0}, v{t0}, 1, v{t1}',
         f'v_and_b32 v{t1}, 3, v{vLANE}',
         f'v_lshl_add_u32 v{t2}, v{t1}, 3, v{t2}',
         f'v_add_u32 v{t2}, {base}, v{t2}']
    for nb in range(4):
        L += [f'v_xor_b32 v{t1}, {nb}, v{t0}', f'v_lshl_add_u32 v{vA + nb}, v{t1}, 5, v{t2}']
    return L


def addr_x(base):
    t0, t1, t2 = vTMP, vTMP + 1, vTMP + 2
    L = [f'v_lshrrev_b32 v{t0}, 4, v{vLANE}',
         f'v_bfe_u32 v{t1}, v{vLANE}, 2, 2',
         f'v_lshl_add_u32 v{t2}, v{t0}, 3, v{t1}',
         f'v_lshlrev_b32 v{t2}, 6, v{t2}',
         f'v_and_b32 v{t0}, 1, v{t0}',
         f'v_and_b32 v{t1}, 3, v{vLANE}',
         f'v_lshl_add_u32 v{t2}, v{t1}, 3, v{t2}',
         f'v_add_u32 v{t2}, {base}, v{t2}']
    for nb in range(2):
        L += [f'v_xor_b32 v{t1}, {nb}, v{t0}', f'v_lshl_add_u32 v{vA + nb}, v{t1}, 5, v{t2}']
    return L


def addr_q(base):
    t0, t1, t2 = vTMP, vTMP + 1, vTMP + 2
    L = [f'v_lshrrev_b32 v{t0}, 4, v{vLANE}',
         f'v_bfe_u32 v{t1}, v{vLANE}, 2, 2',
         f'v_lshl_add_u32 v{t2}, v{t0}, 3, v{t1}',
         f'v_lshlrev_b32 v{t2}, 7, v{t2}',
         f'v_add_u32 v{t2}, {base}, v{t2}',
         f'v_and_b32 v{t0}, 1, v{t0}',
         f'v_lshrrev_b32 v{t1}, 1, v{t1}',
         f'v_lshl_or_b32 v{t0}, v{t0}, 1, v{t1}',
         f'v_lshlrev_b32 v{t0}, 1, v{t0}',
         f'v_and_b32 v{t1}, 3, v{vLANE}',
         f'v_xor_b32 v{t0}, v{t0}, v{t1}',
         f'v_lshl_add_u32 v{vA}, v{t0}, 4, v{t2}',
         f'v_xor_b32 v{t0}, 4, v{t0}',
         f'v_lshl_add_u32 v{vA + 1}, v{t0}, 4, v{t2}']
    return L


def kv_dma_addr():
    t0, t1, t2 = vTMP + 3, vTMP + 4, vTMP + 5
    L = [f'v_lshrrev_b32 v{t0}, 4, v{vLANE}',
         f'v_and_b32 v{t1}, 15, v{vLANE}',
         f'v_lshlrev_b32 v{t2}, 8, v{t0}',
         f'v_add_u32 v{t2}, s{sLK}, v{t2}']
    for pc in range(4):
        L += [f'v_or_b32 v{vKD + pc}, {4 * pc}, v{t0}', f'v_xor_b32 v{vKD + pc}, v{vKD + pc}, v{t1}',
              f'v_lshl_add_u32 v{vKD + pc}, v{vKD + pc}, 4, v{t2}']
    for pc in range(2):
        L += [f'v_or_b32 v{vVD + pc}, {4 * pc}, v{t0}', f'v_lshlrev_b32 v{vVD + pc}, 1, v{vVD + pc}',
              f'v_xor_b32 v{vVD + pc}, v{vVD + pc}, v{t1}', f'v_lshl_add_u32 v{vVD + pc}, v{vVD + pc}, 4, v{t2}']
    return L


def kv_read_addr(vbase=65536):
    t0, t1, t2 = vTMP + 3, vTMP + 4, vTMP + 5
    L = [f'v_lshrrev_b32 v{t0}, 4, v{vLANE}',
         f'v_and_b32 v{t1}, 15, v{vLANE}',
         f'v_lshlrev_b32 v{t2}, 8, v{t1}',
         f'v_xor_b32 v{t1}, v{t0}, v{t1}']
    for ks in range(4):
        L += [f'v_xor_b32 v{vKA + ks}, {4 * ks}, v{t1}', f'v_lshl_add_u32 v{vKA + ks}, v{vKA + ks}, 4, v{t2}']
    L += [f'v_lshrrev_b32 v{t0}, 2, v{vLANE}',
          f'v_and_b32 v{t1}, 3, v{vLANE}',
          f'v_lshlrev_b32 v{t1}, 3, v{t1}',
          f'v_lshl_add_u32 v{t2}, v{t0}, 8, v{t1}',
          f'v_add_u32 v{t2}, {vbase}, v{t2}',
          f'v_and_b32 v{t0}, 7, v{t0}']
    for db in range(8):
        L += [f'v_xor_b32 v{vVA + db}, {db}, v{t0}', f'v_lshl_add_u32 v{vVA + db}, v{vVA + db}, 5, v{t2}']
    return L


def tile(acc, nb, qb, nq=4):
    return acc + (nb * nq + qb) * 4


def silu_ops(g, t0, t1):
    return [f'v_mul_f32 v{t0}, s{sNL2E}, v{g}', f'v_exp_f32 v{t0}, v{t0}', f'v_add_f32 v{t0}, 1.0, v{t0}',
            f'v_rcp_f32 v{t0}, v{t0}', f'v_mul_f32 v{g}, v{g}, v{t0}']


def stream_silu(acc):
    out = []
    for j in range(2):
        for qb in range(4):
            for half in range(2):
                tb = tile(acc, 2 * j + half, qb)
                tmp = vTMP + 6 + 4 * (half & 1)
                st = [silu_ops(tb + r, tmp + r, None) for r in range(4)]
                for s in range(5):
                    for r in range(4):
                        out.append(Item(st[r][s]))
                sg = vSG + (j * 4 + qb) * 4 + 2 * half
                out.append(Item(f'v_cvt_pk_bf16_f32 v{sg}, v{tb}, v{tb + 1}'))
                out.append(Item(f'v_cvt_pk_bf16_f32 v{sg + 1}, v{tb + 2}, v{tb + 3}'))
    return out


def stream_finish_h(acc, pair):
    out = []
    n = 0
    for j in range(2):
        for qb in range(4):
            sg = vSG + (j * 4 + qb) * 4
            for half in range(2):
                tb = tile(acc, 2 * j + half, qb)
                tmp = vTMP + 6 + 4 * (n & 1)
                n += 1
                for dd in range(2):
                    out.append(Item(f'v_lshlrev_b32 v{tmp + 2 * dd}, 16, v{sg + 2 * half + dd}'))
                    out.append(Item(f'v_and_b32 v{tmp + 2 * dd + 1}, s{sMASK}, v{sg + 2 * half + dd}'))
                for r in range(4):
                    out.append(Item(f'v_mul_f32 v{tb + r}, v{tb + r}, v{tmp + r}'))
                for dd in range(2):
                    out.append(Item(f'v_cvt_pk_bf16_f32 v{sg + 2 * half + dd}, v{tb + 2 * dd}, v{tb + 2 * dd + 1}'))
            out.append(Item(f'buffer_store_dwordx4 {vr(sg, 4)}, v{vL16}, {sr(S_HF, 4)}, s{sT1} offen offset:{(2 * pair + j) * 1024}',
                            pre=[f's_add_u32 s{sT1}, s{sHq + qb}, s{sSTO}']))
    return out


def stream_x_epi(acc):
    out = []
    for qb in range(2):
        dst = vSG + qb * 4
        for half in range(2):
            tg = tile(acc, half, qb, 2)
            tu = tile(acc, 2 + half, qb, 2)
            tmp = vTMP + 6 + 4 * half
            st = [silu_ops(tg + r, tmp + r, None) + [f'v_mul_f32 v{tg + r}, v{tg + r}, v{tu + r}'] for r in range(4)]
            for s in range(6):
                for r in range(4):
                    out.append(Item(st[r][s]))
            for dd in range(2):
                out.append(Item(f'v_cvt_pk_bf16_f32 v{dst + 2 * half + dd}, v{tg + 2 * dd}, v{tg + 2 * dd + 1}'))
        out.append(Item(f'buffer_store_dwordx4 {vr(dst, 4)}, v{vL16}, {sr(S_HF, 4)}, s{sT1} offen',
                        pre=[f's_add_u32 s{sT1}, s{sHq + qb}, s{sT2}']))
    return out


def stream_q_epi(acc, ps, nbs=None):
    out = []
    for ksub in range(2):
        for half in range(2):
            for qb in range(4):
                tb = tile(acc, 2 * ksub + half, qb)
                nb = nbs[(ksub, half, qb)] if nbs else 0
                for r in range(4):
                    out.append(Item(f'v_mul_f32 v{tb + r}, s{sSCALE}, v{tb + r}', nb=nb))
                d = q_base(2 * ps + ksub, qb) + 2 * half
                nbw = nbs[('w', ksub, qb)] if nbs else 0
                for dd in range(2):
                    out.append(Item(f'v_cvt_pk_bf16_f32 v{d + dd}, v{tb + 2 * dd}, v{tb + 2 * dd + 1}', nb=max(nb, nbw)))
    return out


def k_reads(slot, kb, buf):
    return [I(f'ds_read_b128 {ar(aK + buf * 16 + ks * 4, 4)}, v{vKA + ks} offset:{slot * 16384 + kb * 4096}') for ks in range(4)]


def v_reads(slot, db, base, kks=(0, 1)):
    out = []
    for n, kk in enumerate(kks):
        for t in range(2):
            out.append(I(f'ds_read_b64_tr_b16 {ar(base + n * 4 + 2 * t, 2)}, v{vVA + db} offset:{slot * 16384 + kk * 8192 + t * 4096}'))
    return out


def qk_block(kb, c0=False):
    sb = vS + (kb & 1) * 16
    out = []
    for qb in range(4):
        for ks in range(4):
            d = vr(sb + qb * 4, 4)
            c = d if ks else ('0' if c0 else vr(vNEGM + qb * 4, 4))
            out.append(mfma(d, ar(aK + (kb & 1) * 16 + ks * 4, 4), q_reg(ks, qb), c))
    return out


def p_reg(buf, kk, qb):
    return vP + buf * 32 + (kk * 4 + qb) * 4


def pv_block(i, pbuf, first=False):
    out = []
    for db in (2 * i, 2 * i + 1):
        for qb in range(4):
            for kk in range(2):
                d = ar(aO + (db * 4 + qb) * 4, 4)
                c = '0' if (first and kk == 0) else d
                out.append(mfma(d, ar(aV + (db & 1) * 8 + kk * 4, 4), vr(p_reg(pbuf, kk, qb), 4), c))
    return out


def sm_stream(kb, pbuf, sub=False, init=False):
    sb = vS + (kb & 1) * 16
    out = []
    for qb in range(4):
        for r in range(4):
            s = sb + qb * 4 + r
            if sub:
                out.append(Item(f'v_add_f32 v{s}, v{vNEGM + qb * 4}, v{s}'))
            out.append(Item(f'v_exp_f32 v{s}, v{s}'))
            if init and r == 0:
                out.append(Item(f'v_mov_b32 v{vL + qb}, v{s}'))
            else:
                out.append(Item(f'v_add_f32 v{vL + qb}, v{vL + qb}, v{s}'))
            if r & 1:
                d = p_reg(pbuf, kb >> 1, qb) + (kb & 1) * 2 + (r >> 1)
                out.append(Item(f'v_cvt_pk_bf16_f32 v{d}, v{s - 1}, v{s}'))
    return out


def xlane(op, v, t):
    return [f'v_mov_b32 v{t}, v{v}', f'v_permlane16_swap_b32 v{t}, v{v}', f'{op} v{v}, v{v}, v{t}',
            f'v_mov_b32 v{t}, v{v}', f'v_permlane32_swap_b32 v{t}, v{v}', f'{op} v{v}, v{v}, v{t}']


def period_skeleton(T, first=False):
    mf, gaps = [], []
    ksl, vsl = (T + 1) & 3, T & 3
    dma = kv_dma('K', T & 3) + kv_dma('V', (T + 3) & 3)
    for i in range(4):
        mf += qk_block(i) + pv_block(i, T & 1, first)
        g = [[] for _ in range(32)]
        vo = v_reads(vsl, 2 * i + 1, aV + 8)
        for n in range(4):
            g[1 + 2 * n].append(vo[n])
        for n in range(2):
            it = dma[2 * i + n]
            g[8 + 2 * n].extend(it.pre)
            g[9 + 2 * n].append(it.ins)
        if i < 3:
            kr = k_reads(ksl, i + 1, (i + 1) & 1)
            ve = v_reads(vsl, 2 * i + 2, aV)
        else:
            g[15].append(I('s_barrier', wait_tags=[('K', (T + 2) & 3), ('V', (T + 1) & 3)], wait_lgkm0=True))
            g[14].append(I(f's_add_u32 s{sTILE}, s{sTILE}, 16384'))
            kr = k_reads((T + 2) & 3, 0, 0)
            ve = v_reads((T + 1) & 3, 0, aV)
        for n in range(4):
            g[17 + 2 * n].append(kr[n])
            g[25 + 2 * n].append(ve[n])
        gaps += g
    return mf, gaps


def clone(ins):
    m = {k: v for k, v in ins.meta.items() if k in ('tag', 'wait_tags', 'wait_lgkm0')}
    return Ins(ins.text, **m)


def o_epi_items(j, tmpsets, nb=0):
    out = []
    for qb in range(4):
        t = tmpsets[(j * 4 + qb) % len(tmpsets)]
        for half in range(2):
            for r in range(4):
                out.append(Item(f'v_accvgpr_read_b32 v{t + 4 * half + r}, a{aO + ((2 * j + half) * 4 + qb) * 4 + r}', nb=nb))
        for r in range(8):
            out.append(Item(f'v_mul_f32 v{t + r}, v{t + r}, v{vRL + qb}'))
        for dd in range(4):
            out.append(Item(f'v_cvt_pk_bf16_f32 v{t + 8 + dd}, v{t + 2 * dd}, v{t + 2 * dd + 1}'))
        out.append(Item(f'buffer_store_dwordx4 {vr(t + 8, 4)}, v{vL16}, {sr(S_OF, 4)}, s{sT1} offen offset:{j * 1024}',
                        pre=[f's_add_u32 s{sT1}, s{sOq + qb}, s{sSTO}']))
    return out


def gen_main(name='main_kernel', force_slow=False):
    p = Prog()
    p.mark('start')
    p('s_cmp_ge_u32 s2, 256')
    p('s_cbranch_scc1 L_main_end')
    p(f's_load_dwordx4 s[4:7], s[0:1], {KA_K}')
    p(f's_load_dwordx2 s[44:45], s[0:1], {KA_WQ}')
    p(f's_load_dwordx4 s[48:51], s[0:1], {KA_WG}')
    p(f's_load_dwordx2 s[46:47], s[0:1], {KA_WS}')
    p('v_lshrrev_b32 v2, 6, v0')
    p(f'v_and_b32 v{vLANE}, 63, v0')
    p(f'v_readfirstlane_b32 s{sW}, v2')
    p(f'v_lshlrev_b32 v{vL16}, 4, v{vLANE}')
    p(f's_and_b32 s{sT0}, s2, 7')
    p(f's_lshr_b32 s{sT1}, s2, 3')
    p(f's_and_b32 s{sRB}, s{sT1}, 7')
    p(f's_lshr_b32 s{sT1}, s{sT1}, 3')
    p(f's_lshl2_add_u32 s{sH}, s{sT0}, s{sT1}')
    p(f's_and_b32 s{sHB2}, s{sH}, 2')
    for q in range(4):
        p(f's_xor_b32 s{sT0}, s{sHB2}, {q}')
        p(f's_mul_i32 s{sXq + q}, s{sT0}, {XN_MB}')
        p(f's_mul_i32 s{sHq + q}, s{sT0}, {HF_MB}')
        p(f's_mul_i32 s{sOq + q}, s{sT0}, {OF_MB}')
    p(f's_lshl_b32 s{sLW}, s{sW}, 10')
    p(f's_lshl_b32 s{sLK}, s{sW}, 12')
    p(f's_mul_i32 s{sLX}, s{sW}, 3072')
    p(f's_mov_b32 s{sMASK}, 0xffff0000')
    p(f's_mov_b32 s{sNL2E}, 0xbfb8aa3b')
    p(f's_mov_b32 s{sSCALE}, 0x3e0293ee')
    p(f's_mov_b32 s{sBIG}, 0x53800000')
    p(f's_lshl_b32 s{sSTO}, s{sH}, 12')
    t0, t1, t2, t3 = vTMP, vTMP + 1, vTMP + 2, vTMP + 3
    p(f'v_lshrrev_b32 v{t0}, 3, v{vLANE}')
    p(f'v_bfe_u32 v{t1}, v{vLANE}, 4, 1')
    p(f's_and_b32 s{sT0}, s{sW}, 1')
    p(f's_lshl_b32 s{sT1}, s{sT0}, 1')
    p(f'v_or_b32 v{t1}, s{sT1}, v{t1}')
    p(f'v_lshlrev_b32 v{t1}, 1, v{t1}')
    p(f'v_and_b32 v{t2}, 7, v{vLANE}')
    p(f'v_xor_b32 v{t1}, v{t1}, v{t2}')
    p(f'v_lshlrev_b32 v{t1}, 4, v{t1}')
    p(f's_lshl_b32 s{sT1}, s{sW}, 3')
    p(f'v_add_u32 v{t0}, s{sT1}, v{t0}')
    p(f'v_mul_u32_u24 v{vWG}, 9216, v{t0}')
    p(f'v_add_u32 v{vWG}, v{vWG}, v{t1}')
    p(f'v_lshl_add_u32 v{vWQ}, v{t0}, 13, v{t1}')
    p(f'v_lshrrev_b32 v{t0}, 2, v{vLANE}')
    p(f'v_bfe_u32 v{t1}, v{vLANE}, 5, 1')
    p(f'v_lshlrev_b32 v{t1}, 1, v{t1}')
    p(f'v_and_b32 v{t2}, 3, v{vLANE}')
    p(f'v_xor_b32 v{t1}, v{t1}, v{t2}')
    p(f's_mul_i32 s{sT1}, s{sT0}, 48')
    p(f'v_add_u32 v{t0}, s{sT1}, v{t0}')
    p(f'v_mul_u32_u24 v{vWX}, 9216, v{t0}')
    p(f'v_lshl_add_u32 v{vWX}, v{t1}, 4, v{vWX}')
    p('s_waitcnt lgkmcnt(0)')
    p(f's_lshl_b32 s{sT0}, s{sH}, 8')
    srd(p, S_WG, 48, off_sgpr=sT0, nbytes=WG_BYTES, nbytes_minus_off=True)
    p(f's_lshl_b32 s{sT1}, s{sRB}, 4')
    p(f's_lshl2_add_u32 s{sT1}, s{sW}, s{sT1}')
    p(f's_mul_i32 s{sT2}, s{sT1}, {XN_MB}')
    srd(p, S_XN, 46, off_sgpr=sT2, off_imm=XN_OFF, nbytes=4 * XN_MB)
    emit_items(p, w_dma(0) + w_dma(1) + xn_loads(0))
    p(f's_lshl_b32 s{sT0}, s{sH}, 8')
    srd(p, S_WU, 50, off_sgpr=sT0, nbytes=WG_BYTES, nbytes_minus_off=True)
    srd(p, S_WQ, 44, off_sgpr=sT0, nbytes=WQ_BYTES, nbytes_minus_off=True)
    p(f's_mul_i32 s{sT2}, s{sT1}, {HF_MB}')
    srd(p, S_HF, 46, off_sgpr=sT2, off_imm=HF_OFF, nbytes=4 * HF_MB)
    p(f's_mul_i32 s{sT2}, s{sT1}, {OF_MB}')
    srd(p, S_OF, 46, off_sgpr=sT2, off_imm=OF_OFF, nbytes=4 * OF_MB)
    p(f's_lshl_b32 s{sT2}, s{sH}, 19')
    srd(p, S_K, 4, off_sgpr=sT2, nbytes=KV_HEAD)
    srd(p, S_V, 6, off_sgpr=sT2, nbytes=KV_HEAD)
    p(f's_lshr_b32 s{sT0}, s{sH}, 2')
    p(f's_and_b32 s{sT1}, s{sH}, 1')
    p(f's_lshl1_add_u32 s{sT0}, s{sT0}, s{sT1}')
    p(f's_lshl_b32 s{sT2}, s{sT0}, 10')
    p(f's_add_u32 s{sT2}, s{sT2}, {128 * 1024}')
    p(f's_lshl_b32 s{sT0}, s{sT0}, 6')
    p(f's_add_u32 s{sT0}, s{sT0}, 8192')
    p(f's_cmp_ge_u32 s{sW}, 2')
    p('s_cselect_b64 s[44:45], s[50:51], s[48:49]')
    srd(p, S_WX, 44, off_sgpr=sT0, nbytes=WG_BYTES, nbytes_minus_off=True)
    emit_items(p, xn_loads(1) + w_dma(2) + w_dma(3) + xn_loads(2) + w_dma(4) + w_dma(5))
    win = [slot_base(0)]
    for l in addr_gu(win[0]):
        p(l)

    units = []
    for c in range(42):
        for nb in range(4):
            units.append((c, nb))

    def unit_reads(u, buf):
        c, nb = units[u]
        kind = PASSES[c // 6]
        e = c // 2
        pre = []
        if nb == 0 and (c & 1) == 0:
            tags = [('W', e)] + ([('K', 0), ('K', 1)] if e == 20 else [])
            pre.append(I('s_barrier', wait_tags=tags))
        base = slot_base(e) + (c & 1) * CH
        if nb == 0:
            if c == 24:
                win[0] = slot_base(e)
                pre += [I(x) for x in addr_x(win[0])]
            elif c == 30:
                win[0] = slot_base(e)
                pre += [I(x) for x in addr_q(win[0])]
            elif not (win[0] <= base and base + CH <= win[0] + 65536):
                d = slot_base(e) - win[0]
                win[0] = slot_base(e)
                for k in range(4 if kind in 'GU' else 2):
                    pre.append(I(f'v_add_u32 v{vA + k}, {d & 0xffffffff:#x}, v{vA + k}'))
        rb = (vWF, vWF + 12, vWF2)[buf]
        out = []
        for kk in range(3):
            for t in range(2):
                o = base - win[0]
                if kind in 'GU':
                    a, o = vA + nb, o + kk * 4096 + t * 512
                elif kind == 'Q':
                    a, o = vA + (nb >> 1), o + kk * 4096 + t * 512 + (nb & 1) * 8
                else:
                    a, o = vA + (nb & 1), o + (nb >> 1) * 6144 + kk * 2048 + t * 256
                out.append(I(f'ds_read_b64_tr_b16 {vr(rb + kk * 4 + 2 * t, 2)}, v{a} offset:{o}'))
        return pre, out

    isx = [PASSES[c // 6] == 'X' for c, nb in units]
    bufs = []
    for u in range(len(units)):
        if u == 0:
            bufs.append(0)
        else:
            busy = {bufs[u - 1]}
            if u >= 2 and isx[u]:
                busy.add(bufs[u - 2])
            cand = [b for b in ((0, 1, 2) if isx[u] else (0, 1)) if b not in busy]
            bufs.append(cand[0])
    read_at = {}
    for u in range(1, len(units)):
        read_at[u] = u - 2 if (isx[u] and isx[u - 1]) else u - 1
    for u in range(2, len(units)):
        if read_at[u] < read_at[u - 1]:
            read_at[u] = read_at[u - 1]
    pre, rd = unit_reads(0, bufs[0])
    for x in pre + rd:
        p.add(x)

    pass_mf, pass_gaps = [], []
    accs = [vACC0, vACC1, vACC0, vACC1, vACC0, vACC1, vACC0]
    nxt = 1
    for ps in range(7):
        kind = PASSES[ps]
        nq = 2 if kind == 'X' else 4
        mf, gaps = [], []
        for cc in range(6):
            c = ps * 6 + cc
            vm = []
            if c + 6 < 42:
                vm += w_dma(c + 6)
            if c < 3:
                vm += xn_loads(c + 3)
            kv = {34: ('K', 0), 35: ('K', 1), 36: ('K', 2), 37: ('K', 3), 38: ('V', 0), 40: ('V', 1), 41: ('V', 2)}.get(c)
            if kv:
                vm += kv_dma(kv[0], kv[1], kv[1] * 16384)
            g0 = len(gaps)
            for nb in range(4):
                u = c * 4 + nb
                rb = (vWF, vWF + 12, vWF2)[bufs[u]]
                n0 = len(gaps)
                for qb in range(nq):
                    for kk in range(3):
                        d = vr(tile(accs[ps], nb, qb, nq), 4)
                        cin = '0' if (cc == 0 and kk == 0) else d
                        mf.append(mfma(d, vr(rb + kk * 4, 4), xn_reg(qb, 3 * cc + kk), cin))
                        gaps.append([])
                k = 0
                while nxt < len(units) and read_at[nxt] == u:
                    pre, rd = unit_reads(nxt, bufs[nxt])
                    if pre:
                        tgt = gaps[n0 + k] if k < nq * 3 else gaps[-1]
                        tgt.extend(pre)
                    for x in rd:
                        gaps[min(n0 + k, len(gaps) - 1)].append(x)
                        k += 1
                    nxt += 1
            lim = g0 + 3 * nq * 3
            free = [gi for gi in range(g0, lim) if gap_used(gaps[gi]) == 0]
            if len(free) < len(vm):
                free = list(range(g0, lim))
            step = max(1, len(free) // max(1, len(vm)))
            for n, it in enumerate(vm):
                gi = free[min(n * step, len(free) - 1)]
                gaps[gi].extend(it.pre)
                gaps[gi].append(it.ins)
        st = []
        if ps in (1, 3):
            st = stream_silu(vACC0)
        elif ps in (2, 4):
            st = stream_finish_h(vACC1, ps // 2 - 1)
        elif ps == 5:
            st = [Item(x) for x in kv_dma_addr()] + stream_x_epi(vACC0)
        elif ps == 6:
            st = stream_q_epi(vACC1, 0) + [Item(x) for x in kv_read_addr()]
        if st:
            fill(gaps, st, start=2, end=len(gaps) - (48 if ps == 6 else 0))
        if ps == 6:
            n = len(gaps)
            nbs = {}
            for ksub in range(2):
                for half in range(2):
                    for qb in range(4):
                        nbs[(ksub, half, qb)] = n - 48 + (2 * ksub + half) * 12 + qb * 3 + 2 + 6
                for qb in range(4):
                    nbs[('w', ksub, qb)] = n
            gaps.append([])
            gaps[-1] += [I('s_nop 1')] + k_reads(0, 0, 0) + k_reads(0, 1, 1) + [I('s_nop 2')]
            fill(gaps, stream_q_epi(vACC0, 1, nbs), start=n - 48, end=n + 1, look=200)
            tail = gaps.pop()
        weave(p, mf, gaps)
        if ps == 6:
            for x in tail:
                p.add(x)

    p(f's_mov_b32 s{sTILE}, 0')
    p('s_nop 1')
    mf = qk_block(0, True) + qk_block(1, True) + qk_block(2) + qk_block(3)
    gaps = [[] for _ in range(64)]
    for n, x in enumerate(k_reads(0, 2, 0)):
        gaps[16 + n].append(x)
    for n, x in enumerate(k_reads(0, 3, 1)):
        gaps[32 + n].append(x)
    gaps[47].append(I('s_barrier', wait_tags=[('K', 1), ('V', 0)], wait_lgkm0=True))
    for n, x in enumerate(k_reads(1, 0, 0)):
        gaps[48 + n].append(x)
    for n, x in enumerate(v_reads(0, 0, aV)):
        gaps[52 + n].append(x)
    st = []
    for qb in range(4):
        s, m, t = vS + qb * 4, vNEGM + qb * 4, vTMP + qb
        nb = 4 * qb + 3 + 8
        st.append(Item(f'v_max3_f32 v{m}, v{s}, v{s + 1}, v{s + 2}', nb=nb))
        st.append(Item(f'v_max_f32 v{m}, v{m}, v{s + 3}', nb=nb))
    for k in range(6):
        for qb in range(4):
            st.append(Item(xlane('v_max_f32', vNEGM + qb * 4, vTMP + qb)[k]))
    for qb in range(4):
        st.append(Item(f'v_sub_f32 v{vNEGM + qb * 4}, 0, v{vNEGM + qb * 4}'))
    for r in range(1, 4):
        for qb in range(4):
            st.append(Item(f'v_mov_b32 v{vNEGM + qb * 4 + r}, v{vNEGM + qb * 4}'))
    st += sm_stream(0, 0, sub=True, init=True)
    fill(gaps, st, start=8, end=32)
    gaps[31].append(I('s_nop 1'))
    fill(gaps, [Item(x.ins, nb=40) if n < 1 else x for n, x in enumerate(sm_stream(1, 0, sub=True))], start=32, end=48)
    fill(gaps, sm_stream(2, 0), start=48, end=64)
    weave(p, mf, gaps)

    sk = [period_skeleton(T) for T in range(4)]
    for T in range(4):
        mf, g = sk[T]
        for i in range(3):
            fill(g, sm_stream(i, (T + 1) & 1), start=32 * i + 16, end=32 * i + 48)
    for T in range(4):
        w = sk[T][1][112:128] + sk[(T + 1) & 3][1][0:16]
        fill(w, sm_stream(3, (T + 1) & 1))
    mf0, g0 = period_skeleton(0, first=True)
    fill(g0, [Item(x.ins, nb=4) if n == 0 else x for n, x in enumerate(sm_stream(3, 0))], start=0, end=16)
    for gi in range(16, 128):
        g0[gi] = [clone(x) for x in sk[0][1][gi]]
    p.mark('t0')
    weave(p, mf0, g0)
    p(f's_mov_b32 s{sCNT}, 8')
    p('s_branch L_att_p1')
    p.mark('p0')
    p('.p2align 6')
    p('L_att_p0:')
    weave(p, *sk[0])
    p.mark('p1')
    p('L_att_p1:')
    weave(p, *sk[1])
    p.mark('p2')
    sk[2][1][120].append(I(f's_sub_u32 s{sCNT}, s{sCNT}, 1'))
    sk[2][1][127].append(I(f's_cmp_eq_u32 s{sCNT}, 0'))
    weave(p, *sk[2])
    p('s_cbranch_scc1 L_att_last')
    p.mark('p3')
    weave(p, *sk[3])
    p('s_branch L_att_p0')
    p.mark('last')
    p('L_att_last:')
    rest = [Item(clone(x)) for gi in range(16) for x in sk[3][1][gi] if x.kind in ('valu', 'trans')]
    fr = {(0, 0): aV, (0, 1): aV + 4}
    order = [(db, 0) for db in range(8)] + [(db, 1) for db in range(8)]
    nfree = 192
    for key in order:
        if key not in fr:
            fr[key] = nfree
            nfree += 4
    mf = []
    for db, kk in order:
        for qb in range(4):
            d = ar(aO + (db * 4 + qb) * 4, 4)
            mf.append(mfma(d, ar(fr[(db, kk)], 4), vr(p_reg(1, kk, qb), 4), d))
    gaps = [[] for _ in range(65)]
    head = []
    rd = [x for key in order if key not in ((0, 0), (0, 1)) for x in v_reads(3, key[0], fr[key], (key[1],))]
    head += rd[:4]
    for n, x in enumerate(rd[4:]):
        gaps[2 * n].append(x)
    st = list(rest)
    for k in range(6):
        for qb in range(4):
            st.append(Item(xlane('v_add_f32', vL + qb, vTMP + qb)[k]))
    for qb in range(4):
        st.append(Item(f'v_rcp_f32 v{vRL + qb}, v{vL + qb}'))
    thr = '0' if force_slow else f's{sBIG}'
    fill(gaps, st, start=0, end=30)
    chk = [I(f'v_cmp_nge_f32 vcc, {thr}, v{vL + qb}') for qb in range(4)]
    for qb in range(4):
        gaps[30].append(chk[qb])
        gaps[30].append(I('s_cbranch_vccnz L_slow'))
    tmpsets = [vS, vS + 12, vP, vP + 12]
    st = []
    for j in range(4):
        st += o_epi_items(j, tmpsets, nb=32 + 8 * j + 7 + 6)
    fill(gaps, st, start=34, end=65, look=30)
    for x in head:
        p.add(x)
    weave(p, mf, gaps[:64])
    p('s_nop 4')
    for x in gaps[64]:
        p.add(x)
    p.mark('end')
    p('L_main_end:')
    p('s_endpgm')

    p.mark('slow')
    p('L_slow:')
    p('s_waitcnt vmcnt(0) lgkmcnt(0)')
    p('s_nop 7')
    vM, vKG, vVG, vAL = vNEGM, vTMP + 4, vTMP + 5, vNEGM + 4
    for i in range(128):
        p(f'v_accvgpr_write_b32 a{aO + i}, 0')
    for qb in range(4):
        p(f'v_mov_b32 v{vM + qb}, 0xff800000')
        p(f'v_mov_b32 v{vL + qb}, 0')
    p(f'v_and_b32 v{vTMP}, 15, v{vLANE}')
    p(f'v_lshrrev_b32 v{vTMP + 1}, 4, v{vLANE}')
    p(f'v_lshlrev_b32 v{vKG}, 8, v{vTMP}')
    p(f'v_lshl_add_u32 v{vKG}, v{vTMP + 1}, 4, v{vKG}')
    p(f'v_subrev_u32 v{vVG}, s{sLK}, v{vVD}')
    p(f'v_subrev_u32 v{vVG + 1}, s{sLK}, v{vVD + 1}')
    p(f's_lshl_b32 s{sT0}, s{sW}, 13')
    p(f's_add_u32 s{sT0}, s{sT0}, 131072')
    p(f's_sub_u32 s{sT1}, s{sT0}, 65536')
    for db in range(8):
        p(f'v_add_u32 v{vVA + db}, s{sT1}, v{vVA + db}')
    p(f's_mov_b32 s{sTILE}, 0')
    p.mark('slow_loop')
    p('L_slow_loop:')
    for kb in range(2):
        p(f's_add_u32 s{sOFF}, s{sTILE}, {kb * 4096}')
        for ks in range(4):
            p(f'buffer_load_dwordx4 {ar(aK + kb * 16 + ks * 4, 4)}, v{vKG}, {sr(S_K, 4)}, s{sOFF} offen offset:{64 * ks}')
    for hf in range(2):
        p(f's_add_u32 m0, s{sT0}, {hf * 4096}')
        p(f's_add_u32 s{sOFF}, s{sTILE}, {hf * 4096}')
        for pc in range(4):
            p(f'buffer_load_dwordx4 v{vVG + (pc & 1)}, {sr(S_V, 4)}, s{sOFF} offen offset:{1024 * pc} lds')
    p('s_waitcnt vmcnt(0)')
    for db in range(8):
        for t in range(2):
            p(f'ds_read_b64_tr_b16 {ar(aV + db * 4 + 2 * t, 2)}, v{vVA + db} offset:{t * 4096}')
    for x in qk_block(0, True) + qk_block(1, True):
        p.add(x)
    p('s_nop 7')
    for qb in range(4):
        s0, s1, t, t2 = vS + qb * 4, vS + 16 + qb * 4, vTMP, vTMP + 1
        p(f'v_max3_f32 v{t}, v{s0}, v{s0 + 1}, v{s0 + 2}')
        p(f'v_max3_f32 v{t}, v{t}, v{s0 + 3}, v{s1}')
        p(f'v_max3_f32 v{t}, v{t}, v{s1 + 1}, v{s1 + 2}')
        p(f'v_max3_f32 v{t}, v{t}, v{s1 + 3}, v{vM + qb}')
        for x in xlane('v_max_f32', t, t2):
            if 'permlane' in x:
                p('s_nop 1')
            p(x)
        p(f'v_sub_f32 v{vAL + qb}, v{vM + qb}, v{t}')
        p(f'v_exp_f32 v{vAL + qb}, v{vAL + qb}')
        p(f'v_mov_b32 v{vM + qb}, v{t}')
        p(f'v_mul_f32 v{vL + qb}, v{vL + qb}, v{vAL + qb}')
        for kb in range(2):
            for r in range(4):
                s = vS + kb * 16 + qb * 4 + r
                p(f'v_sub_f32 v{s}, v{s}, v{t}')
                p(f'v_exp_f32 v{s}, v{s}')
                p('s_nop 0')
                p(f'v_add_f32 v{vL + qb}, v{vL + qb}, v{s}')
            for dd in range(2):
                s = vS + kb * 16 + qb * 4 + 2 * dd
                p(f'v_cvt_pk_bf16_f32 v{p_reg(0, 0, qb) + kb * 2 + dd}, v{s}, v{s + 1}')
        for db in range(8):
            for r in range(4):
                a = aO + (db * 4 + qb) * 4 + r
                p(f'v_accvgpr_read_b32 v{t2}, a{a}')
                p(f'v_mul_f32 v{t2}, v{t2}, v{vAL + qb}')
                p(f'v_accvgpr_write_b32 a{a}, v{t2}')
    p('s_nop 1')
    for db in range(8):
        for qb in range(4):
            d = ar(aO + (db * 4 + qb) * 4, 4)
            p.add(mfma(d, ar(aV + db * 4, 4), vr(p_reg(0, 0, qb), 4), d))
    p('s_nop 7')
    p(f's_add_u32 s{sTILE}, s{sTILE}, 8192')
    p(f's_cmp_lt_u32 s{sTILE}, {KV_HEAD}')
    p('s_cbranch_scc1 L_slow_loop')
    p.mark('slow_end')
    for qb in range(4):
        for x in xlane('v_add_f32', vL + qb, vTMP):
            if 'permlane' in x:
                p('s_nop 1')
            p(x)
        p(f'v_rcp_f32 v{vRL + qb}, v{vL + qb}')
    p('s_nop 0')
    for j in range(4):
        for it in o_epi_items(j, tmpsets):
            emit_items(p, [it])
    p('s_endpgm')
    p.mark('fin')

    S = p.seg
    main = S('start', 'p0') + S('p1', 'last') + S('p0', 'last') + S('p0', 'p3') + S('last', 'end')
    settle([main, S('slow', 'slow_end') + S('slow_loop', 'fin')], name)
    return header(name) + render(p.ins), descriptor(name, 512, 96, 256)
```

```python
import sys, os
sys.path.insert(0, os.path.dirname(__file__))
import k_ln, k_main, k_fin
NAME = 'recurrent_scan__mha_block_cached__swiglu_ffn__prompt'

def build(out, force_slow=False):
    ref = open(f'cdna_kernels/{NAME}.s.ref').read().splitlines()
    head = [l for l in ref if l.startswith(';') and '@launch' not in l and 'Override launch' not in l and 'grid=ceil' not in l]
    head = head[:13]
    ks = [k_ln.gen_ln(), k_main.gen_main(force_slow=force_slow), k_fin.gen_fin()]
    txt = '\n'.join(head) + '\n'
    txt += '; @launch kernel=ln_kernel grid=(256,1,1) block=(64,1,1) lds=0\n'
    txt += '; @launch kernel=main_kernel grid=(256,1,1) block=(256,1,1) lds=163840\n'
    txt += '; @launch kernel=fin_kernel grid=(240,1,1) block=(256,1,1) lds=131072\n'
    txt += '.amdgcn_target "amdgcn-amd-amdhsa--gfx950"\n.text\n'
    for body, d in ks:
        txt += body
    txt += '.section .rodata,"a"\n'
    for body, d in ks:
        txt += '.p2align 6\n' + d
    open(out, 'w').write(txt)
    print('wrote', out, len(txt), 'bytes')

if __name__ == '__main__':
    build(f'cdna_kernels/{NAME}.s')
    build('slow.s', force_slow=True)
```

```python
from asmlib import *

KA_X, KA_K, KA_V, KA_WQ, KA_WO, KA_BX, KA_WG, KA_WU, KA_WD, KA_OUT, KA_DBG, KA_WS = [8 * i for i in range(12)]

XN_OFF = 0
XN_MB = 18 * 1024
XN_BYTES = 128 * XN_MB
HF_OFF = 0x400000
STEP = 128 * 1024
HF_BYTES = 144 * STEP
OF_OFF = 0x1800000
OF_BYTES = 128 * STEP

FLAG_OFF = 0x2900000
FLAG_BYTES = 8192
PART_OFF = 0x3000000
PART_BYTES = 2 * 64 * 16 * 18 * 1024

X_BYTES = 2048 * 576 * 2
KV_HEAD = 2048 * 128 * 2
WQ_BYTES = 576 * 4096 * 2
WG_BYTES = 576 * 4608 * 2
WO_BYTES = 4096 * 576 * 2
WD_BYTES = 4608 * 576 * 2


def vr(b, n=1):
    return f'v{b}' if n == 1 else f'v[{b}:{b + n - 1}]'


def ar(b, n=1):
    return f'a{b}' if n == 1 else f'a[{b}:{b + n - 1}]'


def sr(b, n=1):
    return f's{b}' if n == 1 else f's[{b}:{b + n - 1}]'


def header(name):
    return (f'.globl {name}\n.p2align 8\n.type {name},@function\n{name}:\n')


def descriptor(name, vgpr, sgpr, accum):
    return (f'.amdhsa_kernel {name}\n'
            f'  .amdhsa_next_free_vgpr {vgpr}\n'
            f'  .amdhsa_next_free_sgpr {sgpr}\n'
            f'  .amdhsa_accum_offset {accum}\n'
            f'  .amdhsa_group_segment_fixed_size 0\n'
            f'  .amdhsa_kernarg_size 96\n'
            f'  .amdhsa_user_sgpr_count 2\n'
            f'  .amdhsa_user_sgpr_kernarg_segment_ptr 1\n'
            f'  .amdhsa_system_sgpr_workgroup_id_x 1\n'
            f'  .amdhsa_float_denorm_mode_32 3\n'
            f'.end_amdhsa_kernel\n')


def srd(p, d, base, off_sgpr=None, off_imm=0, nbytes=0, nbytes_minus_off=False):
    if off_imm:
        p(f's_add_u32 s{d}, s{base}, {off_imm}')
        p(f's_addc_u32 s{d + 1}, s{base + 1}, 0')
        if off_sgpr is not None:
            p(f's_add_u32 s{d}, s{d}, s{off_sgpr}')
            p(f's_addc_u32 s{d + 1}, s{d + 1}, 0')
    elif off_sgpr is not None:
        p(f's_add_u32 s{d}, s{base}, s{off_sgpr}')
        p(f's_addc_u32 s{d + 1}, s{base + 1}, 0')
    else:
        p(f's_mov_b32 s{d}, s{base}')
        p(f's_mov_b32 s{d + 1}, s{base + 1}')
    if nbytes_minus_off:
        p(f's_sub_u32 s{d + 2}, {nbytes}, s{off_sgpr}')
    else:
        p(f's_mov_b32 s{d + 2}, {nbytes}')
    p(f's_mov_b32 s{d + 3}, 0x20000')


def finish(p, trace, name):
    settle([trace], name)
    return render(p.ins)


STAMP_OFF = 0x6000000
class Stamps:
    def __init__(self, on, first_sgpr, nmax):
        self.on, self.base, self.n, self.nmax = on, first_sgpr, 0, nmax
        self.names = []
    def stamp(self, p, name):
        if not self.on:
            return
        assert self.n < self.nmax
        p('s_waitcnt lgkmcnt(0)')
        p('s_memtime s[98:99]')
        p('s_memrealtime s[100:101]')
        p('s_waitcnt lgkmcnt(0)')
        p(f'v_writelane_b32 v{self.base}, s98, {self.n}')
        p(f'v_writelane_b32 v{self.base + 1}, s100, {self.n}')
        self.n += 1
        self.names.append(name)
    def dump(self, p, region, t):
        if not self.on:
            return
        p(f's_load_dwordx2 s[96:97], s[0:1], {KA_WS}')
        p('s_waitcnt lgkmcnt(0)')
        p(f's_add_u32 s96, s96, {STAMP_OFF + region * 0x100000}')
        p('s_addc_u32 s97, s97, 0')
        p('s_mov_b32 s98, 0x100000')
        p('s_mov_b32 s99, 0x20000')
        p('s_lshl_b32 s100, s2, 11')
        p(f'v_lshlrev_b32 v{t}, 3, v0')
        p(f'buffer_store_dwordx2 v[{self.base}:{self.base + 1}], v{t}, s[96:99], s100 offen')
        p('s_waitcnt vmcnt(0)')
```

```python
from common import *

S_ACT, S_W, S_X, S_OUT, S_PART, S_FLAG = 8, 12, 16, 20, 24, 28
sWD, sWO = 32, 34
sWDN, sWON = 36, 37
sW, sKQ, sRT, sCT, sT0, sT1, sT2, sT3 = 38, 39, 40, 41, 42, 43, 44, 45
sCNT, sPH, sRS, sWS, sLE, sROT = 46, 47, 48, 49, 50, 51
sAO, sWOF, sM0 = 52, 53, 54
sMS = 55
sN0, sN1, sODD, sNL2E, sMASK, sPB, sSPIN = 57, 58, 59, 60, 61, 62, 63
sABF, sABS = 64, 65
vLANE, vL16, vA0, vA1, vB0, vB1, vXO, vT = 1, 2, 3, 4, 5, 6, 7, 8
vWD = 16
vX = 26
vWF = 36
vACC = 84
vKEEP = 156
vR = 176
vE = 236
EP = 36864
OPT = dict(rot=True)


def mfma(d, a, b, c):
    return I(f'v_mfma_f32_16x16x32_bf16 {d}, {a}, {b}, {c}')


def acc(ms, ns):
    return vACC + (ms * 9 + ns) * 4


def act_reg(buf, st, ms):
    return buf * 32 + (st * 2 + ms) * 4


def next_load_setup():
    L = []
    L += [f's_cmp_ge_u32 s{sLE}, 4', f's_cselect_b32 s{sT0}, 4, 0', f's_cselect_b32 s{sT1}, 5, 4',
          f's_cmp_ge_u32 s{sLE}, 9', f's_cselect_b32 s{sT0}, 9, s{sT0}', f's_cselect_b32 s{sT1}, 4, s{sT1}',
          f's_cselect_b64 {sr(S_W, 2)}, {sr(sWO, 2)}, {sr(sWD, 2)}', f's_cselect_b32 s{S_W + 2}, s{sWON}, s{sWDN}',
          f's_cselect_b32 s{sAO}, s{sABS}, s{sABF}', f's_cselect_b32 s{sT3}, 9, 0',
          f's_cmp_ge_u32 s{sLE}, 13', f's_cselect_b32 s{sT0}, 13, s{sT0}',
          f's_sub_u32 s{sT2}, s{sLE}, s{sT0}', f's_add_u32 s{sT2}, s{sT2}, s{sROT}',
          f's_cmp_ge_u32 s{sT2}, s{sT1}', f's_cselect_b32 s{sT1}, s{sT1}, 0', f's_sub_u32 s{sT2}, s{sT2}, s{sT1}',
          f's_add_u32 s{sT2}, s{sT2}, s{sT0}', f's_sub_u32 s{sT2}, s{sT2}, s{sT3}',
          f's_mul_i32 s{sWOF}, s{sT2}, {4 * 32 * 1152}', f's_lshl_b32 s{sT2}, s{sT2}, 19', f's_add_u32 s{sAO}, s{sAO}, s{sT2}',
          f's_cmp_ge_u32 s{sLE}, 17', f's_cselect_b32 s{sWOF}, 0x7f000000, s{sWOF}', f's_cselect_b32 s{sAO}, 0x7f000000, s{sAO}',
          f's_add_u32 s{sLE}, s{sLE}, 1',
          f's_mul_i32 s{sM0}, s{sW}, 9216', f's_add_u32 s{sM0}, s{sM0}, s{sWS}',
          f's_add_u32 s{sWS}, s{sWS}, {EP}', f's_cmp_ge_u32 s{sWS}, {4 * EP}', f's_cselect_b32 s{sWS}, 0, s{sWS}']
    return L


def w_dma(tag):
    out = []
    for n in range(9):
        pre = [f's_add_u32 m0, s{sM0}, {(n // 4) * 4096}'] if n % 4 == 0 else []
        out.append(Item(I(f'buffer_load_dwordx4 v{vWD + n}, {sr(S_W, 4)}, s{sWOF} offen offset:{1024 * (n % 4)} lds', tag=tag), pre=pre))
    return out


def act_loads(buf, pair):
    out = []
    for st in (2 * pair, 2 * pair + 1):
        for ms in range(2):
            pre = [f's_add_u32 s{sT0}, s{sAO}, {st * STEP}'] if ms == 0 else []
            out.append(Item(f'buffer_load_dwordx4 {ar(act_reg(buf, st, ms), 4)}, v{vB0 + ms}, {sr(S_ACT, 4)}, s{sT0} offen', pre=pre))
    return out


def unit_reads(u):
    pair, ns = divmod(u, 9)
    out = []
    for k in range(2):
        for t in range(2):
            o = (2 * pair + k) * 9216 + t * 16 * 288 + ns * 32
            out.append(lambda rb, o=o, k=k, t=t: I(f'ds_read_b64_tr_b16 {vr(rb + k * 4 + 2 * t, 2)}, v{vA0 if ns < 4 else vA1} offset:{o}'))
    return out


LOOK = 3


def epoch(p, buf, flagcode=None):
    mf, gaps = [], []
    for u in range(18):
        pair, ns = divmod(u, 9)
        rb = vWF + ((buf * 18 + u) % 6) * 8
        for ms in range(2):
            for k in range(2):
                d = vr(acc(ms, ns), 4)
                mf.append(mfma(d, vr(rb + k * 4, 4), ar(act_reg(buf, 2 * pair + k, ms), 4), d))
                gaps.append([])
        un = u + LOOK
        rbn = vWF + ((buf * 18 + un) % 6) * 8
        if un == 18:
            g = gaps[-5]
            g.append(I(f's_add_u32 s{sT0}, s{sRS}, {EP}'))
            g.append(I(f's_cmp_ge_u32 s{sT0}, {4 * EP}'))
            g.append(I(f's_cselect_b32 s{sT0}, 0, s{sT0}'))
            g.append(I(f's_sub_u32 s{sT1}, s{sT0}, s{sRS}'))
            g.append(I(f's_mov_b32 s{sRS}, s{sT0}'))
            g.append(I(f'v_add_u32 v{vA0}, s{sT1}, v{vA0}'))
            g.append(I(f'v_add_u32 v{vA1}, s{sT1}, v{vA1}'))
            if flagcode:
                g.extend(flagcode)
            g.append(I('s_barrier', wait_tags=[('W', buf ^ 1)]))
        for n, mk in enumerate(unit_reads(un % 18)):
            gaps[-4 + n].append(mk(rbn))
    for l in next_load_setup():
        gaps[0].append(I(l))
    for n, it in enumerate(w_dma(('W', buf))):
        gaps[2 + 3 * n].extend(it.pre + [it.ins])
    for n, it in enumerate(act_loads(buf, 0)):
        gaps[37 + 3 * n].extend(it.pre + [it.ins])
    tail = act_loads(buf, 1)
    return mf, gaps, tail


def part_off(g):
    return g * (64 * 4 * 4 * 18 * 1024)


def publish(p, g):
    for ms in range(2):
        for ns in range(9):
            if ms == 0 and ns < 4:
                continue
            p(f's_add_u32 s{sT0}, s{sMS + ms}, s{sN0 if ns < 4 else sN1}')
            p(f's_add_u32 s{sT0}, s{sT0}, {part_off(g) + ns * 1024}')
            p(f'buffer_store_dwordx4 {vr(acc(ms, ns), 4)}, v{vL16}, {sr(S_PART, 4)}, s{sT0} offen sc1')


def poll(p, g, lab):
    p(f's_mov_b32 s{sSPIN}, 0')
    p(f'{lab}:')
    p(f'buffer_load_dword v{vT}, v{vT + 1}, {sr(S_FLAG, 4)}, 0 offen offset:{g * 64} sc1')
    p(f's_add_u32 s{sSPIN}, s{sSPIN}, 1')
    p('s_waitcnt vmcnt(0)')
    p(f'v_cmp_eq_u32 vcc, 0, v{vT}')
    p(f's_cmp_ge_u32 s{sSPIN}, 0x40000')
    p(f's_cbranch_scc1 {lab}_out')
    p(f's_cbranch_vccz {lab}_out')
    p('s_sleep 2')
    p(f's_branch {lab}')
    p(f'{lab}_out:')


def gather(p, g):
    for i in range(3):
        p(f's_xor_b32 s{sT1}, s{sKQ}, {i + 1}')
        p(f's_sub_u32 s{sT1}, s{sT1}, s{sKQ}')
        p(f's_mul_i32 s{sT1}, s{sT1}, {4 * 18 * 1024}')
        p(f's_add_u32 s{sT1}, s{sT1}, s{sMS}')
        for ns in range(5):
            p(f's_add_u32 s{sT0}, s{sT1}, s{sN0 if ns < 4 else sN1}')
            p(f's_add_u32 s{sT0}, s{sT0}, {part_off(g) + ns * 1024}')
            p(f'buffer_load_dwordx4 {vr(vR + (i * 5 + ns) * 4, 4)}, v{vL16}, {sr(S_PART, 4)}, s{sT0} offen sc1')


def gen_fin(name='fin_kernel', stamps=False):
    p = Prog()
    ST = Stamps(stamps, 252, 32)
    p.mark('start')
    p('s_cmp_ge_u32 s2, 256')
    p('s_cbranch_scc1 L_fin_end')
    ST.stamp(p, 'start')
    p(f's_load_dwordx2 s[4:5], s[0:1], {KA_X}')
    p(f's_load_dwordx2 s[{sWO}:{sWO + 1}], s[0:1], {KA_WO}')
    p(f's_load_dwordx4 s[68:71], s[0:1], {KA_WD}')
    p(f's_load_dwordx2 s[6:7], s[0:1], {KA_WS}')
    p(f's_bfe_u32 s{sKQ}, s2, 0x20001')
    p(f's_and_b32 s{sT0}, s2, 1')
    p(f's_lshr_b32 s{sT1}, s2, 5')
    p(f's_lshl3_add_u32 s{sRT}, s{sT0}, s{sT1}')
    p(f's_bfe_u32 s{sCT}, s2, 0x20003')
    p(f's_add_u32 s{sROT}, s{sT1}, s{sCT}')
    p(f's_and_b32 s{sROT}, s{sROT}, {3 if OPT["rot"] else 0}')
    p('v_lshrrev_b32 v2, 6, v0')
    p(f'v_and_b32 v{vLANE}, 63, v0')
    p(f'v_readfirstlane_b32 s{sW}, v2')
    p(f'v_lshlrev_b32 v{vL16}, 4, v{vLANE}')
    t0, t1, t2 = vT, vT + 1, vT + 2
    p(f's_mul_i32 s{sT0}, s{sW}, {32 * 1152}')
    for n in range(9):
        p(f'v_add_u32 v{t0}, {64 * n}, v{vLANE}')
        p(f'v_mul_u32_u24 v{t1}, 3641, v{t0}')
        p(f'v_lshrrev_b32 v{t1}, 16, v{t1}')
        p(f'v_mul_u32_u24 v{t1}, {1152 - 288}, v{t1}')
        p(f'v_lshl_add_u32 v{t1}, v{t0}, 4, v{t1}')
        p(f'v_add_u32 v{t1}, s{sT0}, v{t1}')
        p(f'v_subrev_u32 v{vWD + n}, {1024 * (n % 4)}, v{t1}')
    p(f's_lshr_b32 s{sT0}, s{sKQ}, 1')
    p(f's_lshl_b32 s{sT1}, s{sT0}, 10')
    p(f'v_add_u32 v{vB0}, s{sT1}, v{vL16}')
    p(f'v_xor_b32 v{vB1}, 1024, v{vB0}')
    p(f's_mul_i32 s{sMS}, s{sT0}, 9216')
    p(f's_sub_u32 s{sMS + 1}, 9216, s{sMS}')
    p(f's_and_b32 s{sODD}, s{sKQ}, 1')
    p(f's_mul_i32 s{sN0}, s{sODD}, {5 * 1024}')
    p(f's_mul_i32 s{sN1}, s{sODD}, {-4 * 1024}')
    p(f's_mul_i32 s{sABF}, s{sKQ}, {36 * STEP}')
    p(f's_mul_i32 s{sABS}, s{sKQ}, {32 * STEP}')
    p(f's_add_u32 s{sABS}, s{sABS}, {OF_OFF - HF_OFF}')
    p('s_waitcnt lgkmcnt(0)')
    p(f's_mul_i32 s{sT0}, s{sCT}, 288')
    p(f's_mul_i32 s{sT1}, s{sKQ}, {36 * 32 * 1152}')
    p(f's_add_u32 s{sT1}, s{sT1}, s{sT0}')
    p(f's_add_u32 s{sWD}, s68, s{sT1}')
    p(f's_addc_u32 s{sWD + 1}, s69, 0')
    p(f's_sub_u32 s{sWDN}, {WD_BYTES}, s{sT1}')
    p(f's_mul_i32 s{sT1}, s{sKQ}, {32 * 32 * 1152}')
    p(f's_add_u32 s{sT1}, s{sT1}, s{sT0}')
    p(f's_add_u32 s{sWO}, s{sWO}, s{sT1}')
    p(f's_addc_u32 s{sWO + 1}, s{sWO + 1}, 0')
    p(f's_sub_u32 s{sWON}, {WO_BYTES}, s{sT1}')
    p(f's_mov_b32 s{S_W + 3}, 0x20000')
    p(f's_lshl_b32 s{sT0}, s{sRT}, 3')
    p(f's_lshl1_add_u32 s{sT0}, s{sW}, s{sT0}')
    p(f's_lshl_b32 s{sT1}, s{sT0}, 10')
    srd(p, S_ACT, 6, off_sgpr=sT1, off_imm=HF_OFF, nbytes=OF_OFF + OF_BYTES - HF_OFF, nbytes_minus_off=True)
    p(f's_mov_b32 s{sLE}, 0')
    p(f's_mov_b32 s{sWS}, 0')
    p(f's_mov_b32 s{sRS}, 0')
    for e in range(2):
        for l in next_load_setup():
            p(l)
        for it in w_dma(('W', 1 - e)) + act_loads(1 - e, 0) + act_loads(1 - e, 1):
            for x in it.pre + [it.ins]:
                p.add(x)
    p(f's_lshl_b32 s{sT0}, s{sRT}, 2')
    p(f's_add_u32 s{sT0}, s{sT0}, s{sCT}')
    p(f's_lshl_b32 s{sT1}, s{sT0}, 7')
    srd(p, S_FLAG, 6, off_sgpr=sT1, off_imm=FLAG_OFF, nbytes=128)
    p(f's_lshl2_add_u32 s{sT0}, s{sT0}, s{sKQ}')
    p(f's_lshl2_add_u32 s{sT0}, s{sT0}, s{sW}')
    p(f's_mul_i32 s{sPB}, s{sT0}, {18 * 1024}')
    srd(p, S_PART, 6, off_imm=PART_OFF, nbytes=PART_BYTES)
    p(f's_add_u32 s{sMS}, s{sMS}, s{sPB}')
    p(f's_add_u32 s{sMS + 1}, s{sMS + 1}, s{sPB}')
    srd(p, S_X, 4, nbytes=X_BYTES)
    srd(p, S_OUT, 70, nbytes=X_BYTES)
    p(f's_lshl_b32 s{sT0}, s{sRT}, 7')
    p(f's_lshl_b32 s{sT1}, s{sW}, 5')
    p(f's_add_u32 s{sT0}, s{sT0}, s{sT1}')
    p(f's_lshr_b32 s{sT1}, s{sKQ}, 1')
    p(f's_lshl4_add_u32 s{sT0}, s{sT1}, s{sT0}')
    p(f'v_and_b32 v{t0}, 15, v{vLANE}')
    p(f'v_add_u32 v{t0}, s{sT0}, v{t0}')
    p(f'v_mul_u32_u24 v{t0}, 1152, v{t0}')
    p(f'v_lshrrev_b32 v{t1}, 4, v{vLANE}')
    p(f'v_lshl_add_u32 v{t0}, v{t1}, 3, v{t0}')
    p(f's_mul_i32 s{sT0}, s{sCT}, 288')
    p(f's_mul_i32 s{sT1}, s{sODD}, 160')
    p(f's_add_u32 s{sT0}, s{sT0}, s{sT1}')
    p(f'v_add_u32 v{vXO}, s{sT0}, v{t0}')
    p(f'v_lshrrev_b32 v{t0}, 2, v{vLANE}')
    p(f'v_mul_u32_u24 v{t0}, 288, v{t0}')
    p(f'v_and_b32 v{t1}, 3, v{vLANE}')
    p(f'v_lshl_add_u32 v{t0}, v{t1}, 3, v{t0}')
    p(f'v_add_u32 v{vA0}, s{sT1}, v{t0}')
    p(f's_mul_i32 s{sT1}, s{sODD}, -128')
    p(f'v_add_u32 v{vA1}, s{sT1}, v{t0}')
    for i in range(72):
        p(f'v_mov_b32 v{vACC + i}, 0')
    p(f's_mov_b32 s{sNL2E}, 0xbfb8aa3b')
    p(f's_mov_b32 s{sMASK}, 0xffff0000')
    p(f's_mov_b32 s{sCNT}, 5')
    p(f's_mov_b32 s{sPH}, 0')
    p.add(I('s_barrier', wait_tags=[('W', 1)]))
    for u in range(LOOK):
        for mk in unit_reads(u):
            p.add(mk(vWF + ((18 + u) % 6) * 8))
    ST.stamp(p, 'first reads')
    p('s_branch L_fin_B')

    flag = [I(f's_add_u32 s{sT0}, s{sCNT}, s{sPH}'), I(f's_cmp_eq_u32 s{sT0}, 0x101'), I('s_cbranch_scc1 L_fin_flag'), I('L_fin_flag_back:')]
    mfA, gA, tailA = epoch(p, 0, flag)
    mfB, gB, tailB = epoch(p, 1)
    for g, tail in ((gB, tailA), (gA, tailB)):
        pass
    p.mark('A')
    p('.p2align 6')
    p('L_fin_A:')
    weave(p, mfA, gA)
    for it in tailA:
        for x in it.pre + [it.ins]:
            p.add(x)
    p.mark('B')
    p('L_fin_B:')
    weave(p, mfB, gB)
    for it in tailB:
        for x in it.pre + [it.ins]:
            p.add(x)
    p(f's_sub_u32 s{sCNT}, s{sCNT}, 1')
    p(f's_cmp_lg_u32 s{sCNT}, 0')
    p('s_cbranch_scc1 L_fin_A')
    p.mark('sw')
    p(f's_cmp_lg_u32 s{sPH}, 0')
    p('s_cbranch_scc1 L_fin_done')
    p.mark('flush')
    ST.stamp(p, 'f loop')
    publish(p, 0)
    for i in range(20):
        p(f'v_mov_b32 v{vKEEP + i}, v{vACC + i}')
    for i in range(72):
        p(f'v_mov_b32 v{vACC + i}, 0')
    p(f's_mov_b32 s{sCNT}, 4')
    p(f's_mov_b32 s{sPH}, 0x100')
    ST.stamp(p, 'flush')
    p('s_branch L_fin_A')
    p.mark('flag')
    p('L_fin_flag:')
    p('s_waitcnt vmcnt(0)')
    p('s_barrier')
    p(f's_cmp_lg_u32 s{sW}, 0')
    p('s_cbranch_scc1 L_fin_flag_back')
    p(f'v_mov_b32 v{vT}, 1')
    p(f's_lshl_b32 s{sT0}, s{sKQ}, 2')
    p('s_mov_b64 exec, 1')
    p(f'buffer_store_dword v{vT}, off, {sr(S_FLAG, 4)}, s{sT0} sc1')
    p('s_mov_b64 exec, -1')
    p('s_branch L_fin_flag_back')
    p.mark('done')
    p('L_fin_done:')
    ST.stamp(p, 's loop')
    publish(p, 1)
    for i in range(5):
        p(f'buffer_load_dwordx2 {vr(vX + 2 * i, 2)}, v{vXO}, {sr(S_X, 4)}, 0 offen offset:{32 * i}')
    p('s_waitcnt vmcnt(0)')
    p('s_barrier')
    ST.stamp(p, 'published')
    p(f's_cmp_lg_u32 s{sW}, 0')
    p('s_cbranch_scc1 L_fin_noflag')
    p(f'v_mov_b32 v{vT}, 1')
    p(f's_lshl_b32 s{sT0}, s{sKQ}, 2')
    p('s_mov_b64 exec, 1')
    p(f'buffer_store_dword v{vT}, off, {sr(S_FLAG, 4)}, s{sT0} offset:64 sc1')
    p('s_mov_b64 exec, -1')
    p('L_fin_noflag:')
    p(f'v_and_b32 v{vT + 1}, 3, v{vLANE}')
    p(f'v_lshlrev_b32 v{vT + 1}, 2, v{vT + 1}')
    poll(p, 0, 'L_fin_pf')
    gather(p, 0)
    for i in range(3):
        for r in range(20):
            p(f'v_add_f32 v{vKEEP + r}, v{vKEEP + r}, v{vR + i * 20 + r}')
    ST.stamp(p, 'f gathered')
    poll(p, 1, 'L_fin_ps')
    gather(p, 1)
    ST.stamp(p, 's flag')
    for ns in range(5):
        k, e = vKEEP + ns * 4, vE + (ns & 1) * 4
        for r in range(4):
            p(f'v_mul_f32 v{e + r}, s{sNL2E}, v{k + r}')
        for r in range(4):
            p(f'v_exp_f32 v{e + r}, v{e + r}')
        for r in range(4):
            p(f'v_add_f32 v{e + r}, 1.0, v{e + r}')
        for r in range(4):
            p(f'v_rcp_f32 v{e + r}, v{e + r}')
        for r in range(4):
            p(f'v_mul_f32 v{k + r}, v{k + r}, v{e + r}')
    p(f's_mul_i32 s{sT1}, s{sODD}, 0x7f000000')
    for ns in range(5):
        a, e = acc(0, ns), vE + (ns & 1) * 8
        for r in range(4):
            p(f'v_add_f32 v{vR + ns * 4 + r}, v{vR + ns * 4 + r}, v{vR + 20 + ns * 4 + r}')
        for r in range(4):
            p(f'v_add_f32 v{a + r}, v{a + r}, v{vR + 40 + ns * 4 + r}')
        for dd in range(2):
            p(f'v_lshlrev_b32 v{e + 2 * dd}, 16, v{vX + 2 * ns + dd}')
            p(f'v_and_b32 v{e + 1 + 2 * dd}, s{sMASK}, v{vX + 2 * ns + dd}')
        for r in range(4):
            p(f'v_add_f32 v{a + r}, v{a + r}, v{vR + ns * 4 + r}')
        for r in range(4):
            p(f'v_fmac_f32 v{e + r}, v{a + r}, v{vKEEP + ns * 4 + r}')
        for dd in range(2):
            p(f'v_cvt_pk_bf16_f32 v{e + 4 + dd}, v{e + 2 * dd}, v{e + 1 + 2 * dd}')
        so = f's{sT1}' if ns == 4 else '0'
        p(f'buffer_store_dwordx2 {vr(e + 4, 2)}, v{vXO}, {sr(S_OUT, 4)}, {so} offen offset:{32 * ns}')
    ST.stamp(p, 'issued')
    if stamps:
        p('s_waitcnt vmcnt(0)')
    ST.stamp(p, 'stores done')
    ST.dump(p, 1, vT)
    p('L_fin_end:')
    p('s_endpgm')
    p.mark('fin')
    S = p.seg
    AB = S('A', 'sw')
    tr = S('start', 'A') + S('B', 'sw') + AB + AB + S('sw', 'flag') + AB + AB + S('sw', 'flush') + S('done', 'fin')
    settle([tr], name)
    return header(name) + render(p.ins), descriptor(name, 320, 102, 256), ST.names
```

```python
from common import *


def row_sum(p, v, t):
    p('s_nop 1')
    p(f'v_add_f32_dpp v{v}, v{v}, v{v} row_ror:8 row_mask:0xf bank_mask:0xf')
    p(f'v_mov_b32 v{t}, v{v}')
    p('s_nop 1')
    p(f'v_permlane16_swap_b32 v{t}, v{v}')
    p(f'v_add_f32 v{v}, v{v}, v{t}')
    p(f'v_mov_b32 v{t}, v{v}')
    p('s_nop 1')
    p(f'v_permlane32_swap_b32 v{t}, v{v}')
    p(f'v_add_f32 v{v}, v{v}, v{t}')


def gen_ln(name='ln_kernel'):
    p = Prog()
    p('s_cmp_ge_u32 s2, 256')
    p('s_cbranch_scc1 L_ln_end')
    p(f's_load_dwordx2 s[4:5], s[0:1], {KA_X}')
    p(f's_load_dwordx2 s[6:7], s[0:1], {KA_WS}')
    p('v_and_b32 v1, 7, v0')
    p('v_lshrrev_b32 v2, 3, v0')
    p('v_mul_u32_u24 v3, 1152, v1')
    p('v_lshl_add_u32 v3, v2, 4, v3')
    p('v_lshlrev_b32 v4, 8, v2')
    p('v_lshl_add_u32 v4, v1, 4, v4')
    p('s_mul_i32 s16, s2, 9216')
    p('s_lshr_b32 s17, s2, 1')
    p(f's_mul_i32 s17, s17, {XN_MB}')
    p('s_and_b32 s18, s2, 1')
    p('s_lshl_b32 s18, s18, 7')
    p('s_add_u32 s17, s17, s18')
    p('s_waitcnt lgkmcnt(0)')
    srd(p, 8, 4, nbytes=X_BYTES)
    srd(p, 12, 6, off_imm=XN_OFF, nbytes=XN_BYTES)
    RAW = 8
    F = 48
    for i in range(9):
        p(f'buffer_load_dwordx4 {vr(RAW + 4 * i, 4)}, v3, s[8:11], s16 offen offset:{128 * i}')
    srd(p, 24, 6, off_imm=FLAG_OFF, nbytes=FLAG_BYTES)
    p('s_lshl_b32 s19, s2, 8')
    p('v_lshlrev_b32 v5, 2, v0')
    p('v_mov_b32 v6, 0')
    p('buffer_store_dword v6, v5, s[24:27], s19 offen')
    p('s_mov_b32 s20, 0xffff0000')
    for d in range(36):
        p(f'v_lshlrev_b32 v{F + 2 * d}, 16, v{RAW + d}')
        p(f'v_and_b32 v{F + 2 * d + 1}, s20, v{RAW + d}')
        if d == 0:
            p(f'v_add_f32 v5, v{F}, v{F + 1}')
        elif d == 1:
            p(f'v_add_f32 v6, v{F + 2}, v{F + 3}')
        else:
            p(f'v_add_f32 v5, v5, v{F + 2 * d}')
            p(f'v_add_f32 v6, v6, v{F + 2 * d + 1}')
    p('v_add_f32 v5, v5, v6')
    row_sum(p, 5, 7)
    p('v_mul_f32 v5, 0x3ae38e39, v5')
    for d in range(72):
        p(f'v_sub_f32 v{44 + d % 2}, v{F + d}, v5')
        if d < 2:
            p(f'v_mul_f32 v{46 + d % 2}, v{44 + d % 2}, v{44 + d % 2}')
        else:
            p(f'v_fmac_f32 v{46 + d % 2}, v{44 + d % 2}, v{44 + d % 2}')
    p('v_add_f32 v6, v46, v47')
    row_sum(p, 6, 7)
    p('v_mul_f32 v6, 0x3ae38e39, v6')
    p('v_cvt_pk_bf16_f32 v7, v5, v6')
    p('v_lshlrev_b32 v5, 16, v7')
    p('v_and_b32 v6, s20, v7')
    p('v_add_f32 v6, 0x3727c5ac, v6')
    p('v_cvt_pk_bf16_f32 v6, v6, v6')
    p('v_and_b32 v6, s20, v6')
    p('v_sqrt_f32 v6, v6')
    p('s_nop 0')
    p('v_cvt_pk_bf16_f32 v6, v6, v6')
    p('v_and_b32 v6, s20, v6')
    p('v_rcp_f32 v6, v6')
    for i in range(9):
        for dd in range(4):
            d = 4 * i + dd
            a, b = F + 2 * d, F + 2 * d + 1
            p(f'v_sub_f32 v{a}, v{a}, v5')
            p(f'v_sub_f32 v{b}, v{b}, v5')
            p(f'v_cvt_pk_bf16_f32 v44, v{a}, v{b}')
            p(f'v_lshlrev_b32 v{a}, 16, v44')
            p(f'v_and_b32 v{b}, s20, v44')
            p(f'v_mul_f32 v{a}, v{a}, v6')
            p(f'v_mul_f32 v{b}, v{b}, v6')
            p(f'v_cvt_pk_bf16_f32 v{RAW + d}, v{a}, v{b}')
        p(f's_add_u32 s21, s17, {2048 * i}')
        p(f'buffer_store_dwordx4 {vr(RAW + 4 * i, 4)}, v4, s[12:15], s21 offen')
    p('L_ln_end:')
    p('s_endpgm')
    body = finish(p, p.ins, name)
    return header(name) + body, descriptor(name, 120, 32, 120), []
```

```python
from common import *

S_XN, S_WG, S_WU, S_WQ, S_K, S_V, S_HF, S_OF, S_WX = 8, 12, 16, 20, 24, 28, 32, 36, 40
sW, sH, sRB, sHB2 = 52, 53, 54, 55
sT0, sT1, sT2 = 56, 57, 58
sOFF = 59
sXq, sHq, sOq = 60, 64, 68
sLW, sLX, sLK = 72, 73, 74
sMASK, sNL2E, sSCALE, sTILE, sCNT, sSTO, sBIG = 75, 76, 77, 78, 79, 80, 81
vLANE, vL16, vWG, vWX, vWQ = 1, 2, 3, 4, 5
vA = 6
vTMP = 10
vWF = 24
vXNV = 48
vSG = 80
vACC0, vACC1 = 112, 176
vWF2 = 240
vKD, vVD = 240, 244
vS = 112
vP = 144
vNEGM = 208
vVA = 224
vKA = 232
vL = 236
vRL = 246
aO, aK, aV = 0, 128, 160

sRW = 82
sRX = 88
OPT = dict(nt=True, rot=True, kvwrap=False)
RING0, SLOT = 40960, 24576
CH = 12288


def slot_base(e):
    return RING0 + SLOT * ((e + 4) % 5)


def xn_reg(qb, ks):
    i = ks * 4 + qb
    return vr(vXNV + 4 * (i - 64), 4) if i >= 64 else ar(4 * i, 4)


def q_reg(ks, qb):
    return vr((vSG if ks < 2 else vXNV) + ((ks & 1) * 4 + qb) * 4, 4)


def q_base(ks, qb):
    return (vSG if ks < 2 else vXNV) + ((ks & 1) * 4 + qb) * 4


def mfma(d, a, b, c):
    return I(f'v_mfma_f32_16x16x32_bf16 {d}, {a}, {b}, {c}')


def NT():
    return ' nt' if OPT['nt'] else ''


PASSES = ['G', 'U', 'G', 'U', 'X', 'Q', 'Q']


def w_dma(c):
    ps, cc = divmod(c, 6)
    kind = PASSES[ps]
    e = c // 2
    lds = slot_base(e) + (c & 1) * CH
    out = []
    for i in range(3):
        if kind in 'GU':
            srd_, vo, sl = (S_WG if kind == 'G' else S_WU), vWG, sLW
            so = i * 32 * 9216 + (ps // 2) * 128
            l = lds + i * 4096
        elif kind == 'Q':
            srd_, vo, sl = S_WQ, vWQ, sLW
            so = i * 32 * 8192 + (ps - 5) * 128
            l = lds + i * 4096
        else:
            srd_, vo, sl = S_WX, vWX, sLX
            so = i * 16 * 9216
            l = lds + i * 1024
        pre = [f's_add_u32 m0, s{sl}, {l}', f's_add_u32 s{sOFF}, s{sRW + cc}, {so}']
        if ps == 5 and i == 0:
            pre = [f's_mul_i32 s{sRW + cc}, s{sRX + cc}, 256'] + pre
        out.append(Item(I(f'buffer_load_dwordx4 v{vo}, {sr(srd_, 4)}, s{sOFF} offen{NT()} lds', tag=('W', e)), pre=pre))
    return out


def kv_dma(which, slot, soff_imm=None):
    out = []
    base = (0 if which == 'K' else 65536) + slot * 16384
    for pc in range(4):
        pre = []
        if pc == 0:
            pre.append(f's_add_u32 m0, s{sLK}, {base}')
            if soff_imm is not None:
                pre.append(f's_mov_b32 s{sOFF}, {soff_imm}')
            else:
                pre.append(f's_add_u32 s{sOFF}, s{sTILE}, {(4 if which == "K" else 3) * 16384}')
        vo = vKD + pc if which == 'K' else vVD + (pc & 1)
        srd_ = S_K if which == 'K' else S_V
        out.append(Item(I(f'buffer_load_dwordx4 v{vo}, {sr(srd_, 4)}, s{sOFF} offen offset:{1024 * pc}{NT()} lds',
                          tag=(which, slot)), pre=pre))
    return out


def xn_loads(c):
    out = []
    for qb in range(4):
        for kk in range(3):
            pre = [f's_add_u32 s{sT0}, s{sXq + qb}, s{sRX + c}'] if kk == 0 else []
            out.append(Item(I(f'buffer_load_dwordx4 {xn_reg(qb, 3 * c + kk)}, v{vL16}, {sr(S_XN, 4)}, s{sT0} offen offset:{1024 * kk}'),
                            pre=pre))
    return out


def emit_items(p, items):
    for it in items:
        for x in it.pre:
            p.add(x)
        p.add(it.ins)


def addr_gu(base):
    t0, t1, t2 = vTMP, vTMP + 1, vTMP + 2
    L = [f'v_lshrrev_b32 v{t0}, 4, v{vLANE}',
         f'v_bfe_u32 v{t1}, v{vLANE}, 2, 2',
         f'v_lshl_add_u32 v{t2}, v{t0}, 3, v{t1}',
         f'v_lshlrev_b32 v{t2}, 7, v{t2}',
         f'v_and_b32 v{t0}, 1, v{t0}',
         f'v_lshrrev_b32 v{t1}, 1, v{t1}',
         f'v_lshl_or_b32 v{t0}, v{t0}, 1, v{t1}',
         f'v_and_b32 v{t1}, 3, v{vLANE}',
         f'v_lshl_add_u32 v{t2}, v{t1}, 3, v{t2}',
         f'v_add_u32 v{t2}, {base}, v{t2}']
    for nb in range(4):
        L += [f'v_xor_b32 v{t1}, {nb}, v{t0}', f'v_lshl_add_u32 v{vA + nb}, v{t1}, 5, v{t2}']
    return L


def addr_x(base):
    t0, t1, t2 = vTMP, vTMP + 1, vTMP + 2
    L = [f'v_lshrrev_b32 v{t0}, 4, v{vLANE}',
         f'v_bfe_u32 v{t1}, v{vLANE}, 2, 2',
         f'v_lshl_add_u32 v{t2}, v{t0}, 3, v{t1}',
         f'v_lshlrev_b32 v{t2}, 6, v{t2}',
         f'v_and_b32 v{t0}, 1, v{t0}',
         f'v_and_b32 v{t1}, 3, v{vLANE}',
         f'v_lshl_add_u32 v{t2}, v{t1}, 3, v{t2}',
         f'v_add_u32 v{t2}, {base}, v{t2}']
    for nb in range(2):
        L += [f'v_xor_b32 v{t1}, {nb}, v{t0}', f'v_lshl_add_u32 v{vA + nb}, v{t1}, 5, v{t2}']
    return L


def addr_q(base):
    t0, t1, t2 = vTMP, vTMP + 1, vTMP + 2
    L = [f'v_lshrrev_b32 v{t0}, 4, v{vLANE}',
         f'v_bfe_u32 v{t1}, v{vLANE}, 2, 2',
         f'v_lshl_add_u32 v{t2}, v{t0}, 3, v{t1}',
         f'v_lshlrev_b32 v{t2}, 7, v{t2}',
         f'v_add_u32 v{t2}, {base}, v{t2}',
         f'v_and_b32 v{t0}, 1, v{t0}',
         f'v_lshrrev_b32 v{t1}, 1, v{t1}',
         f'v_lshl_or_b32 v{t0}, v{t0}, 1, v{t1}',
         f'v_lshlrev_b32 v{t0}, 1, v{t0}',
         f'v_and_b32 v{t1}, 3, v{vLANE}',
         f'v_xor_b32 v{t0}, v{t0}, v{t1}',
         f'v_lshl_add_u32 v{vA}, v{t0}, 4, v{t2}',
         f'v_xor_b32 v{t0}, 4, v{t0}',
         f'v_lshl_add_u32 v{vA + 1}, v{t0}, 4, v{t2}']
    return L


def kv_dma_addr():
    t0, t1, t2 = vTMP + 3, vTMP + 4, vTMP + 5
    L = [f'v_lshrrev_b32 v{t0}, 4, v{vLANE}',
         f'v_and_b32 v{t1}, 15, v{vLANE}',
         f'v_lshlrev_b32 v{t2}, 8, v{t0}',
         f'v_add_u32 v{t2}, s{sLK}, v{t2}']
    for pc in range(4):
        L += [f'v_or_b32 v{vKD + pc}, {4 * pc}, v{t0}', f'v_xor_b32 v{vKD + pc}, v{vKD + pc}, v{t1}',
              f'v_lshl_add_u32 v{vKD + pc}, v{vKD + pc}, 4, v{t2}']
    for pc in range(2):
        L += [f'v_or_b32 v{vVD + pc}, {4 * pc}, v{t0}', f'v_lshlrev_b32 v{vVD + pc}, 1, v{vVD + pc}',
              f'v_xor_b32 v{vVD + pc}, v{vVD + pc}, v{t1}', f'v_lshl_add_u32 v{vVD + pc}, v{vVD + pc}, 4, v{t2}']
    return L


def kv_read_addr(vbase=65536):
    t0, t1, t2 = vTMP + 3, vTMP + 4, vTMP + 5
    L = [f'v_lshrrev_b32 v{t0}, 4, v{vLANE}',
         f'v_and_b32 v{t1}, 15, v{vLANE}',
         f'v_lshlrev_b32 v{t2}, 8, v{t1}',
         f'v_xor_b32 v{t1}, v{t0}, v{t1}']
    for ks in range(4):
        L += [f'v_xor_b32 v{vKA + ks}, {4 * ks}, v{t1}', f'v_lshl_add_u32 v{vKA + ks}, v{vKA + ks}, 4, v{t2}']
    L += [f'v_lshrrev_b32 v{t0}, 2, v{vLANE}',
          f'v_and_b32 v{t1}, 3, v{vLANE}',
          f'v_lshlrev_b32 v{t1}, 3, v{t1}',
          f'v_lshl_add_u32 v{t2}, v{t0}, 8, v{t1}',
          f'v_add_u32 v{t2}, {vbase}, v{t2}',
          f'v_and_b32 v{t0}, 7, v{t0}']
    for db in range(8):
        L += [f'v_xor_b32 v{vVA + db}, {db}, v{t0}', f'v_lshl_add_u32 v{vVA + db}, v{vVA + db}, 5, v{t2}']
    return L


def tile(acc, nb, qb, nq=4):
    return acc + (nb * nq + qb) * 4


def silu_ops(g, t0, t1):
    return [f'v_mul_f32 v{t0}, s{sNL2E}, v{g}', f'v_exp_f32 v{t0}, v{t0}', f'v_add_f32 v{t0}, 1.0, v{t0}',
            f'v_rcp_f32 v{t0}, v{t0}', f'v_mul_f32 v{g}, v{g}, v{t0}']


def stream_silu(acc):
    out = []
    for j in range(2):
        for qb in range(4):
            for half in range(2):
                tb = tile(acc, 2 * j + half, qb)
                tmp = vTMP + 6 + 4 * (half & 1)
                st = [silu_ops(tb + r, tmp + r, None) for r in range(4)]
                for s in range(5):
                    for r in range(4):
                        out.append(Item(st[r][s]))
                sg = vSG + (j * 4 + qb) * 4 + 2 * half
                out.append(Item(f'v_cvt_pk_bf16_f32 v{sg}, v{tb}, v{tb + 1}'))
                out.append(Item(f'v_cvt_pk_bf16_f32 v{sg + 1}, v{tb + 2}, v{tb + 3}'))
    return out


def stream_finish_h(acc, pair):
    out = []
    n = 0
    for j in range(2):
        for qb in range(4):
            sg = vSG + (j * 4 + qb) * 4
            for half in range(2):
                tb = tile(acc, 2 * j + half, qb)
                tmp = vTMP + 6 + 4 * (n & 1)
                n += 1
                for dd in range(2):
                    out.append(Item(f'v_lshlrev_b32 v{tmp + 2 * dd}, 16, v{sg + 2 * half + dd}'))
                    out.append(Item(f'v_and_b32 v{tmp + 2 * dd + 1}, s{sMASK}, v{sg + 2 * half + dd}'))
                for r in range(4):
                    out.append(Item(f'v_mul_f32 v{tb + r}, v{tb + r}, v{tmp + r}'))
                for dd in range(2):
                    out.append(Item(f'v_cvt_pk_bf16_f32 v{sg + 2 * half + dd}, v{tb + 2 * dd}, v{tb + 2 * dd + 1}'))
            out.append(Item(f'buffer_store_dwordx4 {vr(sg, 4)}, v{vL16}, {sr(S_HF, 4)}, s{sT1} offen',
                            pre=[f's_add_u32 s{sT1}, s{sHq + qb}, {(2 * pair + j) * STEP}']))
    return out


def stream_x_epi(acc):
    out = []
    for qb in range(2):
        dst = vSG + qb * 4
        for half in range(2):
            tg = tile(acc, half, qb, 2)
            tu = tile(acc, 2 + half, qb, 2)
            tmp = vTMP + 6 + 4 * half
            st = [silu_ops(tg + r, tmp + r, None) + [f'v_mul_f32 v{tg + r}, v{tg + r}, v{tu + r}'] for r in range(4)]
            for s in range(6):
                for r in range(4):
                    out.append(Item(st[r][s]))
            for dd in range(2):
                out.append(Item(f'v_cvt_pk_bf16_f32 v{dst + 2 * half + dd}, v{tg + 2 * dd}, v{tg + 2 * dd + 1}'))
        out.append(Item(f'buffer_store_dwordx4 {vr(dst, 4)}, v{vL16}, {sr(S_HF, 4)}, s{sT1} offen',
                        pre=[f's_add_u32 s{sT1}, s{sOq + qb}, s{sT2}']))
    return out


def stream_q_epi(acc, ps, nbs=None):
    out = []
    for ksub in range(2):
        for half in range(2):
            for qb in range(4):
                tb = tile(acc, 2 * ksub + half, qb)
                nb = nbs[(ksub, half, qb)] if nbs else 0
                for r in range(4):
                    out.append(Item(f'v_mul_f32 v{tb + r}, s{sSCALE}, v{tb + r}', nb=nb))
                d = q_base(2 * ps + ksub, qb) + 2 * half
                nbw = nbs[('w', ksub, qb)] if nbs else 0
                for dd in range(2):
                    out.append(Item(f'v_cvt_pk_bf16_f32 v{d + dd}, v{tb + 2 * dd}, v{tb + 2 * dd + 1}', nb=max(nb, nbw)))
    return out


def k_reads(slot, kb, buf):
    return [I(f'ds_read_b128 {ar(aK + buf * 16 + ks * 4, 4)}, v{vKA + ks} offset:{slot * 16384 + kb * 4096}') for ks in range(4)]


def v_reads(slot, db, base, kks=(0, 1)):
    out = []
    for n, kk in enumerate(kks):
        for t in range(2):
            out.append(I(f'ds_read_b64_tr_b16 {ar(base + n * 4 + 2 * t, 2)}, v{vVA + db} offset:{slot * 16384 + kk * 8192 + t * 4096}'))
    return out


def qk_block(kb, c0=False):
    sb = vS + (kb & 1) * 16
    out = []
    for qb in range(4):
        for ks in range(4):
            d = vr(sb + qb * 4, 4)
            c = d if ks else ('0' if c0 else vr(vNEGM + qb * 4, 4))
            out.append(mfma(d, ar(aK + (kb & 1) * 16 + ks * 4, 4), q_reg(ks, qb), c))
    return out


def p_reg(buf, kk, qb):
    return vP + buf * 32 + (kk * 4 + qb) * 4


def pv_block(i, pbuf, first=False):
    out = []
    for db in (2 * i, 2 * i + 1):
        for qb in range(4):
            for kk in range(2):
                d = ar(aO + (db * 4 + qb) * 4, 4)
                c = '0' if (first and kk == 0) else d
                out.append(mfma(d, ar(aV + (db & 1) * 8 + kk * 4, 4), vr(p_reg(pbuf, kk, qb), 4), c))
    return out


def sm_stream(kb, pbuf, sub=False, init=False):
    sb = vS + (kb & 1) * 16
    out = []
    for qb in range(4):
        for r in range(4):
            s = sb + qb * 4 + r
            if sub:
                out.append(Item(f'v_add_f32 v{s}, v{vNEGM + qb * 4}, v{s}'))
            out.append(Item(f'v_exp_f32 v{s}, v{s}'))
            if init and r == 0:
                out.append(Item(f'v_mov_b32 v{vL + qb}, v{s}'))
            else:
                out.append(Item(f'v_add_f32 v{vL + qb}, v{vL + qb}, v{s}'))
            if r & 1:
                d = p_reg(pbuf, kb >> 1, qb) + (kb & 1) * 2 + (r >> 1)
                out.append(Item(f'v_cvt_pk_bf16_f32 v{d}, v{s - 1}, v{s}'))
    return out


def xlane(op, v, t):
    return [f'v_mov_b32 v{t}, v{v}', f'v_permlane16_swap_b32 v{t}, v{v}', f'{op} v{v}, v{v}, v{t}',
            f'v_mov_b32 v{t}, v{v}', f'v_permlane32_swap_b32 v{t}, v{v}', f'{op} v{v}, v{v}, v{t}']


def period_skeleton(T, first=False):
    mf, gaps = [], []
    ksl, vsl = (T + 1) & 3, T & 3
    dma = kv_dma('K', T & 3) + kv_dma('V', (T + 3) & 3)
    for i in range(4):
        mf += qk_block(i) + pv_block(i, T & 1, first)
        g = [[] for _ in range(32)]
        vo = v_reads(vsl, 2 * i + 1, aV + 8)
        for n in range(4):
            g[1 + 2 * n].append(vo[n])
        for n in range(2):
            it = dma[2 * i + n]
            g[8 + 2 * n].extend(it.pre)
            g[9 + 2 * n].append(it.ins)
        if i < 3:
            kr = k_reads(ksl, i + 1, (i + 1) & 1)
            ve = v_reads(vsl, 2 * i + 2, aV)
        else:
            g[15].append(I('s_barrier', wait_tags=[('K', (T + 2) & 3), ('V', (T + 1) & 3)], wait_lgkm0=True))
            g[14].append(I(f's_add_u32 s{sTILE}, s{sTILE}, {0 if OPT["kvwrap"] else 16384}'))
            kr = k_reads((T + 2) & 3, 0, 0)
            ve = v_reads((T + 1) & 3, 0, aV)
        for n in range(4):
            g[17 + 2 * n].append(kr[n])
            g[25 + 2 * n].append(ve[n])
        gaps += g
    return mf, gaps


def clone(ins):
    m = {k: v for k, v in ins.meta.items() if k in ('tag', 'wait_tags', 'wait_lgkm0')}
    return Ins(ins.text, **m)


def o_epi_items(j, tmpsets, nb=0):
    out = []
    for qb in range(4):
        t = tmpsets[(j * 4 + qb) % len(tmpsets)]
        for half in range(2):
            for r in range(4):
                out.append(Item(f'v_accvgpr_read_b32 v{t + 4 * half + r}, a{aO + ((2 * j + half) * 4 + qb) * 4 + r}', nb=nb))
        for r in range(8):
            out.append(Item(f'v_mul_f32 v{t + r}, v{t + r}, v{vRL + qb}'))
        for dd in range(4):
            out.append(Item(f'v_cvt_pk_bf16_f32 v{t + 8 + dd}, v{t + 2 * dd}, v{t + 2 * dd + 1}'))
        out.append(Item(f'buffer_store_dwordx4 {vr(t + 8, 4)}, v{vL16}, {sr(S_OF, 4)}, s{sT1} offen',
                        pre=[f's_add_u32 s{sT1}, s{sHq + qb}, {j * STEP}']))
    return out


def gen_main(name='main_kernel', force_slow=False, stamps=False):
    p = Prog()
    ST = Stamps(stamps, 252, 32)
    p.mark('start')
    p('s_cmp_ge_u32 s2, 256')
    p('s_cbranch_scc1 L_main_end')
    ST.stamp(p, 'start')
    p(f's_load_dwordx4 s[4:7], s[0:1], {KA_K}')
    p(f's_load_dwordx2 s[44:45], s[0:1], {KA_WQ}')
    p(f's_load_dwordx4 s[48:51], s[0:1], {KA_WG}')
    p(f's_load_dwordx2 s[46:47], s[0:1], {KA_WS}')
    p('v_lshrrev_b32 v2, 6, v0')
    p(f'v_and_b32 v{vLANE}, 63, v0')
    p(f'v_readfirstlane_b32 s{sW}, v2')
    p(f'v_lshlrev_b32 v{vL16}, 4, v{vLANE}')
    p(f's_and_b32 s{sT0}, s2, 7')
    p(f's_lshr_b32 s{sT1}, s2, 3')
    p(f's_and_b32 s{sRB}, s{sT1}, 7')
    p(f's_lshr_b32 s{sT1}, s{sT1}, 3')
    p(f's_lshl2_add_u32 s{sH}, s{sT0}, s{sT1}')
    p(f's_and_b32 s{sHB2}, s{sH}, 2')
    for q in range(4):
        p(f's_xor_b32 s{sT0}, s{sHB2}, {q}')
        p(f's_mul_i32 s{sXq + q}, s{sT0}, {XN_MB}')
        p(f's_lshl_b32 s{sOq + q}, s{sT0}, 10')
        p(f's_lshl_b32 s{sHq + q}, s{sH}, 19')
        p(f's_add_u32 s{sHq + q}, s{sHq + q}, s{sOq + q}')
    if OPT['rot']:
        p(f's_and_b32 s{sT0}, s{sH}, 3')
        p(f's_mul_i32 s{sT0}, s{sT0}, 3')
        p(f's_lshr_b32 s{sT0}, s{sT0}, 1')
        p(f's_add_u32 s{sT0}, s{sT0}, s{sRB}')
    else:
        p(f's_mov_b32 s{sT0}, 0')
    for c in range(6):
        if c:
            p(f's_add_u32 s{sT0}, s{sT0}, 1')
        for _ in range(2 if c == 0 else 1):
            p(f's_sub_u32 s{sT1}, s{sT0}, 6')
            p(f's_cmp_ge_u32 s{sT0}, 6')
            p(f's_cselect_b32 s{sT0}, s{sT1}, s{sT0}')
        p(f's_mul_i32 s{sRX + c}, s{sT0}, 3072')
        p(f's_mul_i32 s{sRW + c}, s{sT0}, {96 * 9216}')
    p(f's_lshl_b32 s{sLW}, s{sW}, 10')
    p(f's_lshl_b32 s{sLK}, s{sW}, 12')
    p(f's_mul_i32 s{sLX}, s{sW}, 3072')
    p(f's_mov_b32 s{sMASK}, 0xffff0000')
    p(f's_mov_b32 s{sNL2E}, 0xbfb8aa3b')
    p(f's_mov_b32 s{sSCALE}, 0x3e0293ee')
    p(f's_mov_b32 s{sBIG}, 0x53800000')
    t0, t1, t2, t3 = vTMP, vTMP + 1, vTMP + 2, vTMP + 3
    p(f'v_lshrrev_b32 v{t0}, 3, v{vLANE}')
    p(f'v_bfe_u32 v{t1}, v{vLANE}, 4, 1')
    p(f's_and_b32 s{sT0}, s{sW}, 1')
    p(f's_lshl_b32 s{sT1}, s{sT0}, 1')
    p(f'v_or_b32 v{t1}, s{sT1}, v{t1}')
    p(f'v_lshlrev_b32 v{t1}, 1, v{t1}')
    p(f'v_and_b32 v{t2}, 7, v{vLANE}')
    p(f'v_xor_b32 v{t1}, v{t1}, v{t2}')
    p(f'v_lshlrev_b32 v{t1}, 4, v{t1}')
    p(f's_lshl_b32 s{sT1}, s{sW}, 3')
    p(f'v_add_u32 v{t0}, s{sT1}, v{t0}')
    p(f'v_mul_u32_u24 v{vWG}, 9216, v{t0}')
    p(f'v_add_u32 v{vWG}, v{vWG}, v{t1}')
    p(f'v_lshl_add_u32 v{vWQ}, v{t0}, 13, v{t1}')
    p(f'v_lshrrev_b32 v{t0}, 2, v{vLANE}')
    p(f'v_bfe_u32 v{t1}, v{vLANE}, 5, 1')
    p(f'v_lshlrev_b32 v{t1}, 1, v{t1}')
    p(f'v_and_b32 v{t2}, 3, v{vLANE}')
    p(f'v_xor_b32 v{t1}, v{t1}, v{t2}')
    p(f's_mul_i32 s{sT1}, s{sT0}, 48')
    p(f'v_add_u32 v{t0}, s{sT1}, v{t0}')
    p(f'v_mul_u32_u24 v{vWX}, 9216, v{t0}')
    p(f'v_lshl_add_u32 v{vWX}, v{t1}, 4, v{vWX}')
    p('s_waitcnt lgkmcnt(0)')
    p(f's_lshl_b32 s{sT0}, s{sH}, 8')
    srd(p, S_WG, 48, off_sgpr=sT0, nbytes=WG_BYTES, nbytes_minus_off=True)
    p(f's_lshl_b32 s{sT1}, s{sRB}, 4')
    p(f's_lshl2_add_u32 s{sT1}, s{sW}, s{sT1}')
    p(f's_mul_i32 s{sT2}, s{sT1}, {XN_MB}')
    srd(p, S_XN, 46, off_sgpr=sT2, off_imm=XN_OFF, nbytes=4 * XN_MB)
    emit_items(p, w_dma(0) + w_dma(1) + xn_loads(0))
    p(f's_lshl_b32 s{sT0}, s{sH}, 8')
    srd(p, S_WU, 50, off_sgpr=sT0, nbytes=WG_BYTES, nbytes_minus_off=True)
    srd(p, S_WQ, 44, off_sgpr=sT0, nbytes=WQ_BYTES, nbytes_minus_off=True)
    p(f's_lshl_b32 s{sT2}, s{sT1}, 10')
    srd(p, S_HF, 46, off_sgpr=sT2, off_imm=HF_OFF, nbytes=HF_BYTES, nbytes_minus_off=True)
    srd(p, S_OF, 46, off_sgpr=sT2, off_imm=OF_OFF, nbytes=OF_BYTES, nbytes_minus_off=True)
    p(f's_lshl_b32 s{sT2}, s{sH}, 19')
    srd(p, S_K, 4, off_sgpr=sT2, nbytes=KV_HEAD)
    srd(p, S_V, 6, off_sgpr=sT2, nbytes=KV_HEAD)
    p(f's_lshr_b32 s{sT0}, s{sH}, 2')
    p(f's_and_b32 s{sT1}, s{sH}, 1')
    p(f's_lshl1_add_u32 s{sT0}, s{sT0}, s{sT1}')
    p(f's_lshl_b32 s{sT2}, s{sT0}, 17')
    p(f's_add_u32 s{sT2}, s{sT2}, {128 * STEP}')
    p(f's_lshl_b32 s{sT0}, s{sT0}, 6')
    p(f's_add_u32 s{sT0}, s{sT0}, 8192')
    p(f's_cmp_ge_u32 s{sW}, 2')
    p('s_cselect_b64 s[44:45], s[50:51], s[48:49]')
    srd(p, S_WX, 44, off_sgpr=sT0, nbytes=WG_BYTES, nbytes_minus_off=True)
    emit_items(p, xn_loads(1) + w_dma(2) + w_dma(3) + xn_loads(2) + w_dma(4) + w_dma(5))
    win = [slot_base(0)]
    for l in addr_gu(win[0]):
        p(l)

    units = []
    for c in range(42):
        for nb in range(4):
            units.append((c, nb))

    def unit_reads(u, buf):
        c, nb = units[u]
        kind = PASSES[c // 6]
        e = c // 2
        pre = []
        if nb == 0 and (c & 1) == 0:
            tags = [('W', e)] + ([('K', 0), ('K', 1)] if e == 20 else [])
            pre.append(I('s_barrier', wait_tags=tags))
        base = slot_base(e) + (c & 1) * CH
        if nb == 0:
            if c == 24:
                win[0] = slot_base(e)
                pre += [I(x) for x in addr_x(win[0])]
            elif c == 30:
                win[0] = slot_base(e)
                pre += [I(x) for x in addr_q(win[0])]
            elif not (win[0] <= base and base + CH <= win[0] + 65536):
                d = slot_base(e) - win[0]
                win[0] = slot_base(e)
                for k in range(4 if kind in 'GU' else 2):
                    pre.append(I(f'v_add_u32 v{vA + k}, {d & 0xffffffff:#x}, v{vA + k}'))
        rb = (vWF, vWF + 12, vWF2)[buf]
        out = []
        for kk in range(3):
            for t in range(2):
                o = base - win[0]
                if kind in 'GU':
                    a, o = vA + nb, o + kk * 4096 + t * 512
                elif kind == 'Q':
                    a, o = vA + (nb >> 1), o + kk * 4096 + t * 512 + (nb & 1) * 8
                else:
                    a, o = vA + (nb & 1), o + (nb >> 1) * 6144 + kk * 2048 + t * 256
                out.append(I(f'ds_read_b64_tr_b16 {vr(rb + kk * 4 + 2 * t, 2)}, v{a} offset:{o}'))
        return pre, out

    isx = [PASSES[c // 6] == 'X' for c, nb in units]
    bufs = []
    for u in range(len(units)):
        if u == 0:
            bufs.append(0)
        else:
            busy = {bufs[u - 1]}
            if u >= 2 and isx[u]:
                busy.add(bufs[u - 2])
            cand = [b for b in ((0, 1, 2) if isx[u] else (0, 1)) if b not in busy]
            bufs.append(cand[0])
    read_at = {}
    for u in range(1, len(units)):
        read_at[u] = u - 2 if (isx[u] and isx[u - 1]) else u - 1
    for u in range(2, len(units)):
        if read_at[u] < read_at[u - 1]:
            read_at[u] = read_at[u - 1]
    pre, rd = unit_reads(0, bufs[0])
    for x in pre + rd:
        p.add(x)

    ST.stamp(p, 'first reads')
    accs = [vACC0, vACC1, vACC0, vACC1, vACC0, vACC1, vACC0]
    nxt = 1
    for ps in range(7):
        kind = PASSES[ps]
        nq = 2 if kind == 'X' else 4
        mf, gaps = [], []
        for cc in range(6):
            c = ps * 6 + cc
            vm = []
            if c + 6 < 42:
                vm += w_dma(c + 6)
            if c < 3:
                vm += xn_loads(c + 3)
            kv = {34: ('K', 0), 35: ('K', 1), 36: ('K', 2), 37: ('K', 3), 38: ('V', 0), 40: ('V', 1), 41: ('V', 2)}.get(c)
            if kv:
                vm += kv_dma(kv[0], kv[1], kv[1] * 16384)
            g0 = len(gaps)
            for nb in range(4):
                u = c * 4 + nb
                rb = (vWF, vWF + 12, vWF2)[bufs[u]]
                n0 = len(gaps)
                for qb in range(nq):
                    for kk in range(3):
                        d = vr(tile(accs[ps], nb, qb, nq), 4)
                        cin = '0' if (cc == 0 and kk == 0) else d
                        mf.append(mfma(d, vr(rb + kk * 4, 4), xn_reg(qb, 3 * cc + kk), cin))
                        gaps.append([])
                k = 0
                while nxt < len(units) and read_at[nxt] == u:
                    pre, rd = unit_reads(nxt, bufs[nxt])
                    if pre:
                        tgt = gaps[n0 + k] if k < nq * 3 else gaps[-1]
                        tgt.extend(pre)
                    for x in rd:
                        gaps[min(n0 + k, len(gaps) - 1)].append(x)
                        k += 1
                    nxt += 1
            lim = g0 + 3 * nq * 3
            free = [gi for gi in range(g0, lim) if gap_used(gaps[gi]) == 0]
            if len(free) < len(vm):
                free = list(range(g0, lim))
            step = max(1, len(free) // max(1, len(vm)))
            for n, it in enumerate(vm):
                gi = free[min(n * step, len(free) - 1)]
                gaps[gi].extend(it.pre)
                gaps[gi].append(it.ins)
        st = []
        if ps in (1, 3):
            st = stream_silu(vACC0)
        elif ps in (2, 4):
            st = stream_finish_h(vACC1, ps // 2 - 1)
        elif ps == 5:
            st = [Item(x) for x in kv_dma_addr()] + stream_x_epi(vACC0)
        elif ps == 6:
            st = stream_q_epi(vACC1, 0) + [Item(x) for x in kv_read_addr()]
        if st:
            fill(gaps, st, start=2, end=len(gaps) - (48 if ps == 6 else 0))
        if ps == 6:
            n = len(gaps)
            nbs = {}
            for ksub in range(2):
                for half in range(2):
                    for qb in range(4):
                        nbs[(ksub, half, qb)] = n - 48 + (2 * ksub + half) * 12 + qb * 3 + 2 + 6
                for qb in range(4):
                    nbs[('w', ksub, qb)] = n
            gaps.append([])
            gaps[-1] += [I('s_nop 1')] + k_reads(0, 0, 0) + k_reads(0, 1, 1) + [I('s_nop 2')]
            fill(gaps, stream_q_epi(vACC0, 1, nbs), start=n - 48, end=n + 1, look=200)
            tail = gaps.pop()
        weave(p, mf, gaps)
        if ps == 6:
            for x in tail:
                p.add(x)
        ST.stamp(p, 'pass' + str(ps) + kind)

    p(f's_mov_b32 s{sTILE}, 0')
    p('s_nop 1')
    mf = qk_block(0, True) + qk_block(1, True) + qk_block(2) + qk_block(3)
    gaps = [[] for _ in range(64)]
    for n, x in enumerate(k_reads(0, 2, 0)):
        gaps[16 + n].append(x)
    for n, x in enumerate(k_reads(0, 3, 1)):
        gaps[32 + n].append(x)
    gaps[47].append(I('s_barrier', wait_tags=[('K', 1), ('V', 0)], wait_lgkm0=True))
    for n, x in enumerate(k_reads(1, 0, 0)):
        gaps[48 + n].append(x)
    for n, x in enumerate(v_reads(0, 0, aV)):
        gaps[52 + n].append(x)
    st = []
    for qb in range(4):
        s, m, t = vS + qb * 4, vNEGM + qb * 4, vTMP + qb
        nb = 4 * qb + 3 + 8
        st.append(Item(f'v_max3_f32 v{m}, v{s}, v{s + 1}, v{s + 2}', nb=nb))
        st.append(Item(f'v_max_f32 v{m}, v{m}, v{s + 3}', nb=nb))
    for k in range(6):
        for qb in range(4):
            st.append(Item(xlane('v_max_f32', vNEGM + qb * 4, vTMP + qb)[k]))
    for qb in range(4):
        st.append(Item(f'v_sub_f32 v{vNEGM + qb * 4}, 0, v{vNEGM + qb * 4}'))
    for r in range(1, 4):
        for qb in range(4):
            st.append(Item(f'v_mov_b32 v{vNEGM + qb * 4 + r}, v{vNEGM + qb * 4}'))
    st += sm_stream(0, 0, sub=True, init=True)
    fill(gaps, st, start=8, end=32)
    gaps[31].append(I('s_nop 1'))
    fill(gaps, [Item(x.ins, nb=40) if n < 1 else x for n, x in enumerate(sm_stream(1, 0, sub=True))], start=32, end=48)
    fill(gaps, sm_stream(2, 0), start=48, end=64)
    weave(p, mf, gaps)

    sk = [period_skeleton(T) for T in range(4)]
    for T in range(4):
        mf, g = sk[T]
        for i in range(3):
            fill(g, sm_stream(i, (T + 1) & 1), start=32 * i + 16, end=32 * i + 48)
    for T in range(4):
        w = sk[T][1][112:128] + sk[(T + 1) & 3][1][0:16]
        fill(w, sm_stream(3, (T + 1) & 1))
    mf0, g0 = period_skeleton(0, first=True)
    fill(g0, [Item(x.ins, nb=4) if n == 0 else x for n, x in enumerate(sm_stream(3, 0))], start=0, end=16)
    for gi in range(16, 128):
        g0[gi] = [clone(x) for x in sk[0][1][gi]]
    ST.stamp(p, 'att prologue')
    p.mark('t0')
    weave(p, mf0, g0)
    p(f's_mov_b32 s{sCNT}, 8')
    p('s_branch L_att_p1')
    p.mark('p0')
    p('.p2align 6')
    p('L_att_p0:')
    weave(p, *sk[0])
    p.mark('p1')
    p('L_att_p1:')
    weave(p, *sk[1])
    p.mark('p2')
    sk[2][1][120].append(I(f's_sub_u32 s{sCNT}, s{sCNT}, 1'))
    sk[2][1][127].append(I(f's_cmp_eq_u32 s{sCNT}, 0'))
    weave(p, *sk[2])
    p('s_cbranch_scc1 L_att_last')
    p.mark('p3')
    weave(p, *sk[3])
    p('s_branch L_att_p0')
    p.mark('last')
    p('L_att_last:')
    ST.stamp(p, 'att loop')
    rest = [Item(clone(x)) for gi in range(16) for x in sk[3][1][gi] if x.kind in ('valu', 'trans')]
    fr = {(0, 0): aV, (0, 1): aV + 4}
    order = [(db, 0) for db in range(8)] + [(db, 1) for db in range(8)]
    nfree = 192
    for key in order:
        if key not in fr:
            fr[key] = nfree
            nfree += 4
    mf = []
    for db, kk in order:
        for qb in range(4):
            d = ar(aO + (db * 4 + qb) * 4, 4)
            mf.append(mfma(d, ar(fr[(db, kk)], 4), vr(p_reg(1, kk, qb), 4), d))
    gaps = [[] for _ in range(65)]
    head = []
    rd = [x for key in order if key not in ((0, 0), (0, 1)) for x in v_reads(3, key[0], fr[key], (key[1],))]
    head += rd[:4]
    for n, x in enumerate(rd[4:]):
        gaps[2 * n].append(x)
    st = list(rest)
    for k in range(6):
        for qb in range(4):
            st.append(Item(xlane('v_add_f32', vL + qb, vTMP + qb)[k]))
    for qb in range(4):
        st.append(Item(f'v_rcp_f32 v{vRL + qb}, v{vL + qb}'))
    thr = '0' if force_slow else f's{sBIG}'
    fill(gaps, st, start=0, end=30)
    chk = [I(f'v_cmp_nge_f32 vcc, {thr}, v{vL + qb}') for qb in range(4)]
    for qb in range(4):
        gaps[30].append(chk[qb])
        gaps[30].append(I('s_cbranch_vccnz L_slow'))
    tmpsets = [vS, vS + 12, vP, vP + 12]
    st = []
    for j in range(4):
        st += o_epi_items(j, tmpsets, nb=32 + 8 * j + 7 + 6)
    fill(gaps, st, start=34, end=65, look=30)
    for x in head:
        p.add(x)
    weave(p, mf, gaps[:64])
    p('s_nop 4')
    for x in gaps[64]:
        p.add(x)
    ST.stamp(p, 'last issued')
    if stamps:
        p('s_waitcnt vmcnt(0)')
    ST.stamp(p, 'stores done')
    ST.dump(p, 0, vTMP)
    p.mark('end')
    p('L_main_end:')
    p('s_endpgm')

    p.mark('slow')
    p('L_slow:')
    p('s_waitcnt vmcnt(0) lgkmcnt(0)')
    p('s_nop 7')
    vM, vKG, vVG, vAL = vNEGM, vTMP + 4, vTMP + 5, vNEGM + 4
    for i in range(128):
        p(f'v_accvgpr_write_b32 a{aO + i}, 0')
    for qb in range(4):
        p(f'v_mov_b32 v{vM + qb}, 0xff800000')
        p(f'v_mov_b32 v{vL + qb}, 0')
    p(f'v_and_b32 v{vTMP}, 15, v{vLANE}')
    p(f'v_lshrrev_b32 v{vTMP + 1}, 4, v{vLANE}')
    p(f'v_lshlrev_b32 v{vKG}, 8, v{vTMP}')
    p(f'v_lshl_add_u32 v{vKG}, v{vTMP + 1}, 4, v{vKG}')
    p(f'v_subrev_u32 v{vVG}, s{sLK}, v{vVD}')
    p(f'v_subrev_u32 v{vVG + 1}, s{sLK}, v{vVD + 1}')
    p(f's_lshl_b32 s{sT0}, s{sW}, 13')
    p(f's_add_u32 s{sT0}, s{sT0}, 131072')
    p(f's_sub_u32 s{sT1}, s{sT0}, 65536')
    for db in range(8):
        p(f'v_add_u32 v{vVA + db}, s{sT1}, v{vVA + db}')
    p(f's_mov_b32 s{sTILE}, 0')
    p.mark('slow_loop')
    p('L_slow_loop:')
    for kb in range(2):
        p(f's_add_u32 s{sOFF}, s{sTILE}, {kb * 4096}')
        for ks in range(4):
            p(f'buffer_load_dwordx4 {ar(aK + kb * 16 + ks * 4, 4)}, v{vKG}, {sr(S_K, 4)}, s{sOFF} offen offset:{64 * ks}')
    for hf in range(2):
        p(f's_add_u32 m0, s{sT0}, {hf * 4096}')
        p(f's_add_u32 s{sOFF}, s{sTILE}, {hf * 4096}')
        for pc in range(4):
            p(f'buffer_load_dwordx4 v{vVG + (pc & 1)}, {sr(S_V, 4)}, s{sOFF} offen offset:{1024 * pc} lds')
    p('s_waitcnt vmcnt(0)')
    for db in range(8):
        for t in range(2):
            p(f'ds_read_b64_tr_b16 {ar(aV + db * 4 + 2 * t, 2)}, v{vVA + db} offset:{t * 4096}')
    for x in qk_block(0, True) + qk_block(1, True):
        p.add(x)
    p('s_nop 7')
    for qb in range(4):
        s0, s1, t, t2 = vS + qb * 4, vS + 16 + qb * 4, vTMP, vTMP + 1
        p(f'v_max3_f32 v{t}, v{s0}, v{s0 + 1}, v{s0 + 2}')
        p(f'v_max3_f32 v{t}, v{t}, v{s0 + 3}, v{s1}')
        p(f'v_max3_f32 v{t}, v{t}, v{s1 + 1}, v{s1 + 2}')
        p(f'v_max3_f32 v{t}, v{t}, v{s1 + 3}, v{vM + qb}')
        for x in xlane('v_max_f32', t, t2):
            if 'permlane' in x:
                p('s_nop 1')
            p(x)
        p(f'v_sub_f32 v{vAL + qb}, v{vM + qb}, v{t}')
        p(f'v_exp_f32 v{vAL + qb}, v{vAL + qb}')
        p(f'v_mov_b32 v{vM + qb}, v{t}')
        p(f'v_mul_f32 v{vL + qb}, v{vL + qb}, v{vAL + qb}')
        for kb in range(2):
            for r in range(4):
                s = vS + kb * 16 + qb * 4 + r
                p(f'v_sub_f32 v{s}, v{s}, v{t}')
                p(f'v_exp_f32 v{s}, v{s}')
                p('s_nop 0')
                p(f'v_add_f32 v{vL + qb}, v{vL + qb}, v{s}')
            for dd in range(2):
                s = vS + kb * 16 + qb * 4 + 2 * dd
                p(f'v_cvt_pk_bf16_f32 v{p_reg(0, 0, qb) + kb * 2 + dd}, v{s}, v{s + 1}')
        for db in range(8):
            for r in range(4):
                a = aO + (db * 4 + qb) * 4 + r
                p(f'v_accvgpr_read_b32 v{t2}, a{a}')
                p(f'v_mul_f32 v{t2}, v{t2}, v{vAL + qb}')
                p(f'v_accvgpr_write_b32 a{a}, v{t2}')
    p('s_nop 1')
    for db in range(8):
        for qb in range(4):
            d = ar(aO + (db * 4 + qb) * 4, 4)
            p.add(mfma(d, ar(aV + db * 4, 4), vr(p_reg(0, 0, qb), 4), d))
    p('s_nop 7')
    p(f's_add_u32 s{sTILE}, s{sTILE}, 8192')
    p(f's_cmp_lt_u32 s{sTILE}, {KV_HEAD}')
    p('s_cbranch_scc1 L_slow_loop')
    p.mark('slow_end')
    for qb in range(4):
        for x in xlane('v_add_f32', vL + qb, vTMP):
            if 'permlane' in x:
                p('s_nop 1')
            p(x)
        p(f'v_rcp_f32 v{vRL + qb}, v{vL + qb}')
    p('s_nop 0')
    for j in range(4):
        for it in o_epi_items(j, tmpsets):
            emit_items(p, [it])
    p('s_endpgm')
    p.mark('fin')

    S = p.seg
    main = S('start', 'p0') + S('p1', 'last') + S('p0', 'last') + S('p0', 'p3') + S('last', 'end')
    settle([main, S('slow', 'slow_end') + S('slow_loop', 'fin')], name)
    return header(name) + render(p.ins), descriptor(name, 512, 102, 256), ST.names
```

```python
import sys, os
sys.path.insert(0, os.path.dirname(__file__))
import k_ln, k_main, k_fin2 as k_fin
NAME = 'recurrent_scan__mha_block_cached__swiglu_ffn__prompt'

def build(out, force_slow=False, stamps=False):
    ref = open(f'cdna_kernels/{NAME}.s.ref').read().splitlines()
    head = [l for l in ref if l.startswith(';') and '@launch' not in l and 'Override launch' not in l and 'grid=ceil' not in l]
    head = head[:13]
    ks = [k_ln.gen_ln(), k_main.gen_main(force_slow=force_slow, stamps=stamps), k_fin.gen_fin(stamps=stamps)]
    txt = '\n'.join(head) + '\n'
    txt += '; @launch kernel=ln_kernel grid=(256,1,1) block=(64,1,1) lds=0\n'
    txt += '; @launch kernel=main_kernel grid=(256,1,1) block=(256,1,1) lds=163840\n'
    txt += '; @launch kernel=fin_kernel grid=(256,1,1) block=(256,1,1) lds=147456\n'
    txt += '.amdgcn_target "amdgcn-amd-amdhsa--gfx950"\n.text\n'
    for body, d, nm in ks:
        txt += body
    txt += '.section .rodata,"a"\n'
    for body, d, nm in ks:
        txt += '.p2align 6\n' + d
    if stamps:
        import json
        json.dump([k[2] for k in ks[1:]], open(out + '.json', 'w'))
    open(out, 'w').write(txt)
    print('wrote', out, len(txt), 'bytes')

if __name__ == '__main__':
    build(f'cdna_kernels/{NAME}.s')
    build('slow.s', force_slow=True)
    build('stamp.s', stamps=True)
    for a in sys.argv[1:]:
        nm, kv = a.split(':')
        old = dict(k_main.OPT); oldf = dict(k_fin.OPT)
        for x in kv.split(','):
            k, v = x.split('=')
            if k.startswith('f_'):
                k_fin.OPT[k[2:]] = int(v)
            else:
                k_main.OPT[k] = int(v)
        build(f'dev/{nm}.s', stamps=True)
        build(f'dev/{nm}_ns.s')
        k_main.OPT.update(old); k_fin.OPT.update(oldf)
```

```python
import re

REG_RE = re.compile(r'^(-|abs\()?([vas])(\d+)\)?$')
RNG_RE = re.compile(r'^(-)?([vas])\[(\d+):(\d+)\]$')


def regs_of(tok):
    tok = tok.strip()
    m = REG_RE.match(tok)
    if m:
        return [m.group(2) + m.group(3)]
    m = RNG_RE.match(tok)
    if m:
        return [m.group(2) + str(i) for i in range(int(m.group(3)), int(m.group(4)) + 1)]
    if tok in ('vcc', 'exec', 'm0', 'scc'):
        return [tok]
    if tok in ('vcc_lo', 'vcc_hi'):
        return ['vcc']
    if tok in ('exec_lo', 'exec_hi'):
        return ['exec']
    return []


TRANS = ('v_exp_f32', 'v_log_f32', 'v_rcp_f32', 'v_rsq_f32', 'v_sqrt_f32', 'v_sin_f32', 'v_cos_f32', 'v_rcp_iflag_f32')


class Ins:
    __slots__ = ('text', 'op', 'kind', 'reads', 'writes', 'ops', 'meta')

    def __init__(self, text, **meta):
        self.text = text
        self.meta = meta
        t = text.split(';')[0].strip()
        if t.endswith(':') or t.startswith('.') or not t:
            self.op = t
            self.kind = 'label'
            self.reads = []
            self.writes = []
            self.ops = []
            return
        parts = t.split(None, 1)
        op = parts[0]
        self.op = op
        rest = parts[1] if len(parts) > 1 else ''
        ops = []
        cur = ''
        depth = 0
        for ch in rest:
            if ch in '[(':
                depth += 1
            if ch in '])':
                depth -= 1
            if ch == ',' and depth == 0:
                ops.append(cur.strip())
                cur = ''
            else:
                cur += ch
        if cur.strip():
            ops.append(cur.strip())
        mods = ''
        if ops:
            last = ops[-1].split(None, 1)
            ops[-1] = last[0]
            mods = last[1] if len(last) > 1 else ''
        self.ops = ops
        R = []
        W = []
        base = re.sub(r'_(e32|e64|dpp|sdwa)$', '', op)
        if op.startswith('v_mfma'):
            self.kind = 'mfma'
            W = regs_of(ops[0])
            R = regs_of(ops[1]) + regs_of(ops[2]) + regs_of(ops[3])
            self.meta['A'] = regs_of(ops[1])
            self.meta['B'] = regs_of(ops[2])
            self.meta['C'] = regs_of(ops[3])
            self.meta['passes'] = 4 if '16x16x32' in op else 8
        elif op.startswith('ds_read') or op.startswith('ds_bpermute') or op.startswith('ds_swizzle'):
            self.kind = 'ds'
            W = regs_of(ops[0])
            for o in ops[1:]:
                R += regs_of(o)
        elif op.startswith('ds_write'):
            self.kind = 'ds'
            for o in ops:
                R += regs_of(o)
        elif op.startswith('buffer_load') or op.startswith('global_load'):
            self.kind = 'vmem'
            if ' lds' in (' ' + mods) or op.startswith('global_load_lds'):
                for o in ops:
                    R += regs_of(o)
                R.append('m0')
                self.meta['dma'] = True
            else:
                W = regs_of(ops[0])
                for o in ops[1:]:
                    R += regs_of(o)
        elif op.startswith('buffer_store') or op.startswith('global_store'):
            self.kind = 'vmem'
            for o in ops:
                R += regs_of(o)
            self.meta['store'] = True
            dtok = ops[0] if op.startswith('buffer') else ops[1]
            self.meta['data'] = regs_of(dtok)
            self.meta['wide'] = op.endswith('x4') or op.endswith('x3')
        elif op.startswith('buffer_atomic') or op.startswith('global_atomic'):
            self.kind = 'vmem'
            for o in ops:
                R += regs_of(o)
            if 'sc0' in mods:
                W = regs_of(ops[0])
        elif op in ('buffer_wbl2', 'buffer_inv'):
            self.kind = 'vmem'
        elif op == 's_waitcnt':
            self.kind = 'wait'
            m = re.search(r'vmcnt\((\d+)\)', t)
            self.meta['vm'] = int(m.group(1)) if m else None
            m = re.search(r'lgkmcnt\((\d+)\)', t)
            self.meta['lgkm'] = int(m.group(1)) if m else None
        elif op == 's_nop':
            self.kind = 'nop'
            self.meta['n'] = int(ops[0], 0) + 1
        elif op == 's_barrier':
            self.kind = 'barrier'
        elif op.startswith('s_cbranch') or op == 's_branch' or op == 's_endpgm':
            self.kind = 'branch'
            if 'scc' in op:
                R = ['scc']
            if 'vcc' in op:
                R = ['vcc']
            if 'exec' in op:
                R = ['exec']
        elif op.startswith('s_load') or op in ('s_memtime', 's_memrealtime'):
            self.kind = 'smem'
            W = regs_of(ops[0])
            for o in ops[1:]:
                R += regs_of(o)
        elif op.startswith('s_'):
            self.kind = 'salu'
            if op.startswith('s_cmp') or op.startswith('s_bitcmp'):
                for o in ops:
                    R += regs_of(o)
                W = ['scc']
            elif op in ('s_setprio', 's_sleep'):
                pass
            else:
                W = regs_of(ops[0])
                for o in ops[1:]:
                    R += regs_of(o)
                if 'saveexec' in op:
                    W = W + ['exec', 'scc']
                    R = R + ['exec']
                elif op.startswith('s_cselect') or op.startswith('s_addc') or op.startswith('s_subb') or op.startswith('s_cmov'):
                    R = R + ['scc']
                    if not op.startswith('s_cselect') and not op.startswith('s_cmov'):
                        W = W + ['scc']
                elif not (op.startswith('s_mov') or op.startswith('s_mul') or op.startswith('s_getreg')):
                    W = W + ['scc']
                if op in ('s_addk_i32', 's_mulk_i32') or op.startswith('s_cmov'):
                    R = R + regs_of(ops[0])
        elif op.startswith('v_'):
            self.kind = 'trans' if base in TRANS else 'valu'
            if base.startswith('v_cmp'):
                W = regs_of(ops[0])
                for o in ops[1:]:
                    R += regs_of(o)
                if base.startswith('v_cmpx'):
                    W = W + ['exec']
            elif base.startswith('v_permlane') and 'swap' in base:
                W = regs_of(ops[0]) + regs_of(ops[1])
                R = list(W)
                self.meta['permlane'] = True
            elif base in ('v_add_co_u32', 'v_sub_co_u32', 'v_subrev_co_u32', 'v_addc_co_u32', 'v_subb_co_u32', 'v_div_scale_f32'):
                W = regs_of(ops[0]) + regs_of(ops[1])
                for o in ops[2:]:
                    R += regs_of(o)
            else:
                W = regs_of(ops[0])
                for o in ops[1:]:
                    R += regs_of(o)
                if base in ('v_fmac_f32', 'v_dot2c_f32_bf16', 'v_writelane_b32') or op.endswith('_dpp'):
                    R = R + W
                if base == 'v_cndmask_b32' and len(ops) == 3:
                    R.append('vcc')
                if base == 'v_div_fmas_f32':
                    R.append('vcc')
            if op.endswith('_dpp'):
                self.meta['dpp'] = True
            if base in ('v_readfirstlane_b32', 'v_readlane_b32'):
                self.meta['readlane'] = True
        else:
            raise ValueError('unknown instruction: ' + text)
        self.reads = R
        self.writes = W


class Prog:
    def __init__(self):
        self.ins = []
        self.marks = {}

    def __call__(self, text, **meta):
        for line in text.split('\n'):
            line = line.strip()
            if line:
                self.ins.append(Ins(line, **meta))

    def add(self, ins):
        self.ins.append(ins)

    def mark(self, name):
        self.marks[name] = len(self.ins)

    def text(self):
        out = []
        for i in self.ins:
            if i.kind == 'label':
                out.append(i.text)
            else:
                out.append('    ' + i.text)
        return '\n'.join(out) + '\n'

    def seg(self, a, b):
        return self.ins[self.marks[a]:self.marks[b]]


def check_trace(trace, name='', verbose=True, fix=False):
    errs = []
    vm = []
    lg = []
    pos = 0
    last_mfma_w = {}
    last_mfma_c = {}
    last_valu_w = {}
    last_trans_w = {}
    last_valu_sw = {}
    last_salu_m0 = -100
    last_store_data = {}
    need_raw = {4: 8, 8: 12}
    need_cwar = {4: 3, 8: 7}
    need_cpart = {4: 6, 8: 10}

    def err(i, ins, msg, deficit=None):
        if fix and deficit is not None:
            ins.meta['nop_new'] = max(ins.meta.get('nop_new', 0), deficit)
        errs.append(f'{name}[{i}] {ins.text}  :: {msg}')

    for i, ins in enumerate(trace):
        k = ins.kind
        if k == 'label':
            continue
        if k == 'wait':
            if ins.meta['vm'] is not None:
                while len(vm) > ins.meta['vm']:
                    vm.pop(0)
            if ins.meta['lgkm'] is not None:
                n = ins.meta['lgkm']
                if n > 0 and any(x[2] == 'smem' for x in lg):
                    err(i, ins, 'counted lgkmcnt with smem outstanding')
                while len(lg) > n:
                    lg.pop(0)
            pos += 1
            continue
        if k == 'nop':
            pos += ins.meta['n']
            continue
        touched = set(ins.reads) | set(ins.writes)
        for (j, w, kk) in vm:
            bad = touched & set(w)
            if bad:
                err(i, ins, f'touches {sorted(bad)[:4]} pending from vmem [{j}] {trace[j].text}')
        for (j, w, kk) in lg:
            bad = touched & set(w)
            if bad:
                err(i, ins, f'touches {sorted(bad)[:4]} pending from lgkm [{j}] {trace[j].text}')
        if k == 'mfma':
            for r in ins.meta['A'] + ins.meta['B']:
                if r in last_mfma_w:
                    p, ps, pi = last_mfma_w[r]
                    if pos - p - 1 < need_raw[ps]:
                        err(i, ins, f'mfma A/B reads {r} too early after mfma write', need_raw[ps] - (pos - p - 1))
            C = ins.meta['C']
            for r in C:
                if r in last_mfma_w:
                    p, ps, pi = last_mfma_w[r]
                    if pi.writes != C or ps != ins.meta['passes']:
                        if pos - p - 1 < need_cpart[ps]:
                            err(i, ins, f'mfma C partially overlaps recent D ({r})', need_cpart[ps] - (pos - p - 1))
            for r in ins.writes:
                if r in last_mfma_w and r not in C:
                    p, ps, pi = last_mfma_w[r]
                    if pos - p - 1 < need_raw[ps]:
                        err(i, ins, f'mfma WAW on {r} close to previous mfma write (conservative)', need_raw[ps] - (pos - p - 1))
            for r in ins.reads:
                if r in last_valu_w and pos - last_valu_w[r] - 1 < 2:
                    err(i, ins, f'mfma reads {r} <2 after valu write', 2 - (pos - last_valu_w[r] - 1))
        elif k in ('valu', 'trans', 'ds', 'vmem'):
            for r in touched:
                if r in last_mfma_w:
                    p, ps, pi = last_mfma_w[r]
                    if pos - p - 1 < need_raw[ps]:
                        err(i, ins, f'{k} touches {r} {pos-p-1} states after mfma write (need {need_raw[ps]})', need_raw[ps] - (pos - p - 1))
        if k in ('valu', 'trans'):
            for r in ins.writes:
                if r in last_mfma_c:
                    p, ps = last_mfma_c[r]
                    if pos - p - 1 < need_cwar[ps]:
                        err(i, ins, f'valu overwrites {r} read as srcC too early', need_cwar[ps] - (pos - p - 1))
                if r in last_store_data and pos - last_store_data[r] - 1 < 2:
                    err(i, ins, f'valu overwrites store data {r} too early', 2 - (pos - last_store_data[r] - 1))
            if k == 'valu':
                for r in ins.reads:
                    if r in last_trans_w and pos - last_trans_w[r] - 1 < 1:
                        err(i, ins, f'valu reads trans result {r} with 0 wait states', 1)
            if ins.meta.get('permlane') or ins.meta.get('dpp'):
                for r in ins.reads:
                    if r in last_valu_w and pos - last_valu_w[r] - 1 < 2:
                        err(i, ins, f'permlane/dpp reads {r} <2 after valu write', 2 - (pos - last_valu_w[r] - 1))
            if ins.meta.get('readlane'):
                for r in ins.reads:
                    if r in last_valu_w and pos - last_valu_w[r] - 1 < 1:
                        err(i, ins, f'readlane reads {r} <1 after valu write', 1)
            for r in ins.reads:
                if r in last_valu_sw and pos - last_valu_sw[r] - 1 < 2:
                    err(i, ins, f'valu reads sgpr {r} <2 after valu write', 2 - (pos - last_valu_sw[r] - 1))
            if ins.op.startswith('v_div_fmas') and 'vcc' in last_valu_sw and pos - last_valu_sw['vcc'] - 1 < 4:
                err(i, ins, 'div_fmas <4 after vcc write', 4 - (pos - last_valu_sw['vcc'] - 1))
        if k == 'ds' or (k == 'vmem' and not ins.meta.get('store')):
            for r in ins.writes:
                if r in last_store_data and pos - last_store_data[r] - 1 < 1:
                    err(i, ins, f'load overwrites store data {r} too early', 1)
        if k == 'vmem':
            for r in ins.reads:
                if r in last_valu_sw and pos - last_valu_sw[r] - 1 < 5:
                    err(i, ins, f'vmem reads sgpr {r} <5 after valu write', 5 - (pos - last_valu_sw[r] - 1))
            if ins.meta.get('dma') and pos - last_salu_m0 - 1 < 1:
                err(i, ins, 'dma <1 after m0 write', 1)
        if k in ('salu', 'branch'):
            for r in ins.reads:
                if r in last_valu_sw and pos - last_valu_sw[r] - 1 < 1 and r not in ('vcc', 'exec'):
                    err(i, ins, f'salu reads sgpr {r} right after valu write (pad)', 1)
        if k == 'mfma':
            for r in ins.writes:
                last_mfma_w[r] = (pos, ins.meta['passes'], ins)
                last_valu_w.pop(r, None)
            for r in ins.meta['C']:
                last_mfma_c[r] = (pos, ins.meta['passes'])
        elif k in ('valu', 'trans'):
            for r in ins.writes:
                last_mfma_w.pop(r, None)
                if r[0] in 'va' and r != 'vcc':
                    last_valu_w[r] = pos
                    if k == 'trans':
                        last_trans_w[r] = pos
                    else:
                        last_trans_w.pop(r, None)
                else:
                    last_valu_sw[r] = pos
        elif k == 'salu':
            for r in ins.writes:
                last_valu_sw.pop(r, None)
            if 'm0' in ins.writes:
                last_salu_m0 = pos
        if k == 'ds':
            lg.append((i, ins.writes, 'ds'))
            if len(lg) > 15 and not ins.meta.get('ovf_ok'):
                pass
            for r in ins.writes:
                last_mfma_w.pop(r, None)
                last_valu_w.pop(r, None)
        if k == 'smem':
            lg.append((i, ins.writes, 'smem'))
        if k == 'vmem':
            vm.append((i, ins.writes, 'vm'))
            if len(vm) > 63:
                err(i, ins, f'more than 63 vmem outstanding ({len(vm)})')
            if ins.meta.get('store') and ins.meta.get('wide'):
                for r in ins.meta['data']:
                    last_store_data[r] = pos
            for r in ins.writes:
                last_mfma_w.pop(r, None)
                last_valu_w.pop(r, None)
        pos += 1
    if verbose:
        for e in errs[:40]:
            print('HAZARD', e)
        if len(errs) > 40:
            print('...', len(errs) - 40, 'more')
    return errs


def autowait(trace, max_iter=20):
    for ins in trace:
        ins.meta.pop('pre', None)
    for _ in range(max_iter):
        changed = False
        vm = []
        lg = []
        for ins in trace:
            if ins.kind == 'label':
                continue
            pre = ins.meta.get('pre')

            def tighten(key, n):
                nonlocal pre, changed
                if pre is None:
                    pre = ins.meta['pre'] = {}
                if key not in pre or pre[key] > n:
                    pre[key] = n
                    changed = True
            if pre:
                if 'vm' in pre:
                    del vm[:max(0, len(vm) - pre['vm'])]
                if 'lgkm' in pre:
                    del lg[:max(0, len(lg) - pre['lgkm'])]
            if ins.kind == 'wait':
                if ins.meta['vm'] is not None:
                    del vm[:max(0, len(vm) - ins.meta['vm'])]
                if ins.meta['lgkm'] is not None:
                    del lg[:max(0, len(lg) - ins.meta['lgkm'])]
                continue
            touched = set(ins.reads) | set(ins.writes)
            need = None
            for j in range(len(vm) - 1, -1, -1):
                if touched & vm[j][0] or (vm[j][1] is not None and vm[j][1] in ins.meta.get('wait_tags', ())):
                    need = len(vm) - 1 - j
                    break
            if need is not None:
                tighten('vm', need)
                del vm[:len(vm) - need]
            need = None
            for j in range(len(lg) - 1, -1, -1):
                if touched & lg[j][0]:
                    need = len(lg) - 1 - j
                    break
            if need is not None:
                if any(x[1] == 'smem' for x in lg):
                    need = 0
                need = min(need, 15)
                tighten('lgkm', need)
                del lg[:len(lg) - need]
            if ins.meta.get('wait_lgkm0') and lg:
                tighten('lgkm', 0)
                lg = []
            if ins.kind == 'vmem':
                vm.append((set(ins.writes), ins.meta.get('tag')))
            elif ins.kind == 'ds':
                lg.append((set(ins.writes), 'ds'))
            elif ins.kind == 'smem':
                lg.append((set(ins.writes), 'smem'))
        if not changed:
            return
    raise RuntimeError('autowait did not converge')


def wait_text(pre):
    s = 's_waitcnt'
    if 'vm' in pre:
        s += f" vmcnt({pre['vm']})"
    if 'lgkm' in pre:
        s += f" lgkmcnt({pre['lgkm']})"
    return s


def expand(trace):
    out = []
    for ins in trace:
        pre = ins.meta.get('pre')
        if pre:
            out.append(Ins(wait_text(pre)))
        if ins.meta.get('nop'):
            out.append(Ins(f"s_nop {ins.meta['nop'] - 1}"))
        if ins.kind != 'autowait':
            out.append(ins)
    return out


def render(ins_list):
    out = []
    for i in ins_list:
        pre = i.meta.get('pre')
        if pre:
            out.append(' ' + wait_text(pre))
        if i.meta.get('nop'):
            out.append(f" s_nop {i.meta['nop'] - 1}")
        if i.kind == 'autowait':
            continue
        out.append(i.text if i.kind == 'label' else ' ' + i.text)
    return '\n'.join(out) + '\n'


def I(text, **meta):
    return Ins(text, **meta)


def weave(p, mfmas, gaps):
    for i, m in enumerate(mfmas):
        p.add(m)
        for f in gaps[i] if i < len(gaps) else []:
            p.add(f)


class Item:
    def __init__(self, ins, pre=(), nb=0):
        self.ins = ins if isinstance(ins, Ins) else Ins(ins)
        self.pre = [x if isinstance(x, Ins) else Ins(x) for x in pre]
        self.nb = nb
        k = self.ins.kind
        self.cost = 2 if k == 'trans' else (0 if k in ('salu', 'nop', 'barrier', 'wait', 'autowait') else 1)
        self.first = k in ('ds', 'vmem')
        self.reads = set(self.ins.reads)
        self.writes = set(self.ins.writes)
        for x in self.pre:
            self.reads |= set(x.reads)
            self.writes |= set(x.writes)


def gap_used(g):
    return sum(2 if x.kind == 'trans' else (1 if x.kind in ('valu', 'ds', 'vmem') else 0) for x in g)


def fill(gaps, stream, start=0, end=None, look=14, lat=2, cap=2):
    end = len(gaps) if end is None else end
    pend = list(stream)
    placed_w = {}
    debt = 0.0
    for gi in range(start, end):
        g = gaps[gi]
        free_left = sum(max(0, cap - gap_used(gaps[j])) for j in range(gi, end))
        need = sum(x.cost for x in pend)
        left = end - gi
        extra = 0
        if need > free_left:
            debt += (need - free_left) / left
            while debt >= 1.0 - 1e-9:
                extra += 1
                debt -= 1.0
        if gi == end - 1:
            extra = 10 ** 6
        while pend:
            room = cap + extra - gap_used(g)
            pick = None
            cands = []
            blocked_r, blocked_w = set(), set()
            for j, it in enumerate(pend[:look]):
                ok = not (it.reads & blocked_w or it.writes & blocked_w or it.writes & blocked_r)
                if ok and it.nb > gi and gi != end - 1:
                    ok = False
                if ok and gi != end - 1:
                    if any(gi - placed_w.get(r, -99) < lat for r in it.reads if r[0] in 'va' and r != 'vcc'):
                        ok = False
                    if it.cost > room:
                        ok = False
                    if it.first and gap_used(g) > 0:
                        ok = False
                if ok:
                    cands.append(j)
                blocked_r |= it.reads
                blocked_w |= it.writes
            if cands:
                pick = cands[0]
                if gi == end - 1:
                    lastw = set()
                    for x in g[-2:]:
                        lastw |= set(x.writes)
                    good = [j for j in cands if not (pend[j].reads & lastw)]
                    if good:
                        pick = good[0]
                elif gap_used(g) == 0:
                    big = [j for j in cands if pend[j].first] or [j for j in cands if pend[j].cost == 2]
                    if big:
                        pick = big[0]
            if pick is None:
                break
            it = pend.pop(pick)
            g.extend(it.pre)
            g.append(it.ins)
            for r in it.writes:
                placed_w[r] = gi
    assert not pend


QUIET = [False]


def settle(traces, name, show=True):
    allins = [i for t in traces for i in t]
    autowait(allins)
    for _ in range(50):
        errs = []
        for t in traces:
            errs += check_trace(expand(t), name, verbose=False, fix=True)
        if not errs:
            break
        seen = set()
        applied = 0
        last = -10 ** 9
        for n, i in enumerate(allins):
            if id(i) in seen:
                continue
            seen.add(id(i))
            d = i.meta.pop('nop_new', 0)
            if d and n - last > 24:
                i.meta['nop'] = i.meta.get('nop', 0) + d
                applied += 1
                last = n
        if not applied:
            for e in errs[:40]:
                print('HAZARD', e)
            raise SystemExit(f'{name}: {len(errs)} unresolved hazards')
    else:
        raise SystemExit('settle did not converge')
    if show and not QUIET[0]:
        seen = set()
        for i in allins:
            if id(i) not in seen and i.meta.get('nop'):
                print(f"  [{name}] pad {i.meta['nop']} before: {i.text}")
            seen.add(id(i))
```

```python
from asmlib import *

KA_X, KA_K, KA_V, KA_WQ, KA_WO, KA_BX, KA_WG, KA_WU, KA_WD, KA_OUT, KA_DBG, KA_WS = [8 * i for i in range(12)]

XN_OFF = 0
XN_MB = 18 * 1024
XN_BYTES = 128 * XN_MB
HF_OFF = 0x400000
STEP = 128 * 1024
HF_BYTES = 144 * STEP
OF_OFF = 0x1800000
OF_BYTES = 128 * STEP

WF_OFF = 0x2A00000
WF_BYTES = 272 * 36864
FLAG_OFF = 0x2900000
FLAG_BYTES = 9216
PART_OFF = 0x3400000
PART_SLAB = 10240
PART_BYTES = 2 * 64 * 16 * PART_SLAB

X_BYTES = 2048 * 576 * 2
KV_HEAD = 2048 * 128 * 2
WQ_BYTES = 576 * 4096 * 2
WG_BYTES = 576 * 4608 * 2
WO_BYTES = 4096 * 576 * 2
WD_BYTES = 4608 * 576 * 2


def vr(b, n=1):
    return f'v{b}' if n == 1 else f'v[{b}:{b + n - 1}]'


def ar(b, n=1):
    return f'a{b}' if n == 1 else f'a[{b}:{b + n - 1}]'


def sr(b, n=1):
    return f's{b}' if n == 1 else f's[{b}:{b + n - 1}]'


def header(name):
    return (f'.globl {name}\n.p2align 8\n.type {name},@function\n{name}:\n')


def descriptor(name, vgpr, sgpr, accum):
    return (f'.amdhsa_kernel {name}\n'
            f'  .amdhsa_next_free_vgpr {vgpr}\n'
            f'  .amdhsa_next_free_sgpr {sgpr}\n'
            f'  .amdhsa_accum_offset {accum}\n'
            f'  .amdhsa_group_segment_fixed_size 0\n'
            f'  .amdhsa_kernarg_size 96\n'
            f'  .amdhsa_user_sgpr_count 2\n'
            f'  .amdhsa_user_sgpr_kernarg_segment_ptr 1\n'
            f'  .amdhsa_system_sgpr_workgroup_id_x 1\n'
            f'  .amdhsa_float_denorm_mode_32 3\n'
            f'.end_amdhsa_kernel\n')


def srd(p, d, base, off_sgpr=None, off_imm=0, nbytes=0, nbytes_minus_off=False):
    if off_imm:
        p(f's_add_u32 s{d}, s{base}, {off_imm}')
        p(f's_addc_u32 s{d + 1}, s{base + 1}, 0')
        if off_sgpr is not None:
            p(f's_add_u32 s{d}, s{d}, s{off_sgpr}')
            p(f's_addc_u32 s{d + 1}, s{d + 1}, 0')
    elif off_sgpr is not None:
        p(f's_add_u32 s{d}, s{base}, s{off_sgpr}')
        p(f's_addc_u32 s{d + 1}, s{base + 1}, 0')
    else:
        p(f's_mov_b32 s{d}, s{base}')
        p(f's_mov_b32 s{d + 1}, s{base + 1}')
    if nbytes_minus_off:
        p(f's_sub_u32 s{d + 2}, {nbytes}, s{off_sgpr}')
    else:
        p(f's_mov_b32 s{d + 2}, {nbytes}')
    p(f's_mov_b32 s{d + 3}, 0x20000')


def finish(p, trace, name):
    settle([trace], name)
    return render(p.ins)


STAMP_OFF = 0x6000000
class Stamps:
    def __init__(self, on, first_sgpr, nmax):
        self.on, self.base, self.n, self.nmax = on, first_sgpr, 0, nmax
        self.names = []
    def stamp(self, p, name):
        if not self.on:
            return
        assert self.n < self.nmax
        p('s_waitcnt lgkmcnt(0)')
        p('s_memtime s[100:101]')
        p('s_waitcnt lgkmcnt(0)')
        p(f'v_writelane_b32 v{self.base}, s100, {self.n}')
        p('s_memrealtime s[100:101]')
        p('s_waitcnt lgkmcnt(0)')
        p(f'v_writelane_b32 v{self.base + 1}, s100, {self.n}')
        self.n += 1
        self.names.append(name)
    def dump(self, p, region, t):
        if not self.on:
            return
        p(f's_load_dwordx2 s[96:97], s[0:1], {KA_WS}')
        p('s_waitcnt lgkmcnt(0)')
        p(f's_add_u32 s96, s96, {STAMP_OFF + region * 0x100000}')
        p('s_addc_u32 s97, s97, 0')
        p('s_mov_b32 s98, 0x100000')
        p('s_mov_b32 s99, 0x20000')
        p('s_lshl_b32 s100, s2, 11')
        p(f'v_lshlrev_b32 v{t}, 3, v0')
        p(f'buffer_store_dwordx2 v[{self.base}:{self.base + 1}], v{t}, s[96:99], s100 offen')
        p('s_waitcnt vmcnt(0)')
```

```python
from common import *
from sched import *

pX, pOUT, pDBG = 8, 12, 14
S_ACT, S_FLAG, S_X, S_OUT, S_PART, S_W = 16, 20, 24, 28, 40, 48
S_DBG = 44
sW = 52
fKQ, fRT, fCT, fT0, fT1, fT2, fT3 = 80, 81, 82, 83, 84, 85, 86
fABF, fABS, fWBF, fWBS, fWL, fODD, fG0, fG2 = 87, 88, 89, 90, 91, 92, 93, 94
fMS = 95
fSPIN, fOF, fTF = 97, 98, 99
sMASK, sNL2E = 73, 74
vLANE, vL16 = 1, 2
vA0, vA1, vA2, vB0, vB1, vXO, vL8 = 3, 4, 5, 6, 7, 8, 9
vT = 24
vFL = 28
vX = 10
vWF = 32
vACF = 80
vACS = 152
vE = 224
aACT = 128
aRF = 0
EP = 36864
LOOK = 3
NE = 17
FLAG_O = 8192
OPT = dict()


def mfma(d, a, b, c):
    return I(f'v_mfma_f32_16x16x32_bf16 {d}, {a}, {b}, {c}')


def acc(g, ms, ns):
    return (vACS if g else vACF) + (ms * 9 + ns) * 4


def act_reg(e, st, ms):
    return aACT + (e & 1) * 32 + (st * 2 + ms) * 4


def w_dma(e, sc):
    out = []
    base, el = (fWBF, e) if e < 9 else (fWBS, e - 9)
    for n in range(9):
        pre = [f's_add_u32 m0, s{fWL}, {(e & 3) * EP + (n // 4) * 4096}', f's_add_u32 s{fT3}, s{base}, {el * 4 * EP + (n // 4) * 4096}'] if n % 4 == 0 else []
        out.append(Item(I(f'buffer_load_dwordx4 v{vL16}, {sr(S_W, 4)}, s{fT3} offen offset:{1024 * (n % 4)}{sc} lds', tag=('FW', e)), pre=pre))
    return out


def act_loads(e, pair, sc):
    out = []
    base, el = (fABF, e) if e < 9 else (fABS, e - 9)
    for st in (2 * pair, 2 * pair + 1):
        for ms in range(2):
            pre = [f's_add_u32 s{fT0}, s{base}, {(4 * el + st) * STEP}'] if ms == 0 else []
            out.append(Item(f'buffer_load_dwordx4 {ar(act_reg(e, st, ms), 4)}, v{vB0 + ms}, {sr(S_ACT, 4)}, s{fT0} offen{sc}', pre=pre))
    return out


def early_setup():
    L = [f's_bfe_u32 s{fKQ}, s2, 0x20001', f's_and_b32 s{fT0}, s2, 1', f's_lshr_b32 s{fT1}, s2, 5',
         f's_lshl3_add_u32 s{fRT}, s{fT0}, s{fT1}', f's_bfe_u32 s{fCT}, s2, 0x20003',
         f's_lshr_b32 s{fT0}, s{fKQ}, 1', f's_lshl_b32 s{fT1}, s{fT0}, 10',
         f'v_add_u32 v{vB0}, s{fT1}, v{vL16}', f'v_xor_b32 v{vB1}, 1024, v{vB0}',
         f's_mul_i32 s{fABF}, s{fKQ}, {36 * STEP}', f's_mul_i32 s{fABS}, s{fKQ}, {32 * STEP}',
         f's_add_u32 s{fABS}, s{fABS}, {OF_OFF - HF_OFF}',
         f's_mul_i32 s{fWL}, s{sW}, 9216', f's_mul_i32 s{fT0}, s{fCT}, 9216', f's_mul_i32 s{fT1}, s{sW}, {EP}',
         f's_add_u32 s{fT0}, s{fT0}, s{fT1}', f's_mul_i32 s{fWBF}, s{fKQ}, {36 * EP}', f's_add_u32 s{fWBF}, s{fWBF}, s{fT0}',
         f's_mul_i32 s{fWBS}, s{fKQ}, {32 * EP}', f's_add_u32 s{fWBS}, s{fWBS}, s{fT0}', f's_add_u32 s{fWBS}, s{fWBS}, {144 * EP}',
         f's_lshl_b32 s{fT0}, s{fRT}, 3', f's_lshl1_add_u32 s{fT0}, s{sW}, s{fT0}', f's_lshl_b32 s{fT1}, s{fT0}, 10',
         f's_sub_u32 s{S_ACT + 2}, {OF_OFF + OF_BYTES - HF_OFF}, s{fT1}', f's_mov_b32 s{S_ACT + 3}, 0x20000',
         f's_sub_u32 s{fT1}, {WF_OFF - HF_OFF}, s{fT1}']
    glued = [f's_sub_u32 s{S_ACT}, s{S_W}, s{fT1}', f's_subb_u32 s{S_ACT + 1}, s{S_W + 1}, 0']
    return L, glued


def flag_setup():
    return [f's_sub_u32 s{S_FLAG}, s{S_W}, {WF_OFF - FLAG_OFF}', f's_subb_u32 s{S_FLAG + 1}, s{S_W + 1}, 0',
            f's_mov_b32 s{S_FLAG + 2}, {FLAG_BYTES}', f's_mov_b32 s{S_FLAG + 3}, 0x20000']


def late_setup(p):
    t0, t1 = vT, vT + 1
    p(f's_lshr_b32 s{fT0}, s{fKQ}, 1')
    p(f's_mul_i32 s{fMS}, s{fT0}, 5120')
    p(f's_sub_u32 s{fMS + 1}, 5120, s{fMS}')
    p(f's_and_b32 s{fODD}, s{fKQ}, 1')
    p(f's_mul_i32 s{fG0}, s{fODD}, 3072')
    p(f's_sub_u32 s{fG2}, 3072, s{fG0}')
    p(f's_lshl2_add_u32 s{fT0}, s{fRT}, s{fCT}')
    p(f's_lshl_b32 s{fTF}, s{fT0}, 7')
    p(f's_lshl2_add_u32 s{fT0}, s{fT0}, s{fKQ}')
    p(f's_lshl2_add_u32 s{fT0}, s{fT0}, s{sW}')
    p(f's_mul_i32 s{fT0}, s{fT0}, {PART_SLAB}')
    p(f's_add_u32 s{fMS}, s{fMS}, s{fT0}')
    p(f's_add_u32 s{fMS + 1}, s{fMS + 1}, s{fT0}')
    p(f's_lshr_b32 s{fT0}, s{fRT}, 1')
    p(f's_lshl_b32 s{fT0}, s{fT0}, 7')
    p(f's_lshl_b32 s{fT1}, s{fKQ}, 5')
    p(f's_add_u32 s{fOF}, s{fT0}, s{fT1}')
    p(f's_add_u32 s{fOF}, s{fOF}, {FLAG_O}')
    srd(p, S_PART, S_W, off_imm=PART_OFF - WF_OFF, nbytes=PART_BYTES)
    srd(p, S_X, pX, nbytes=X_BYTES)
    srd(p, S_OUT, pOUT, nbytes=X_BYTES)
    p(f's_lshl_b32 s{fT0}, s{fRT}, 7')
    p(f's_lshl_b32 s{fT1}, s{sW}, 5')
    p(f's_add_u32 s{fT0}, s{fT0}, s{fT1}')
    p(f's_lshr_b32 s{fT1}, s{fKQ}, 1')
    p(f's_lshl4_add_u32 s{fT0}, s{fT1}, s{fT0}')
    p(f'v_and_b32 v{t0}, 15, v{vLANE}')
    p(f'v_add_u32 v{t0}, s{fT0}, v{t0}')
    p(f'v_mul_u32_u24 v{t0}, 1152, v{t0}')
    p(f'v_lshrrev_b32 v{t1}, 4, v{vLANE}')
    p(f'v_lshl_add_u32 v{t0}, v{t1}, 3, v{t0}')
    p(f's_mul_i32 s{fT0}, s{fCT}, 288')
    p(f's_mul_i32 s{fT1}, s{fODD}, 160')
    p(f's_add_u32 s{fT0}, s{fT0}, s{fT1}')
    p(f'v_add_u32 v{vXO}, s{fT0}, v{t0}')
    p(f'v_lshlrev_b32 v{vL8}, 3, v{vLANE}')
    p(f'v_and_b32 v{vFL + 1}, 3, v{vLANE}')
    p(f'v_lshlrev_b32 v{vFL + 1}, 2, v{vFL + 1}')
    p(f's_mul_i32 s{fT1}, s{fODD}, 5120')
    p(f'v_add_u32 v{vA0}, s{fT1}, v{vL16}')
    p(f'v_mov_b32 v{vA1}, v{vL16}')
    p(f's_sub_u32 s{fT1}, 5120, s{fT1}')
    p(f'v_add_u32 v{vA2}, s{fT1}, v{vL16}')


def early_loads(sc):
    return w_dma(0, sc) + act_loads(0, 0, sc) + act_loads(0, 1, sc) + w_dma(1, sc) + act_loads(1, 0, sc)


def part_off(g):
    return g * (64 * 16 * PART_SLAB)


def publish(g):
    out = []
    for ms in (1, 0):
        for grp, slots_ in ((0, (0, 1)), (0, (2, 3)), (1, (4,)), (2, (5, 6)), (2, (7, 8))):
            if ms == 0 and grp == 0:
                continue
            r = vE if (ms == 0 and grp == 1) else acc(g, ms, slots_[0])
            for i, ns in enumerate(slots_):
                for dd in range(2):
                    out.append(Item(f'v_cvt_pk_bf16_f32 v{r + 2 * i + dd}, v{acc(g, ms, ns) + 2 * dd}, v{acc(g, ms, ns) + 2 * dd + 1}'))
            if grp == 1:
                out.append(Item(f'buffer_store_dwordx2 {vr(r, 2)}, v{vL8}, {sr(S_PART, 4)}, s{fT2} offen offset:2048 sc1',
                                pre=[f's_add_u32 s{fT2}, s{fMS + ms}, {part_off(g)}']))
            else:
                out.append(Item(f'buffer_store_dwordx4 {vr(r, 4)}, v{vL16}, {sr(S_PART, 4)}, s{fT2} offen offset:{1024 * (slots_[0] in (2, 7))} sc1',
                                pre=[f's_add_u32 s{fT2}, s{fMS + ms}, s{fG0 if grp == 0 else fG2}', f's_add_u32 s{fT2}, s{fT2}, {part_off(g)}']))
    return out


def flag_store(p, lab, back, pre, off):
    p(f'{lab}:')
    for l in pre:
        p(l)
    p(f'v_mov_b32 v{vT}, 1')
    p('s_mov_b64 exec, 1')
    p(f'buffer_store_dword v{vT}, off, {sr(S_FLAG, 4)}, s{fT1} offset:{off} sc1')
    p('s_mov_b64 exec, -1')
    p(f's_branch {back}')


def hook(lab):
    return [I(f's_cmp_eq_u32 s{sW}, 0'), I(f's_cbranch_scc1 {lab}'), I(f'{lab}_b:')]


POLLS = {
    'f': lambda: I(f'buffer_load_dword v{vFL}, v{vFL + 1}, {sr(S_FLAG, 4)}, s{fTF} offen sc1'),
    's': lambda: I(f'buffer_load_dword v{vFL}, v{vFL + 1}, {sr(S_FLAG, 4)}, s{fTF} offen offset:64 sc1'),
    'o': lambda: I(f'buffer_load_dword v{vFL}, v{vFL + 2}, {sr(S_FLAG, 4)}, s{fOF} offen sc1'),
    'a': lambda: I(f'buffer_load_dword v{vFL}, v{vFL + 2}, {sr(S_DBG, 4)}, 0 offen sc1'),
}


def test(k):
    return f'v_cmp_ne_u32 vcc, 32, v{vFL}' if k == 'a' else f'v_cmp_eq_u32 vcc, 0, v{vFL}'


def check(k, tag=''):
    return [I(test(k)), I(f's_cbranch_vccnz L_spin_{k}{tag}'), I(f'L_spin_{k}{tag}_b:')]


def spin(p, k, tag=''):
    lab = f'L_spin_{k}{tag}'
    p(f'{lab}:')
    p(f's_mov_b32 s{fSPIN}, 0')
    p(f'{lab}_l:')
    p.add(POLLS[k]())
    p(f's_add_u32 s{fSPIN}, s{fSPIN}, 1')
    p('s_waitcnt vmcnt(0)')
    p(test(k))
    p(f's_cmp_ge_u32 s{fSPIN}, 0x40000')
    p(f's_cbranch_scc1 {lab}_b')
    p(f's_cbranch_vccz {lab}_b')
    p('s_sleep 1')
    p(f's_branch {lab}_l')


def gather(g, base, rf):
    out = []
    for i in range(3):
        pre = [f's_xor_b32 s{fT1}, s{fKQ}, {i + 1}', f's_sub_u32 s{fT1}, s{fT1}, s{fKQ}', f's_mul_i32 s{fT1}, s{fT1}, {4 * PART_SLAB}',
               f's_add_u32 s{fT1}, s{fT1}, s{fMS}', f's_add_u32 s{fT1}, s{fT1}, {part_off(g)}', f's_add_u32 s{fT2}, s{fT1}, s{fG0}']
        r = base + i * 10
        out.append(Item(f'buffer_load_dwordx4 {rf(r, 4)}, v{vL16}, {sr(S_PART, 4)}, s{fT2} offen sc1', pre=pre))
        out.append(Item(f'buffer_load_dwordx4 {rf(r + 4, 4)}, v{vL16}, {sr(S_PART, 4)}, s{fT2} offen offset:1024 sc1'))
        out.append(Item(f'buffer_load_dwordx2 {rf(r + 8, 2)}, v{vL8}, {sr(S_PART, 4)}, s{fT1} offen offset:2048 sc1'))
    return out


def add_gathered(dst, base):
    out = []
    for i in range(3):
        for d in range(10):
            e = vE + 4 + (d % 4) * 2
            src = base + i * 10 + d
            out += [Item(f'v_lshlrev_b32 v{e}, 16, v{src}'), Item(f'v_and_b32 v{e + 1}, s{sMASK}, v{src}'),
                    Item(f'v_add_f32 v{dst + 2 * d}, v{dst + 2 * d}, v{e}'), Item(f'v_add_f32 v{dst + 2 * d + 1}, v{dst + 2 * d + 1}, v{e + 1}')]
    return out


def silu_items():
    out = []
    for ns in range(5):
        k, e = vACF + ns * 4, vE + 4 + (ns & 1) * 4
        for s in (f'v_mul_f32 v{{e}}, s{sNL2E}, v{{k}}', 'v_exp_f32 v{e}, v{e}', 'v_add_f32 v{e}, 1.0, v{e}',
                  'v_rcp_f32 v{e}, v{e}', 'v_mul_f32 v{k}, v{k}, v{e}'):
            out += [Item(s.format(e=e + r, k=k + r)) for r in range(4)]
    return out


def emit(p, items):
    for it in items:
        for x in it.pre + [it.ins]:
            p.add(x)


def fin_body(p, ST, fused):
    sc = ' sc1' if fused else ''
    mf, gaps = [], []
    head = [W(tags=[('FW', 0)]), I('s_barrier')]
    for e in range(NE):
        g = int(e >= 9)
        for u in range(18):
            pair, ns = divmod(u, 9)
            rb = vWF + (u % 6) * 8
            for ms in range(2):
                for k in range(2):
                    d = vr(acc(g, ms, ns), 4)
                    c = '0' if (e in (0, 9) and pair == 0 and k == 0) else d
                    mf.append(mfma(d, vr(rb + k * 4, 4), ar(act_reg(e, 2 * pair + k, ms), 4), c))
                    gaps.append([])
    for U in range(NE * 18):
        e, u = divmod(U, 18)
        pair, ns = divmod(u, 9)
        a = vA0 if ns < 4 else (vA1 if ns == 4 else vA2)
        rb = vWF + (u % 6) * 8
        rd = [I(f'ds_read_b128 {vr(rb + k * 4, 4)}, v{a} offset:{(2 * pair + k) * 9216 + (ns - 5 * (ns > 4)) * 1024}') for k in range(2)]
        if U < LOOK:
            head += rd
            continue
        at = (U - LOOK) * 4
        if u == 0:
            d = (EP if e & 3 else -3 * EP) & 0xffffffff
            gaps[at - 1] += [W(tags=[('FW', e)]), I('s_barrier'), I(f'v_add_u32 v{vA0}, {d:#x}, v{vA0}')]
        if u == 4 or u == 5:
            pass
        gaps[at].append(rd[0])
        gaps[at + 2].append(rd[1])
        regs = rd[0].writes + rd[1].writes
        if ns == 0:
            regs = regs + [f'a{act_reg(e, 2 * pair, 0) + k}' for k in range(16)]
        g = gaps[U * 4 - 1]
        if g and g[0].kind == 'autowait':
            g[0].reads += regs
        else:
            g.insert(0, W(regs=regs))
    for e in range(1, NE):
        d = (EP if e & 3 else -3 * EP) & 0xffffffff
        b = e * 72 - LOOK * 4
        gaps[b + 0].append(I(f'v_add_u32 v{vA1}, {d:#x}, v{vA1}'))
        gaps[b + 2].append(I(f'v_add_u32 v{vA2}, {d:#x}, v{vA2}'))
    for e in range(NE):
        b = e * 72
        vm, pos = [], []
        if e + 1 < NE:
            vm += act_loads(e + 1, 1, sc)
            pos += [b + 1, b + 3, b + 5, b + 7]
        if e + 2 < NE:
            if fused and e == 7:
                gaps[b - 40 + 1].append(POLLS['o']())
                gaps[b + 9] += check('o')
            vm += w_dma(e + 2, sc)
            pos += [b + 11 + 2 * n for n in range(9)]
            vm += act_loads(e + 2, 0, sc)
            pos += [b + 39, b + 41, b + 43, b + 45]
        put_vmem(gaps, vm, pos)
    if fused:
        gaps[2 * 72 - LOOK * 4 + 1] += hook('L_flag_o')
    fill(gaps, publish(0), start=9 * 72 + 30, end=10 * 72 + 40)
    gaps[12 * 72 - LOOK * 4 + 1] += hook('L_flag_f')
    b = 15 * 72
    gaps[b + 11].append(POLLS['f']())
    put_vmem(gaps, [Item(f'buffer_load_dwordx2 {vr(vX + 2 * i, 2)}, v{vXO}, {sr(S_X, 4)}, 0 offen offset:{32 * i}') for i in range(5)],
             [b + 13 + 2 * i for i in range(5)])
    gaps[b + 45] += check('f')
    vRF = vACF + 36
    put_vmem(gaps, gather(0, vRF, vr), [b + 53, b + 55, b + 57, b + 65, b + 67, b + 69, b + 77, b + 79, b + 81])
    st = [Item(W(regs=[f'v{vRF + k}' for k in range(10)]), nb=b + 100)] + add_gathered(vACF, vRF)
    for x in st[1:]:
        x.nb = b + 101
    fill(gaps, st, start=b + 100, end=NE * 72, look=8, lat=1)
    for x in head:
        p.add(x)
    ST.stamp(p, 'fin first')
    p.mark('fin0')
    weave(p, mf[:9 * 72], gaps[:9 * 72])
    ST.stamp(p, 'f loop')
    p.mark('fin1')
    weave(p, mf[9 * 72:], gaps[9 * 72:])
    p.mark('fin2')
    ST.stamp(p, 's loop')
    emit(p, publish(1))
    emit(p, silu_items())
    p('s_waitcnt vmcnt(0)')
    p('s_barrier')
    ST.stamp(p, 'published')
    for x in hook('L_flag_s'):
        p.add(x)
    p.add(POLLS['s']())
    for ns in range(5):
        for dd in range(2):
            p(f'v_lshlrev_b32 v{vWF + 4 * ns + 2 * dd}, 16, v{vX + 2 * ns + dd}')
            p(f'v_and_b32 v{vWF + 4 * ns + 2 * dd + 1}, s{sMASK}, v{vX + 2 * ns + dd}')
    for x in check('s'):
        p.add(x)
    vRS = vACS + 36
    emit(p, gather(1, vRS, vr))
    ST.stamp(p, 's flag')
    emit(p, add_gathered(vACS, vRS))
    p(f's_mul_i32 s{fT1}, s{fODD}, 0x7f000000')
    for ns in range(5):
        a, x, e = acc(1, 0, ns), vWF + 4 * ns, vE + (ns & 1) * 2
        for r in range(4):
            p(f'v_fmac_f32 v{x + r}, v{a + r}, v{vACF + ns * 4 + r}')
        for dd in range(2):
            p(f'v_cvt_pk_bf16_f32 v{e + dd}, v{x + 2 * dd}, v{x + 1 + 2 * dd}')
        so = f's{fT1}' if ns == 4 else '0'
        p(f'buffer_store_dwordx2 {vr(e, 2)}, v{vXO}, {sr(S_OUT, 4)}, {so} offen offset:{32 * ns}')
    ST.stamp(p, 'issued')

    def outline(p, o_pre=None):
        own = [f's_lshl2_add_u32 s{fT1}, s{fKQ}, s{fTF}']
        flag_store(p, 'L_flag_f', 'L_flag_f_b', own, 0)
        flag_store(p, 'L_flag_s', 'L_flag_s_b', own, 64)
        spin(p, 'f')
        spin(p, 's')
        if fused:
            flag_store(p, 'L_flag_o', 'L_flag_o_b', o_pre, 0)
            spin(p, 'o')
    return outline


def gen_fin(name='fin_kernel', stamps=False):
    p = Prog()
    ST = Stamps(stamps, 252, 32)
    p.mark('start')
    p('s_cmp_ge_u32 s2, 256')
    p('s_cbranch_scc1 L_fin_end')
    ST.stamp(p, 'start')
    p(f's_load_dwordx2 {sr(pX, 2)}, s[0:1], {KA_X}')
    p(f's_load_dwordx2 {sr(pOUT, 2)}, s[0:1], {KA_OUT}')
    p(f's_load_dwordx2 s[6:7], s[0:1], {KA_WS}')
    p('v_lshrrev_b32 v2, 6, v0')
    p(f'v_and_b32 v{vLANE}, 63, v0')
    p(f'v_readfirstlane_b32 s{sW}, v2')
    p(f'v_lshlrev_b32 v{vL16}, 4, v{vLANE}')
    a, b = early_setup()
    for l in a:
        p(l)
    p('s_waitcnt lgkmcnt(0)')
    srd(p, S_W, 6, off_imm=WF_OFF, nbytes=WF_BYTES)
    for l in b:
        p(l)
    ld = early_loads('')
    emit(p, ld[:17])
    for l in flag_setup():
        p(l)
    late_setup(p)
    p(f's_mov_b32 s{sNL2E}, 0xbfb8aa3b')
    p(f's_mov_b32 s{sMASK}, 0xffff0000')
    emit(p, ld[17:])
    outline = fin_body(p, ST, False)
    if stamps:
        p('s_waitcnt vmcnt(0)')
    ST.stamp(p, 'stores done')
    ST.dump(p, 1, vT)
    p('L_fin_end:')
    p('s_endpgm')
    p.mark('fin')
    outline(p)
    S = p.seg
    settle([S('start', 'fin')], name)
    if not QUIET[0]:
        estimate(S('fin0', 'fin1'), 'f')
        estimate(S('fin1', 'fin2'), 's')
    return header(name) + render(p.ins), descriptor(name, 448, 102, 256), ST.names
```

```python
from common import *
from sched import *
import sched
import k_fin5 as F

S_FO, S_XN, S_WG, S_WU, S_WQ, S_K, S_V, S_HF, S_OF, S_WX, S_FD, S_WF, S_F2 = 4, 8, 12, 16, 20, 24, 28, 32, 36, 40, 44, 48, 92
sW, sH, sRB, sT0, sT1, sT2, sOFF, sST = 52, 53, 54, 55, 56, 57, 58, 59
sXq, sHq, sXS = 60, 64, 68
sLW, sLX, sLK, sMASK, sNL2E, sSCALE, sTILE, sCNT, sBIG, sFL = 70, 71, 72, 73, 74, 75, 76, 77, 78, 79
sRW = 80
sRX = 86
sFS0, sFD0, sFS2, sFD2 = 96, 97, 98, 99
vLANE, vL16, vWG, vWX, vWQ = 1, 2, 3, 4, 5
vA = 6
vTMP = 10
vWF = 24
vXNV = 48
vSG = 80
vACC0, vACC1 = 112, 176
vWF2 = 240
vKD, vVD = 240, 244
vS = 112
vP = 144
vNEGM = 208
vVA = 224
vKA = 232
vL = 236
vRL = 246
aO, aK, aV = 0, 128, 160

aONE, aLS = 192, 196
vFD, vFA, vFZ = 254, 255, 11
OPT = dict(cpf=True, nt=True, rot=True, kvwrap=False, fmt=True, sc1=False, fused=True)
RING0, SLOT = 40960, 24576
CH = 12288


def slot_base(e):
    return RING0 + SLOT * ((e + 4) % 5)


def xn_reg(qb, ks):
    i = ks * 4 + qb
    return vr(vXNV + 4 * (i - 64), 4) if i >= 64 else ar(4 * i, 4)


def q_reg(ks, qb):
    return vr((vSG if ks < 2 else vXNV) + ((ks & 1) * 4 + qb) * 4, 4)


def q_base(ks, qb):
    return (vSG if ks < 2 else vXNV) + ((ks & 1) * 4 + qb) * 4


def mfma(d, a, b, c):
    return I(f'v_mfma_f32_16x16x32_bf16 {d}, {a}, {b}, {c}')


def NT():
    return ' nt' if OPT['nt'] else ''


PASSES = ['G', 'U', 'G', 'U', 'X', 'Q', 'Q']


def w_dma(c):
    ps, cc = divmod(c, 6)
    kind = PASSES[ps]
    e = c // 2
    lds = slot_base(e) + (c & 1) * CH
    out = []
    for i in range(3):
        if kind in 'GU':
            srd_, vo, sl = (S_WG if kind == 'G' else S_WU), vWG, sLW
            so = i * 32 * 9216 + (ps // 2) * 128
            l = lds + i * 4096
        elif kind == 'Q':
            srd_, vo, sl = S_WQ, vWQ, sLW
            so = i * 32 * 8192 + (ps - 5) * 128
            l = lds + i * 4096
        else:
            srd_, vo, sl = S_WX, vWX, sLX
            so = i * 16 * 9216
            l = lds + i * 1024
        pre = [f's_add_u32 m0, s{sl}, {l}', f's_add_u32 s{sOFF}, s{sRW + cc}, {so}']
        if ps == 5 and i == 0:
            pre = [f's_mul_i32 s{sRW + cc}, s{sRX + cc}, 256'] + pre
        out.append(Item(I(f'buffer_load_dwordx4 v{vo}, {sr(srd_, 4)}, s{sOFF} offen{NT()} lds', tag=('W', e)), pre=pre))
    return out


def kv_dma(which, slot, tile=None):
    out = []
    base = (0 if which == 'K' else 65536) + slot * 16384
    for pc in range(4):
        pre = []
        so = sTILE if tile is None else sOFF
        if pc == 0:
            pre.append(f's_add_u32 m0, s{sLK}, {base}')
            if tile is not None:
                pre.append(f's_mov_b32 s{sOFF}, {(tile + (which == "V")) * 16384}')
        vo = vKD + pc if which == 'K' else vVD + (pc & 1)
        srd_ = S_K if which == 'K' else S_V
        out.append(Item(I(f'buffer_load_dwordx4 v{vo}, {sr(srd_, 4)}, s{so} offen offset:{1024 * pc}{NT()} lds',
                          tag=(which, slot)), pre=pre))
    return out


def xn_loads(c):
    out = []
    for qb in range(4):
        for kk in range(3):
            pre = [f's_add_u32 s{sT0}, s{sXq + qb}, s{sRX + c}'] if kk == 0 else []
            out.append(Item(I(f'buffer_load_dwordx4 {xn_reg(qb, 3 * c + kk)}, v{vL16}, {sr(S_XN, 4)}, s{sT0} offen offset:{1024 * kk}'),
                            pre=pre))
    return out


def emit_items(p, items):
    for it in items:
        for x in it.pre:
            p.add(x)
        p.add(it.ins)


def addr_gu(base):
    t0, t1, t2 = vTMP, vTMP + 1, vTMP + 2
    L = [f'v_lshrrev_b32 v{t0}, 4, v{vLANE}',
         f'v_bfe_u32 v{t1}, v{vLANE}, 2, 2',
         f'v_lshl_add_u32 v{t2}, v{t0}, 3, v{t1}',
         f'v_lshlrev_b32 v{t2}, 7, v{t2}',
         f'v_and_b32 v{t0}, 1, v{t0}',
         f'v_lshrrev_b32 v{t1}, 1, v{t1}',
         f'v_lshl_or_b32 v{t0}, v{t0}, 1, v{t1}',
         f'v_and_b32 v{t1}, 3, v{vLANE}',
         f'v_lshl_add_u32 v{t2}, v{t1}, 3, v{t2}',
         f'v_add_u32 v{t2}, {base}, v{t2}']
    for nb in range(4):
        L += [f'v_xor_b32 v{t1}, {nb}, v{t0}', f'v_lshl_add_u32 v{vA + nb}, v{t1}, 5, v{t2}']
    return L


def addr_x(base):
    t0, t1, t2 = vTMP, vTMP + 1, vTMP + 2
    L = [f'v_lshrrev_b32 v{t0}, 4, v{vLANE}',
         f'v_bfe_u32 v{t1}, v{vLANE}, 2, 2',
         f'v_lshl_add_u32 v{t2}, v{t0}, 3, v{t1}',
         f'v_lshlrev_b32 v{t2}, 6, v{t2}',
         f'v_and_b32 v{t0}, 1, v{t0}',
         f'v_and_b32 v{t1}, 3, v{vLANE}',
         f'v_lshl_add_u32 v{t2}, v{t1}, 3, v{t2}',
         f'v_add_u32 v{t2}, {base}, v{t2}']
    for nb in range(2):
        L += [f'v_xor_b32 v{t1}, {nb}, v{t0}', f'v_lshl_add_u32 v{vA + nb}, v{t1}, 5, v{t2}']
    return L


def addr_q(base):
    t0, t1, t2 = vTMP, vTMP + 1, vTMP + 2
    L = [f'v_lshrrev_b32 v{t0}, 4, v{vLANE}',
         f'v_bfe_u32 v{t1}, v{vLANE}, 2, 2',
         f'v_lshl_add_u32 v{t2}, v{t0}, 3, v{t1}',
         f'v_lshlrev_b32 v{t2}, 7, v{t2}',
         f'v_add_u32 v{t2}, {base}, v{t2}',
         f'v_and_b32 v{t0}, 1, v{t0}',
         f'v_lshrrev_b32 v{t1}, 1, v{t1}',
         f'v_lshl_or_b32 v{t0}, v{t0}, 1, v{t1}',
         f'v_lshlrev_b32 v{t0}, 1, v{t0}',
         f'v_and_b32 v{t1}, 3, v{vLANE}',
         f'v_xor_b32 v{t0}, v{t0}, v{t1}',
         f'v_lshl_add_u32 v{vA}, v{t0}, 4, v{t2}',
         f'v_xor_b32 v{t0}, 4, v{t0}',
         f'v_lshl_add_u32 v{vA + 1}, v{t0}, 4, v{t2}']
    return L


def kv_dma_addr():
    t0, t1, t2 = vTMP + 3, vTMP + 4, vTMP + 5
    L = [f'v_lshrrev_b32 v{t0}, 4, v{vLANE}',
         f'v_and_b32 v{t1}, 15, v{vLANE}',
         f'v_lshlrev_b32 v{t2}, 8, v{t0}',
         f'v_add_u32 v{t2}, s{sLK}, v{t2}']
    for pc in range(4):
        L += [f'v_or_b32 v{vKD + pc}, {4 * pc}, v{t0}', f'v_xor_b32 v{vKD + pc}, v{vKD + pc}, v{t1}',
              f'v_lshl_add_u32 v{vKD + pc}, v{vKD + pc}, 4, v{t2}']
    for pc in range(2):
        L += [f'v_or_b32 v{vVD + pc}, {4 * pc}, v{t0}', f'v_lshlrev_b32 v{vVD + pc}, 1, v{vVD + pc}',
              f'v_xor_b32 v{vVD + pc}, v{vVD + pc}, v{t1}', f'v_lshl_add_u32 v{vVD + pc}, v{vVD + pc}, 4, v{t2}']
    return L


def kv_read_addr(vbase=65536):
    t0, t1, t2 = vTMP + 3, vTMP + 4, vTMP + 5
    L = [f'v_lshrrev_b32 v{t0}, 4, v{vLANE}',
         f'v_and_b32 v{t1}, 15, v{vLANE}',
         f'v_lshlrev_b32 v{t2}, 8, v{t1}',
         f'v_xor_b32 v{t1}, v{t0}, v{t1}']
    for ks in range(4):
        L += [f'v_xor_b32 v{vKA + ks}, {4 * ks}, v{t1}', f'v_lshl_add_u32 v{vKA + ks}, v{vKA + ks}, 4, v{t2}']
    L += [f'v_lshrrev_b32 v{t0}, 2, v{vLANE}',
          f'v_and_b32 v{t1}, 3, v{vLANE}',
          f'v_lshlrev_b32 v{t1}, 3, v{t1}',
          f'v_lshl_add_u32 v{t2}, v{t0}, 8, v{t1}',
          f'v_add_u32 v{t2}, {vbase}, v{t2}',
          f'v_and_b32 v{t0}, 7, v{t0}']
    for db in range(8):
        L += [f'v_xor_b32 v{vVA + db}, {db}, v{t0}', f'v_lshl_add_u32 v{vVA + db}, v{vVA + db}, 5, v{t2}']
    return L


def tile(acc, nb, qb, nq=4):
    return acc + (nb * nq + qb) * 4


def silu_ops(g, t0, t1):
    return [f'v_mul_f32 v{t0}, s{sNL2E}, v{g}', f'v_exp_f32 v{t0}, v{t0}', f'v_add_f32 v{t0}, 1.0, v{t0}',
            f'v_rcp_f32 v{t0}, v{t0}', f'v_mul_f32 v{g}, v{g}, v{t0}']


def stream_silu(acc):
    out = []
    for j in range(2):
        for qb in range(4):
            for half in range(2):
                tb = tile(acc, 2 * j + half, qb)
                tmp = vTMP + 6 + 4 * (half & 1)
                st = [silu_ops(tb + r, tmp + r, None) for r in range(4)]
                for s in range(5):
                    for r in range(4):
                        out.append(Item(st[r][s]))
                sg = vSG + (j * 4 + qb) * 4 + 2 * half
                out.append(Item(f'v_cvt_pk_bf16_f32 v{sg}, v{tb}, v{tb + 1}'))
                out.append(Item(f'v_cvt_pk_bf16_f32 v{sg + 1}, v{tb + 2}, v{tb + 3}'))
    return out


def stream_finish_h(acc, pair):
    out = []
    n = 0
    for j in range(2):
        for qb in range(4):
            sg = vSG + (j * 4 + qb) * 4
            for half in range(2):
                tb = tile(acc, 2 * j + half, qb)
                tmp = vTMP + 6 + 4 * (n & 1)
                n += 1
                for dd in range(2):
                    out.append(Item(f'v_lshlrev_b32 v{tmp + 2 * dd}, 16, v{sg + 2 * half + dd}'))
                    out.append(Item(f'v_and_b32 v{tmp + 2 * dd + 1}, s{sMASK}, v{sg + 2 * half + dd}'))
                for r in range(4):
                    out.append(Item(f'v_mul_f32 v{tb + r}, v{tb + r}, v{tmp + r}'))
                for dd in range(2):
                    out.append(Item(f'v_cvt_pk_bf16_f32 v{sg + 2 * half + dd}, v{tb + 2 * dd}, v{tb + 2 * dd + 1}'))
            out.append(Item(f'buffer_store_dwordx4 {vr(sg, 4)}, v{vL16}, {sr(S_HF, 4)}, s{sST} offen{SC1()}',
                            pre=[f's_add_u32 s{sST}, s{sHq + qb}, {(2 * pair + j) * STEP}']))
    return out


def stream_x_epi(acc):
    out = []
    for qb in range(2):
        dst = vSG + qb * 4
        for half in range(2):
            tg = tile(acc, half, qb, 2)
            tu = tile(acc, 2 + half, qb, 2)
            tmp = vTMP + 6 + 4 * half
            st = [silu_ops(tg + r, tmp + r, None) + [f'v_mul_f32 v{tg + r}, v{tg + r}, v{tu + r}'] for r in range(4)]
            for s in range(6):
                for r in range(4):
                    out.append(Item(st[r][s]))
            for dd in range(2):
                out.append(Item(f'v_cvt_pk_bf16_f32 v{dst + 2 * half + dd}, v{tg + 2 * dd}, v{tg + 2 * dd + 1}'))
        out.append(Item(f'buffer_store_dwordx4 {vr(dst, 4)}, v{vL16}, {sr(S_HF, 4)}, s{sXS + qb} offen{SC1()}'))
    return out


def stream_q_epi(acc, ps, nbs=None):
    out = []
    for ksub in range(2):
        for half in range(2):
            for qb in range(4):
                tb = tile(acc, 2 * ksub + half, qb)
                nb = nbs[(ksub, half, qb)] if nbs else 0
                for r in range(4):
                    out.append(Item(f'v_mul_f32 v{tb + r}, s{sSCALE}, v{tb + r}', nb=nb))
                d = q_base(2 * ps + ksub, qb) + 2 * half
                nbw = nbs[('w', ksub, qb)] if nbs else 0
                for dd in range(2):
                    out.append(Item(f'v_cvt_pk_bf16_f32 v{d + dd}, v{tb + 2 * dd}, v{tb + 2 * dd + 1}', nb=max(nb, nbw)))
    return out


def SC1():
    return ' sc1' if (OPT['sc1'] or OPT['fused']) else ''


def fmt_dma(i):
    out = []
    for pc in range(4):
        pp = [f's_add_u32 m0, s{sFL}, {(i & 1) * 4096 + pc * 1024}', f's_add_u32 s{sOFF}, s{sFS2 if i == 2 else sFS0}, {pc * 9216}']
        out.append(Item(I(f'buffer_load_dwordx4 v{vFD}, {sr((S_FD, S_FO, S_F2)[i], 4)}, s{sOFF} offen{NT()} lds', tag=('F', i)), pre=pp))
    return out


def fmt_out(gaps, i, at):
    for nb in range(4):
        r = vWF + ((i * 4 + nb) % 6) * 4
        a = vTMP + 3 + (nb & 1)
        g = at + 6 * nb
        force(gaps, [Item(f'v_xor_b32 v{a}, {nb << 5}, v{vFA}')], [g])
        if nb == 0:
            force(gaps, [Item(W(tags=[('F', i)]))], [g + 2])
        rd = [Item(f'ds_read_b64_tr_b16 {vr(r + 2 * t, 2)}, v{a} offset:{(i & 1) * 4096 + t * 2048}') for t in range(2)]
        force(gaps, rd, [g + 2, g + 4])
        pre = [f's_add_u32 s{sFD0}, s{sFD0}, {144 * 36864}'] if (i == 1 and nb == 0) else []
        force(gaps, [Item(f'buffer_store_dwordx4 {vr(r, 4)}, v{vL16}, {sr(S_WF, 4)}, s{sFD2 if i == 2 else sFD0} offen offset:{nb * 1024}{SC1()}', pre=pre)], [g + 16])


def fmt_in(gaps, i, at):
    force(gaps, fmt_dma(i), [at + 2 * n for n in range(4)])


def k_reads(slot, kb, buf):
    return [I(f'ds_read_b128 {ar(aK + buf * 16 + ks * 4, 4)}, v{vKA + ks} offset:{slot * 16384 + kb * 4096}') for ks in range(4)]


def v_reads(slot, db, base, kks=(0, 1)):
    out = []
    for n, kk in enumerate(kks):
        for t in range(2):
            out.append(I(f'ds_read_b64_tr_b16 {ar(base + n * 4 + 2 * t, 2)}, v{vVA + db} offset:{slot * 16384 + kk * 8192 + t * 4096}'))
    return out


def qk_block(kb, c0=False):
    sb = vS + (kb & 1) * 16
    out = []
    for qb in range(4):
        for ks in range(4):
            d = vr(sb + qb * 4, 4)
            c = d if ks else ('0' if c0 else vr(vNEGM + qb * 4, 4))
            out.append(mfma(d, ar(aK + (kb & 1) * 16 + ks * 4, 4), q_reg(ks, qb), c))
    return out


def p_reg(buf, kk, qb):
    return vP + buf * 32 + (kk * 4 + qb) * 4


MS = (1, 3)
VS = (0, 2)
NMS = 2


def ones_mfma(pbuf, kk, qb, first=False):
    d = ar(aLS + (qb >> 1) * 4, 4)
    return mfma(d, ar(aONE, 4), vr(p_reg(pbuf, kk, qb), 4), '0' if first else d)


def pv_block(i, pbuf, first=False):
    out = []
    for db in (2 * i, 2 * i + 1):
        for qb in range(4):
            for kk in range(2):
                d = ar(aO + (db * 4 + qb) * 4, 4)
                c = '0' if (first and kk == 0) else d
                out.append(mfma(d, ar(aV + (db & 1) * 8 + kk * 4, 4), vr(p_reg(pbuf, kk, qb), 4), c))
    if i in (0, 2):
        out += [ones_mfma(pbuf, 0, i + 1, first), ones_mfma(pbuf, 1, i + 1)]
    return out


def sm_stream(kb, pbuf, sub=False, init=False):
    sb = vS + (kb & 1) * 16
    out = []
    for qb in range(4):
        for r in range(4):
            s = sb + qb * 4 + r
            if sub:
                out.append(Item(f'v_add_f32 v{s}, v{vNEGM + qb * 4}, v{s}'))
            out.append(Item(f'v_exp_f32 v{s}, v{s}'))
            if qb in VS:
                if init and r == 0:
                    out.append(Item(f'v_mov_b32 v{vL + qb}, v{s}'))
                else:
                    out.append(Item(f'v_add_f32 v{vL + qb}, v{vL + qb}, v{s}'))
            if r & 1:
                d = p_reg(pbuf, kb >> 1, qb) + (kb & 1) * 2 + (r >> 1)
                out.append(Item(f'v_cvt_pk_bf16_f32 v{d}, v{s - 1}, v{s}'))
    return out


def xlane(op, v, t):
    return [f'v_mov_b32 v{t}, v{v}', f'v_permlane16_swap_b32 v{t}, v{v}', f'{op} v{v}, v{v}, v{t}',
            f'v_mov_b32 v{t}, v{v}', f'v_permlane32_swap_b32 v{t}, v{v}', f'{op} v{v}, v{v}, v{t}']


BLK = [0, 34, 66, 100, 132]
PER = 132


def wr(ins_list):
    return [r for x in ins_list for r in x.writes]


def period_skeleton(T, first=False):
    mf, gaps = [], []
    ksl, vsl = (T + 1) & 3, T & 3
    dma = kv_dma('K', T & 3) + kv_dma('V', (T + 3) & 3)
    for i in range(4):
        mf += qk_block(i) + pv_block(i, T & 1, first)
        g = [[] for _ in range(BLK[i + 1] - BLK[i])]
        vo = v_reads(vsl, 2 * i + 1, aV + 8)
        for n in range(4):
            g[1 + 2 * n].append(vo[n])
        for n in range(2):
            it = dma[2 * i + n]
            g[8 + 2 * n][0:0] = it.pre
            g[9 + 2 * n].append(it.ins)
        if i < 3:
            g[15].append(W(lgkm0=True))
            kr = k_reads(ksl, i + 1, (i + 1) & 1)
            ve = v_reads(vsl, 2 * i + 2, aV)
        else:
            g[15] += [W(tags=[('K', (T + 2) & 3), ('V', (T + 1) & 3)], lgkm0=True), I('s_barrier')]
            g[12].append(I(f's_add_u32 s{sTILE}, s{sTILE}, {0 if OPT["kvwrap"] else 16384}'))
            kr = k_reads((T + 2) & 3, 0, 0)
            ve = v_reads((T + 1) & 3, 0, aV)
        for n in range(4):
            g[17 + 2 * n].append(kr[n])
            g[25 + 2 * n].append(ve[n])
        g[-1].insert(0, W(regs=wr(kr)))
        gaps += g
    return mf, gaps


def clone(ins):
    if ins.kind == 'autowait':
        return W(ins.reads, ins.meta['wait_tags'], ins.meta['wait_lgkm0'])
    m = {k: v for k, v in ins.meta.items() if k in ('tag', 'wait_tags', 'wait_lgkm0', 'own')}
    return Ins(ins.text, **m)


def place_softmax(G):
    n = len(G)
    plain = []
    for T in range(4):
        for kb in range(4):
            eg = [T * PER + BLK[kb] + k for k in range(16, 32, 2)] + [T * PER + BLK[kb + 1] + k for k in range(0, 16, 2)]
            at = {}
            k = 0
            for it in sm_stream(kb, (T + 1) & 1):
                it.ins.meta['own'] = (T, kb)
                if it.ins.kind == 'trans':
                    assert slots(G[eg[k] % n]) == 0
                    G[eg[k] % n].append(it.ins)
                    at[it.ins.writes[0]] = eg[k]
                    k += 1
                else:
                    plain.append((max(at[r] for r in it.ins.reads if r in at) + 2, it.ins, T, kb))
    cur = 0
    cut = next(k for k, e in enumerate(plain) if e[0] > BLK[1])
    plain = plain[cut:] + [(lo + n, x, T + 4, kb) for lo, x, T, kb in plain[:cut]]
    for lo, x, T, kb in plain:
        gi = max(lo, cur)
        while slots(G[gi % n] + [x]) > 2:
            gi += 1
        G[gi % n].append(x)
        cur = gi
        qb = (int(x.reads[-1][1:]) - vS) % 16 // 4
        lim = T * PER + (BLK[kb + 2] if kb < 2 else PER + BLK[kb - 2]) + 4 * qb
        if kb >= 2 and x.op.startswith('v_cvt'):
            lim = min(lim, (T + 1) * PER + 16 + 2 * qb - 1)
        assert gi < lim, (gi, lim, x.text)


def o_epi_items(j, tmpsets, nb=0):
    out = []
    for qb in range(4):
        t = tmpsets[(j * 4 + qb) % len(tmpsets)]
        for half in range(2):
            for r in range(4):
                out.append(Item(f'v_accvgpr_read_b32 v{t + 4 * half + r}, a{aO + ((2 * j + half) * 4 + qb) * 4 + r}', nb=nb))
        for r in range(8):
            out.append(Item(f'v_mul_f32 v{t + r}, v{t + r}, v{vRL + qb}'))
        for dd in range(4):
            out.append(Item(f'v_cvt_pk_bf16_f32 v{t + 8 + dd}, v{t + 2 * dd}, v{t + 2 * dd + 1}'))
        out.append(Item(f'buffer_store_dwordx4 {vr(t + 8, 4)}, v{vL16}, {sr(S_OF, 4)}, s{sST} offen{SC1()}',
                        pre=[f's_add_u32 s{sST}, s{sHq + qb}, {j * STEP}']))
    return out


DBG_SRD = [f's_mov_b32 s{F.S_DBG}, s{F.pDBG}', f's_mov_b32 s{F.S_DBG + 1}, s{F.pDBG + 1}',
           f's_mov_b32 s{F.S_DBG + 2}, 256', f's_mov_b32 s{F.S_DBG + 3}, 0x20000']


def setup(p, ST):
    p('s_cmp_ge_u32 s2, 256')
    p('s_cbranch_scc1 L_main_end')
    ST.stamp(p, 'start')
    p(f's_load_dwordx4 s[48:51], s[0:1], {KA_WG}')
    p(f's_load_dwordx2 s[46:47], s[0:1], {KA_WS}')
    p(f's_load_dwordx4 s[4:7], s[0:1], {KA_K}')
    p(f's_load_dwordx2 s[44:45], s[0:1], {KA_WQ}')
    p(f's_load_dwordx2 s[100:101], s[0:1], {KA_WO}')
    p(f's_load_dwordx2 s[92:93], s[0:1], {KA_WD}')
    p('v_lshrrev_b32 v2, 6, v0')
    p(f'v_and_b32 v{vLANE}, 63, v0')
    p(f'v_readfirstlane_b32 s{sW}, v2')
    p(f'v_lshlrev_b32 v{vL16}, 4, v{vLANE}')
    p(f's_and_b32 s{sT0}, s2, 7')
    p(f's_lshr_b32 s{sT1}, s2, 3')
    p(f's_and_b32 s{sRB}, s{sT1}, 7')
    p(f's_lshr_b32 s{sT1}, s{sT1}, 3')
    p(f's_lshl2_add_u32 s{sH}, s{sT0}, s{sT1}')
    p(f's_and_b32 s{sT2}, s{sH}, 2')
    for q in range(4):
        p(f's_xor_b32 s{sT0}, s{sT2}, {q}')
        p(f's_mul_i32 s{sXq + q}, s{sT0}, {XN_MB}')
    p(f's_mov_b32 s{sT0}, s{sRB}' if OPT['rot'] else f's_mov_b32 s{sT0}, 0')
    for c in range(6):
        if c:
            p(f's_add_u32 s{sT0}, s{sT0}, 1')
        p(f's_sub_u32 s{sT1}, s{sT0}, 6')
        p(f's_cmp_ge_u32 s{sT0}, 6')
        p(f's_cselect_b32 s{sT0}, s{sT1}, s{sT0}')
        p(f's_mul_i32 s{sRX + c}, s{sT0}, 3072')
        p(f's_mul_i32 s{sRW + c}, s{sT0}, {96 * 9216}')
    p(f's_lshl_b32 s{sLW}, s{sW}, 10')
    t0, t1, t2 = vTMP, vTMP + 1, vTMP + 2
    p(f'v_lshrrev_b32 v{t0}, 3, v{vLANE}')
    p(f'v_bfe_u32 v{t1}, v{vLANE}, 4, 1')
    p(f's_and_b32 s{sT0}, s{sW}, 1')
    p(f's_lshl_b32 s{sT1}, s{sT0}, 1')
    p(f'v_or_b32 v{t1}, s{sT1}, v{t1}')
    p(f'v_lshlrev_b32 v{t1}, 1, v{t1}')
    p(f'v_and_b32 v{t2}, 7, v{vLANE}')
    p(f'v_xor_b32 v{t1}, v{t1}, v{t2}')
    p(f'v_lshlrev_b32 v{t1}, 4, v{t1}')
    p(f's_lshl_b32 s{sT1}, s{sW}, 3')
    p(f'v_add_u32 v{t0}, s{sT1}, v{t0}')
    p(f'v_mul_u32_u24 v{vWG}, 9216, v{t0}')
    p(f'v_add_u32 v{vWG}, v{vWG}, v{t1}')
    p(f'v_lshl_add_u32 v{vWQ}, v{t0}, 13, v{t1}')
    p(f's_lshl_b32 s{sT0}, s{sH}, 8')
    p(f's_lshl_b32 s{sT1}, s{sRB}, 4')
    p(f's_lshl2_add_u32 s{sST}, s{sW}, s{sT1}')
    p(f's_mul_i32 s{sT2}, s{sST}, {XN_MB}')
    p('s_waitcnt lgkmcnt(0)')
    srd(p, S_WG, 48, off_sgpr=sT0, nbytes=WG_BYTES, nbytes_minus_off=True)
    srd(p, S_XN, 46, off_sgpr=sT2, off_imm=XN_OFF, nbytes=4 * XN_MB)
    emit_items(p, w_dma(0) + xn_loads(0) + w_dma(1))
    if OPT['cpf']:
        p('s_getpc_b64 s[16:17]')
        p('L_cpf:')
        p('s_mov_b32 s18, L_slow-L_cpf')
        p('s_mov_b32 s19, 0x20000')
        p(f's_lshr_b32 s{sT0}, s2, 3')
        p(f's_lshl2_add_u32 s{sT0}, s{sT0}, s{sW}')
        p(f's_mul_i32 s{sT0}, s{sT0}, 768')
        p(f'v_lshlrev_b32 v{t0}, 7, v{vLANE}')
        p('s_mov_b64 exec, 0x3f')
        p(f'buffer_load_dword v{vTMP + 12}, v{t0}, s[16:19], s{sT0} offen')
        p('s_mov_b64 exec, -1')
    p(f's_lshl_b32 s{sT0}, s{sH}, 8')
    srd(p, S_WU, 50, off_sgpr=sT0, nbytes=WG_BYTES, nbytes_minus_off=True)
    srd(p, S_WQ, 44, off_sgpr=sT0, nbytes=WQ_BYTES, nbytes_minus_off=True)
    p(f's_lshl_b32 s{sT2}, s{sST}, 10')
    srd(p, S_HF, 46, off_sgpr=sT2, off_imm=HF_OFF, nbytes=HF_BYTES, nbytes_minus_off=True)
    srd(p, S_OF, 46, off_sgpr=sT2, off_imm=OF_OFF, nbytes=OF_BYTES, nbytes_minus_off=True)
    p(f's_lshl_b32 s{sT2}, s{sH}, 19')
    srd(p, S_K, 4, off_sgpr=sT2, nbytes=KV_HEAD)
    p('s_sub_u32 s6, s6, 16384')
    p('s_subb_u32 s7, s7, 0')
    srd(p, S_V, 6, off_sgpr=sT2, nbytes=KV_HEAD + 16384)
    p(f's_lshr_b32 s{sT0}, s{sH}, 2')
    p(f's_and_b32 s{sT1}, s{sH}, 1')
    p(f's_lshl1_add_u32 s{sT0}, s{sT0}, s{sT1}')
    p(f's_lshl_b32 s{sT2}, s{sT0}, 17')
    p(f's_add_u32 s{sT2}, s{sT2}, {128 * STEP}')
    p(f's_and_b32 s{sT1}, s{sH}, 2')
    for q in range(4):
        p(f's_xor_b32 s{sOFF}, s{sT1}, {q}')
        p(f's_lshl_b32 s{sOFF}, s{sOFF}, 10')
        if q < 2:
            p(f's_add_u32 s{sXS + q}, s{sT2}, s{sOFF}')
        p(f's_lshl_b32 s{sHq + q}, s{sH}, 19')
        p(f's_add_u32 s{sHq + q}, s{sHq + q}, s{sOFF}')
    p(f's_lshl_b32 s{sT0}, s{sT0}, 6')
    p(f's_add_u32 s{sT0}, s{sT0}, 8192')
    p(f's_cmp_ge_u32 s{sW}, 2')
    p('s_cselect_b64 s[44:45], s[50:51], s[48:49]')
    srd(p, S_WX, 44, off_sgpr=sT0, nbytes=WG_BYTES, nbytes_minus_off=True)
    srd(p, S_WF, 46, off_imm=WF_OFF, nbytes=WF_BYTES)
    srd(p, S_FD, 92, nbytes=WD_BYTES)
    srd(p, S_FO, 100, nbytes=WO_BYTES)
    p(f's_lshl2_add_u32 s{sT0}, s2, s{sW}')
    for fs, fd in ((sFS0, sFD0), (sFS2, sFD2)):
        if fs == sFS2:
            p(f's_cmp_ge_u32 s{sT0}, 272')
            p(f's_cselect_b64 {sr(S_F2, 2)}, s[100:101], s[92:93]')
            p(f's_mov_b32 s{S_F2 + 2}, {WD_BYTES}')
            p(f's_cselect_b32 s{S_F2 + 2}, {WO_BYTES}, s{S_F2 + 2}')
            p(f's_mov_b32 s{S_F2 + 3}, 0x20000')
            p(f's_cselect_b32 s{sT2}, {144 * 36864}, 0')
            p(f's_cselect_b32 s{sT1}, 272, 0')
            p(f's_sub_u32 s{sT0}, s{sT0}, s{sT1}')
            p(f's_add_u32 s{sT0}, s{sT0}, 1024')
        p(f's_mul_i32 s{sT1}, s{sT0}, 7282')
        p(f's_lshr_b32 s{sT1}, s{sT1}, 16')
        p(f's_mul_i32 s{sOFF}, s{sT1}, 9')
        p(f's_sub_u32 s{sOFF}, s{sT0}, s{sOFF}')
        p(f's_mul_i32 s{sT1}, s{sT1}, 36864')
        p(f's_lshl_b32 s{fs}, s{sOFF}, 7')
        p(f's_add_u32 s{fs}, s{fs}, s{sT1}')
        p(f's_lshl_b32 s{fd}, s{sOFF}, 12')
        p(f's_add_u32 s{fd}, s{fd}, s{sT1}')
    p(f's_add_u32 s{sFD2}, s{sFD2}, s{sT2}')
    p(f's_lshl_b32 s{sFL}, s{sW}, 13')
    p(f's_add_u32 s{sFL}, s{sFL}, 131072')
    p(f's_cmp_eq_u32 s{sW}, 0')
    p('s_cselect_b32 s3, 6, 0')
    p(f's_lshl_b32 s{sLK}, s{sW}, 12')
    p(f's_mul_i32 s{sLX}, s{sW}, 3072')
    p(f's_mov_b32 s{sMASK}, 0xffff0000')
    p(f's_mov_b32 s{sNL2E}, 0xbfb8aa3b')
    p(f's_mov_b32 s{sSCALE}, 0x3e0293ee')
    p(f's_mov_b32 s{sBIG}, 0x53800000')
    p(f'v_lshrrev_b32 v{t0}, 2, v{vLANE}')
    p(f'v_bfe_u32 v{t1}, v{vLANE}, 5, 1')
    p(f'v_lshlrev_b32 v{t1}, 1, v{t1}')
    p(f'v_and_b32 v{t2}, 3, v{vLANE}')
    p(f'v_xor_b32 v{t1}, v{t1}, v{t2}')
    p(f's_and_b32 s{sT0}, s{sW}, 1')
    p(f's_mul_i32 s{sT1}, s{sT0}, 48')
    p(f'v_add_u32 v{t0}, s{sT1}, v{t0}')
    p(f'v_mul_u32_u24 v{vWX}, 9216, v{t0}')
    p(f'v_lshl_add_u32 v{vWX}, v{t1}, 4, v{vWX}')
    p(f'v_lshrrev_b32 v{t0}, 3, v{vLANE}')
    p(f'v_lshrrev_b32 v{t1}, 4, v{vLANE}')
    p(f'v_lshlrev_b32 v{t1}, 1, v{t1}')
    p(f'v_and_b32 v{t2}, 7, v{vLANE}')
    p(f'v_xor_b32 v{t1}, v{t1}, v{t2}')
    p(f'v_mul_u32_u24 v{t0}, 1152, v{t0}')
    p(f'v_lshl_add_u32 v{vFD}, v{t1}, 4, v{t0}')
    p(f'v_lshrrev_b32 v{t0}, 2, v{vLANE}')
    p(f'v_and_b32 v{t1}, 3, v{vLANE}')
    p(f'v_lshlrev_b32 v{t1}, 3, v{t1}')
    p(f'v_lshl_add_u32 v{t2}, v{t0}, 7, v{t1}')
    p(f'v_bfe_u32 v{t0}, v{vLANE}, 3, 2')
    p(f'v_lshl_add_u32 v{t2}, v{t0}, 5, v{t2}')
    p(f'v_add_u32 v{vFA}, s{sFL}, v{t2}')
    for l in addr_gu(slot_base(0)):
        p(l)
    emit_items(p, xn_loads(1))


def phase_ab(p, ST):
    units = [(c, nb) for c in range(42) for nb in range(4)]
    NU = len(units)
    isx = [PASSES[c // 6] == 'X' for c, nb in units]
    bufs = []
    for u in range(NU):
        busy = {bufs[u - 1]} if u else set()
        if u >= 2 and isx[u]:
            busy.add(bufs[u - 2])
        bufs.append([b for b in ((0, 1, 2) if isx[u] else (0, 1)) if b not in busy][0])
    accs = [vACC0, vACC1, vACC0, vACC1, vACC0, vACC1, vACC0]
    mf, gaps, ust = [], [], []
    for u, (c, nb) in enumerate(units):
        ps, cc = divmod(c, 6)
        nq = 2 if isx[u] else 4
        rb = (vWF, vWF + 12, vWF2)[bufs[u]]
        ust.append(len(gaps))
        for qb in range(nq):
            for kk in range(3):
                d = vr(tile(accs[ps], nb, qb, nq), 4)
                mf.append(mfma(d, vr(rb + kk * 4, 4), xn_reg(qb, 3 * cc + kk), '0' if (cc == 0 and kk == 0) else d))
                gaps.append([])
    ust.append(len(gaps))
    pst = [ust[ps * 24] for ps in range(8)]
    head = []
    win = slot_base(0)
    rpos = 0
    for u, (c, nb) in enumerate(units):
        kind = PASSES[c // 6]
        e = c // 2
        base = slot_base(e) + (c & 1) * CH
        at = None if u == 0 else max(rpos, ust[u - 2] if (isx[u] and isx[u - 1]) else ust[u - 1])
        fix = []
        if nb == 0:
            if c == 24:
                win = slot_base(e)
                fix = addr_x(win)
            elif c == 30:
                win = slot_base(e)
                fix = addr_q(win)
            elif not (win <= base and base + CH <= win + 65536):
                d = slot_base(e) - win
                win = slot_base(e)
                fix = [f'v_add_u32 v{vA + k}, {d & 0xffffffff:#x}, v{vA + k}' for k in range(4 if kind in 'GU' else 2)]
        if fix:
            lo = max(rpos, at - 6)
            if lo < at:
                fill(gaps, [Item(x) for x in fix], start=lo, end=at, lat=1)
            else:
                gaps[at - 1] += [I(x) for x in fix]
        if nb == 0 and (c & 1) == 0:
            tags = [('W', e)] + ([('K', 0), ('K', 1)] if e == 20 else [])
            if u == 0:
                head += [W(tags=tags), I('s_barrier')]
            else:
                g = gaps[at - 1]
                g[0:0] = [W(tags=tags), I('s_barrier')]
        rb = (vWF, vWF + 12, vWF2)[bufs[u]]
        for kk in range(3):
            for t in range(2):
                o = base - win
                if kind in 'GU':
                    a, o = vA + nb, o + kk * 4096 + t * 512
                elif kind == 'Q':
                    a, o = vA + (nb >> 1), o + kk * 4096 + t * 512 + (nb & 1) * 8
                else:
                    a, o = vA + (nb & 1), o + (nb >> 1) * 6144 + kk * 2048 + t * 256
                x = I(f'ds_read_b64_tr_b16 {vr(rb + kk * 4 + 2 * t, 2)}, v{a} offset:{o}')
                if u == 0:
                    head.append(x)
                else:
                    gaps[at].append(x)
                    at += 1
            if u:
                regs = [f'v{rb + kk * 4 + k}' for k in range(4)]
                g = gaps[ust[u] - 1 + kk]
                if g and g[0].kind == 'autowait':
                    g[0].reads += regs
                else:
                    g.insert(0, W(regs=regs))
        rpos = at if u else 0
    early = {0: [('w', 2), ('w', 3), ('x', 2)], 1: [('x', 3), ('w', 4), ('w', 5)], 2: [('x', 4), ('w', 6)],
             3: [('x', 5), ('w', 7)], 4: [('w', 8), ('w', 9)], 5: [('w', 10), ('w', 11)]}
    for c in range(42):
        vm = []
        if c < 6:
            for k, n in early[c]:
                vm += w_dma(n) if k == 'w' else xn_loads(n)
        elif c + 6 < 42:
            vm += w_dma(c + 6)
        kv = {34: ('K', 0), 35: ('K', 1), 36: ('K', 2), 37: ('K', 3), 38: ('V', 0), 40: ('V', 1), 41: ('V', 2)}.get(c)
        if kv:
            vm += kv_dma(kv[0], kv[1], kv[1])
        g0, lim = ust[4 * c], ust[4 * c + 3] - 1
        free = [gi for gi in range(g0, lim) if slots(gaps[gi]) == 0]
        if len(free) < len(vm):
            free = list(range(g0 + 1, lim))
        step = len(free) / max(1, len(vm))
        put_vmem(gaps, vm, [free[int(n * step + step * 0.5)] for n in range(len(vm))])
    for ps in range(1, 7):
        a, b = pst[ps] + 2, pst[ps + 1]
        if ps in (1, 3):
            st = stream_silu(vACC0)
        elif ps in (2, 4):
            st = stream_finish_h(vACC1, ps // 2 - 1)
        elif ps == 5:
            st = [Item(x) for x in kv_dma_addr()] + stream_x_epi(vACC0)
        else:
            st = stream_q_epi(vACC1, 0) + [Item(x) for x in kv_read_addr()]
            b -= 48
        fill(gaps, st, start=a, end=b)
    n = len(gaps)
    nbs = {}
    for ksub in range(2):
        for half in range(2):
            for qb in range(4):
                nbs[(ksub, half, qb)] = n - 48 + (2 * ksub + half) * 12 + qb * 3 + 2 + 6
        for qb in range(4):
            nbs[('w', ksub, qb)] = n
    ptrs = [I(f's_load_dwordx2 {sr(F.pX, 2)}, s[0:1], {KA_X}'), I(f's_load_dwordx4 {sr(F.pOUT, 4)}, s[0:1], {KA_OUT}')] if OPT['fused'] else [I('s_nop 1')]
    gaps.append(ptrs + k_reads(0, 0, 0) + k_reads(0, 1, 1))
    gaps[-1] += [I(f'v_accvgpr_write_b32 a{aONE + k}, v{vTMP + 3}') for k in range(4)]
    gaps[n - 50].append(I(f'v_mov_b32 v{vTMP + 3}, 0x3f803f80'))
    fill(gaps, stream_q_epi(vACC0, 1, nbs), start=n - 48, end=n + 1, look=200)
    for x in head:
        p.add(x)
    ST.stamp(p, 'first reads')
    for ps in range(7):
        p.mark(f'ps{ps}')
        weave(p, mf[pst[ps]:pst[ps + 1]], gaps[pst[ps]:pst[ps + 1]])
        if ps == 6:
            for x in gaps[-1]:
                p.add(x)
        ST.stamp(p, f'pass{ps}{PASSES[ps]}')
    p.mark('ps7')


def attention(p, ST, force_slow):
    p(f's_mov_b32 s{sTILE}, {4 * 16384}')
    if OPT['fused']:
        for l in F.flag_setup():
            p(l)
        p(f's_and_b32 s{sT0}, s2, 1')
        p(f's_lshr_b32 s{sT1}, s2, 3')
        p(f's_lshl_b32 s{sT0}, s{sT0}, 5')
        p(f's_add_u32 s{sT0}, s{sT0}, s{sT1}')
        p(f's_lshl_b32 s{sT0}, s{sT0}, 7')
        p(f's_bfe_u32 s{sT1}, s2, 0x20001')
        p(f's_lshl2_add_u32 s{sT0}, s{sT1}, s{sT0}')
        p(f'v_lshl_add_u32 v{vFZ}, v{vLANE}, 6, s{sT0}')
        p(f's_lshl_b32 s{sT0}, s{sRB}, 7')
        p(f's_lshl2_add_u32 s{sT0}, s{sH}, s{sT0}')
        p(f's_add_u32 s{sT0}, s{sT0}, {F.FLAG_O}')
        p(f'v_writelane_b32 v{vFZ}, s{sT0}, 2')
        p(f'v_mov_b32 v{vTMP}, 0')
        p('s_mov_b64 exec, 7')
        p(f'buffer_store_dword v{vTMP}, v{vFZ}, {sr(F.S_FLAG, 4)}, 0 offen sc1')
        p('s_mov_b64 exec, -1')
    p('s_nop 1')
    mf = qk_block(0, True) + qk_block(1, True) + qk_block(2) + qk_block(3)
    gaps = [[] for _ in range(64)]
    for n, x in enumerate(k_reads(0, 2, 0)):
        gaps[16 + n].append(x)
    for n, x in enumerate(k_reads(0, 3, 1)):
        gaps[32 + n].append(x)
    gaps[47] += [W(tags=[('K', 1), ('V', 0)], lgkm0=True), I('s_barrier')]
    kr = k_reads(1, 0, 0)
    for n, x in enumerate(kr):
        gaps[48 + n].append(x)
    for n, x in enumerate(v_reads(0, 0, aV)):
        gaps[52 + n].append(x)
    gaps[63].append(W(regs=wr(kr)))
    st = []
    for qb in range(4):
        s, m = vS + qb * 4, vNEGM + qb * 4
        nb = 4 * qb + 3 + 8
        st.append(Item(f'v_max3_f32 v{m}, v{s}, v{s + 1}, v{s + 2}', nb=nb))
        st.append(Item(f'v_max_f32 v{m}, v{m}, v{s + 3}', nb=nb))
    for k in range(6):
        for qb in range(4):
            st.append(Item(xlane('v_max_f32', vNEGM + qb * 4, vTMP + qb)[k]))
    for qb in range(4):
        st.append(Item(f'v_sub_f32 v{vNEGM + qb * 4}, 0, v{vNEGM + qb * 4}'))
    for r in range(1, 4):
        for qb in range(4):
            st.append(Item(f'v_mov_b32 v{vNEGM + qb * 4 + r}, v{vNEGM + qb * 4}'))
    st += sm_stream(0, 0, sub=True, init=True)
    fill(gaps, st, start=8, end=32)
    fill(gaps, sm_stream(1, 0, sub=True), start=32, end=47)
    fill(gaps, sm_stream(2, 0), start=48, end=64)
    weave(p, mf, gaps)
    ST.stamp(p, 'att prologue')

    sk = [period_skeleton(T) for T in range(4)]
    G = [g for T in range(4) for g in sk[T][1]]
    place_softmax(G)
    mf0, g0 = period_skeleton(0, first=True)
    for gi in range(PER):
        g0[gi] = [clone(x) for x in sk[0][1][gi] if x.meta.get('own') != (3, 3)]
    fill(g0, [Item(x.ins, nb=4) if n == 0 else x for n, x in enumerate(sm_stream(3, 0))], start=0, end=16)
    mf1, g1 = period_skeleton(1)
    g1 = [[clone(x) for x in g] for g in sk[1][1]]
    if OPT['fmt']:
        fmt_in(g0, 0, 0)
        fmt_in(g0, 1, BLK[1] + 14)
        fmt_out(g0, 0, BLK[2] + 14)
        fmt_in(g0, 2, BLK[3] + 18)
        fmt_out(g1, 1, 2)
        fmt_out(g1, 2, BLK[2])
    p.mark('t0')
    weave(p, mf0, g0)
    p.mark('t1')
    weave(p, mf1, g1)
    p(f's_mov_b32 s{sCNT}, 8')
    p('s_branch L_att_p2')
    p.mark('p0')
    p('.p2align 6')
    p('L_att_p0:')
    weave(p, *sk[0])
    p.mark('p1')
    weave(p, *sk[1])
    p.mark('p2')
    p('L_att_p2:')
    put_head(sk[2][1], I(f's_sub_u32 s{sCNT}, s{sCNT}, 1'), 120, 128)
    put_head(sk[2][1], I(f's_cmp_eq_u32 s{sCNT}, 0'), 129, 130)
    weave(p, *sk[2])
    p('s_cbranch_scc1 L_att_last')
    p.mark('p3')
    if OPT['fused']:
        put_head(sk[3][1], I(f's_cmp_eq_u32 s{sCNT}, s3'), BLK[3] + 16, BLK[3] + 16)
        sk[3][1][BLK[3] + 16] += [I('s_cbranch_scc1 L_flag_a'), I('L_flag_a_b:')]
    weave(p, *sk[3])
    p('s_branch L_att_p0')
    p.mark('last')
    p('L_att_last:')
    ST.stamp(p, 'att loop')
    rest = [Item(clone(x)) for g in sk[3][1] for x in g if x.meta.get('own') == (2, 3)]
    fr = {(0, 0): aV, (0, 1): aV + 4}
    order = [(db, 0) for db in range(8)] + [(db, 1) for db in range(8)]
    pool = list(range(176, 192, 4)) + list(range(204, 256, 4))
    for key in order:
        if key not in fr:
            fr[key] = pool.pop(0)
    mf = []
    for db, kk in order:
        if db == 0:
            mf += [ones_mfma(1, kk, qb) for qb in MS]
        for qb in range(4):
            d = ar(aO + (db * 4 + qb) * 4, 4)
            mf.append(mfma(d, ar(fr[(db, kk)], 4), vr(p_reg(1, kk, qb), 4), d))
    nm = len(mf)
    h = nm // 2
    gaps = [[] for _ in range(nm + 1)]
    rd = [x for key in order if key not in ((0, 0), (0, 1)) for x in v_reads(3, key[0], fr[key], (key[1],))]
    head = rd[:4]
    for n, x in enumerate(rd[4:]):
        gaps[2 * n].append(x)
    if OPT['fused']:
        head = [I('s_waitcnt vmcnt(0)'), I('s_barrier')] + head
        a, b = F.early_setup()
        lane = [f'v_and_b32 v{F.vFL + 2}, 7, v{vLANE}', f'v_lshlrev_b32 v{F.vFL + 2}, 2, v{F.vFL + 2}']
        head += [I(x) for x in DBG_SRD + lane] + [F.POLLS['a']()]
        fill(gaps, [Item(x) for x in a], start=0, end=h - 2, look=4, lat=1)
        gaps[h - 1] += [I(x) for x in b]
    st = list(rest)
    for k in range(6):
        for qb in VS:
            st.append(Item(xlane('v_add_f32', vL + qb, vTMP + qb)[k]))
    fill(gaps, st, start=0, end=h - 2)
    st = [Item(f'v_accvgpr_read_b32 v{vL + qb}, a{aLS + 4 * (qb >> 1)}', nb=h + NMS + 5) for qb in MS]
    st = [Item(f'v_rcp_f32 v{vRL + qb}, v{vL + qb}') for qb in VS] + st + [Item(f'v_rcp_f32 v{vRL + qb}, v{vL + qb}') for qb in MS]
    fill(gaps, st, start=h, end=h + 13)
    thr = '0' if force_slow else f's{sBIG}'
    for qb in range(4):
        gaps[h + 13] += [I(f'v_cmp_nge_f32 vcc, {thr}, v{vL + qb}'), I('s_cbranch_vccnz L_slow')]
    if OPT['fused']:
        gaps[h + 13] += F.check('a')
        ld = F.early_loads(' sc1')
        put_vmem(gaps, ld[:17], list(range(h + 15, h + 32)))
        gaps[nm] += [x for it in ld[17:] for x in it.pre + [it.ins]]
    tmpsets = [vS, vS + 12, vP, vP + 12]
    st = []
    for j in range(4):
        st += o_epi_items(j, tmpsets, nb=h + NMS + 8 * j + 7 + 6)
    fill(gaps, st, start=h + 14, end=nm + 1, look=30)
    for x in head:
        p.add(x)
    weave(p, mf, gaps[:nm])
    p('s_nop 4')
    for x in gaps[nm]:
        p.add(x)
    return tmpsets


def slow_path(p, tmpsets):
    p.mark('slow')
    p('L_slow:')
    p('s_waitcnt vmcnt(0) lgkmcnt(0)')
    p('s_nop 7')
    vM, vKG, vVG, vAL = vNEGM, vTMP + 4, vTMP + 5, vNEGM + 4
    for i in range(128):
        p(f'v_accvgpr_write_b32 a{aO + i}, 0')
    for qb in range(4):
        p(f'v_mov_b32 v{vM + qb}, 0xff800000')
        p(f'v_mov_b32 v{vL + qb}, 0')
    p(f'v_and_b32 v{vTMP}, 15, v{vLANE}')
    p(f'v_lshrrev_b32 v{vTMP + 1}, 4, v{vLANE}')
    p(f'v_lshlrev_b32 v{vKG}, 8, v{vTMP}')
    p(f'v_lshl_add_u32 v{vKG}, v{vTMP + 1}, 4, v{vKG}')
    p(f'v_subrev_u32 v{vVG}, s{sLK}, v{vVD}')
    p(f'v_subrev_u32 v{vVG + 1}, s{sLK}, v{vVD + 1}')
    p(f's_lshl_b32 s{sT0}, s{sW}, 13')
    p(f's_add_u32 s{sT0}, s{sT0}, 131072')
    p(f's_sub_u32 s{sT1}, s{sT0}, 65536')
    for db in range(8):
        p(f'v_add_u32 v{vVA + db}, s{sT1}, v{vVA + db}')
    p(f's_mov_b32 s{sTILE}, 0')
    p.mark('slow_loop')
    p('L_slow_loop:')
    for kb in range(2):
        p(f's_add_u32 s{sOFF}, s{sTILE}, {kb * 4096}')
        for ks in range(4):
            p(f'buffer_load_dwordx4 {ar(aK + kb * 16 + ks * 4, 4)}, v{vKG}, {sr(S_K, 4)}, s{sOFF} offen offset:{64 * ks}')
    for hf in range(2):
        p(f's_add_u32 m0, s{sT0}, {hf * 4096}')
        p(f's_add_u32 s{sOFF}, s{sTILE}, {hf * 4096 + 16384}')
        for pc in range(4):
            p(f'buffer_load_dwordx4 v{vVG + (pc & 1)}, {sr(S_V, 4)}, s{sOFF} offen offset:{1024 * pc} lds')
    p('s_waitcnt vmcnt(0)')
    for db in range(8):
        for t in range(2):
            p(f'ds_read_b64_tr_b16 {ar(aV + db * 4 + 2 * t, 2)}, v{vVA + db} offset:{t * 4096}')
    for x in qk_block(0, True) + qk_block(1, True):
        p.add(x)
    p('s_nop 7')
    for qb in range(4):
        s0, s1, t, t2 = vS + qb * 4, vS + 16 + qb * 4, vTMP, vTMP + 1
        p(f'v_max3_f32 v{t}, v{s0}, v{s0 + 1}, v{s0 + 2}')
        p(f'v_max3_f32 v{t}, v{t}, v{s0 + 3}, v{s1}')
        p(f'v_max3_f32 v{t}, v{t}, v{s1 + 1}, v{s1 + 2}')
        p(f'v_max3_f32 v{t}, v{t}, v{s1 + 3}, v{vM + qb}')
        for x in xlane('v_max_f32', t, t2):
            if 'permlane' in x:
                p('s_nop 1')
            p(x)
        p(f'v_sub_f32 v{vAL + qb}, v{vM + qb}, v{t}')
        p(f'v_exp_f32 v{vAL + qb}, v{vAL + qb}')
        p(f'v_mov_b32 v{vM + qb}, v{t}')
        p(f'v_mul_f32 v{vL + qb}, v{vL + qb}, v{vAL + qb}')
        for kb in range(2):
            for r in range(4):
                s = vS + kb * 16 + qb * 4 + r
                p(f'v_sub_f32 v{s}, v{s}, v{t}')
                p(f'v_exp_f32 v{s}, v{s}')
                p('s_nop 0')
                p(f'v_add_f32 v{vL + qb}, v{vL + qb}, v{s}')
            for dd in range(2):
                s = vS + kb * 16 + qb * 4 + 2 * dd
                p(f'v_cvt_pk_bf16_f32 v{p_reg(0, 0, qb) + kb * 2 + dd}, v{s}, v{s + 1}')
        for db in range(8):
            for r in range(4):
                a = aO + (db * 4 + qb) * 4 + r
                p(f'v_accvgpr_read_b32 v{t2}, a{a}')
                p(f'v_mul_f32 v{t2}, v{t2}, v{vAL + qb}')
                p(f'v_accvgpr_write_b32 a{a}, v{t2}')
    p('s_nop 1')
    for db in range(8):
        for qb in range(4):
            d = ar(aO + (db * 4 + qb) * 4, 4)
            p.add(mfma(d, ar(aV + db * 4, 4), vr(p_reg(0, 0, qb), 4), d))
    p('s_nop 7')
    p(f's_add_u32 s{sTILE}, s{sTILE}, 8192')
    p(f's_cmp_lt_u32 s{sTILE}, {KV_HEAD}')
    p('s_cbranch_scc1 L_slow_loop')
    p.mark('slow_end')
    for qb in range(4):
        for x in xlane('v_add_f32', vL + qb, vTMP):
            if 'permlane' in x:
                p('s_nop 1')
            p(x)
        p(f'v_rcp_f32 v{vRL + qb}, v{vL + qb}')
    p('s_nop 0')
    for j in range(4):
        emit_items(p, o_epi_items(j, tmpsets))
    if OPT['fused']:
        p.add(F.POLLS['a']())
        for x in F.check('a', '2'):
            p.add(x)
        emit_items(p, F.early_loads(' sc1'))
        p('s_waitcnt vmcnt(0)')
        p('s_branch L_fin_join')


def gen_main(name='main_kernel', force_slow=False, stamps=False):
    p = Prog()
    ST = Stamps(stamps, 252, 32)
    p.mark('start')
    setup(p, ST)
    phase_ab(p, ST)
    tmpsets = attention(p, ST, force_slow)
    ST.stamp(p, 'last issued')
    p.mark('att_end')
    if OPT['fused']:
        p('L_fin_join:')
        F.late_setup(p)
        outline = F.fin_body(p, ST, True)
    if stamps:
        p('s_waitcnt vmcnt(0)')
    ST.stamp(p, 'stores done')
    ST.dump(p, 0, vTMP)
    p.mark('end')
    p('L_main_end:')
    p('s_endpgm')
    slow_path(p, tmpsets)
    p('s_endpgm')
    p.mark('fin')
    if OPT['fused']:
        outline(p, [f's_lshl_b32 s{F.fT1}, s{sRB}, 7', f's_lshl2_add_u32 s{F.fT1}, s{sH}, s{F.fT1}', f's_add_u32 s{F.fT1}, s{F.fT1}, {F.FLAG_O}'])
        F.spin(p, 'a')
        F.spin(p, 'a', '2')
        p('L_flag_a:')
        for l in DBG_SRD:
            p(l)
        p(f's_and_b32 s{sT0}, s2, 7')
        p(f's_lshl_b32 s{sT0}, s{sT0}, 2')
        p(f'v_mov_b32 v{vTMP}, 1')
        p('s_mov_b64 exec, 1')
        p(f'buffer_atomic_add v{vTMP}, off, {sr(F.S_DBG, 4)}, s{sT0} sc1')
        p('s_mov_b64 exec, -1')
        p('s_branch L_flag_a_b')
    S = p.seg
    main = S('start', 'p0') + S('p2', 'last') + S('p0', 'last') + S('p0', 'p3') + S('last', 'end')
    settle([main, S('slow', 'slow_end') + S('slow_loop', 'fin')], name)
    if not QUIET[0]:
        for ps in range(7):
            estimate(S(f'ps{ps}', f'ps{ps + 1}'), f'pass {ps}')
        estimate(S('ps7', 't0'), 'att prologue')
        estimate(S('t0', 't1'), 'T0')
        estimate(S('t1', 'p0'), 'T1')
        for a, b in (('p0', 'p1'), ('p1', 'p2'), ('p2', 'p3'), ('p3', 'last'), ('last', 'att_end')) + ((('fin0', 'fin1'), ('fin1', 'fin2')) if OPT['fused'] else ()):
            estimate(S(a, b), a)
    return header(name) + render(p.ins), descriptor(name, 512, 102, 256), ST.names
```

```python
from asmlib import *

SCALAR = ('salu', 'wait', 'nop', 'barrier', 'branch', 'smem')


def W(regs=(), tags=(), lgkm0=False):
    i = Ins('s_nop 0')
    i.kind = 'autowait'
    i.reads = list(regs)
    i.meta = dict(wait_tags=list(tags), wait_lgkm0=lgkm0)
    return i


def is_scalar(x):
    return x.kind in SCALAR or x.kind == 'autowait'


def slots(g):
    n = 0
    seen_valu = False
    items = [x for x in g if x.kind != 'label']
    for k, x in enumerate(items):
        if is_scalar(x):
            n += 0 if k == 0 else 1
        elif x.kind == 'trans':
            n += 2
            seen_valu = True
        elif x.kind == 'vmem':
            n += 4 if x.meta.get('store') else 2
        elif x.kind == 'ds':
            n += 1 + (1 if seen_valu else 0)
        else:
            n += 1
            seen_valu = True
    if items and items[-1].kind == 'ds':
        n += 1
    return n


def head_free(g):
    return not g or not is_scalar(g[0])


def put_head(gaps, ins, lo, hi, latest=True, cyc=None):
    n = len(gaps)
    rng = range(hi, lo - 1, -1) if latest else range(lo, hi + 1)
    for gi in rng:
        g = gaps[gi % n]
        if head_free(g):
            g.insert(0, ins)
            return gi
    for gi in rng:
        g = gaps[gi % n]
        if slots(g) < 2:
            k = 1
            while k < len(g) and is_scalar(g[k]):
                k += 1
            g.insert(k, ins)
            return gi
    g = gaps[hi % n]
    k = 0
    while k < len(g) and is_scalar(g[k]):
        k += 1
    g.insert(k, ins)
    return hi


def put_vmem(gaps, items, positions):
    prev = None
    for it, gi in zip(items, positions):
        assert prev is None or gi > prev
        lo = (prev + 1) if prev is not None else max(0, gi - 6)
        free = [k for k in range(lo, gi + 1) if head_free(gaps[k])]
        pre = list(it.pre)
        if pre and 'm0' in pre[-1].writes and free and free[-1] == gi and len(free) > len(pre):
            free.pop()
        free = free[-len(pre):] if pre else []
        n = len(free)
        if n == len(pre):
            for x, k in zip(pre, free):
                gaps[k].insert(0, x)
        else:
            early = [k for k in free if k < gi]
            for x, k in zip(pre, early):
                gaps[k].insert(0, x)
            rest = pre[len(early):]
            g = gaps[gi]
            k = 0
            while k < len(g) and is_scalar(g[k]):
                k += 1
            g[k:k] = rest
        gaps[gi].append(it.ins)
        prev = gi


def fill(gaps, stream, start=0, end=None, look=14, lat=2):
    end = len(gaps) if end is None else end
    pend = []
    for it in stream:
        for x in it.pre:
            pend.append(Item(x, nb=max(0, it.nb - 3)))
        q = Item(it.ins, nb=it.nb)
        pend.append(q)
    placed_w = {}
    debt = 0.0

    def cost(it):
        k = it.ins.kind
        if is_scalar(it.ins):
            return 0
        if k == 'vmem':
            return 2
        return 2 if k == 'trans' else 1
    for gi in range(start, end):
        g = gaps[gi]
        final = gi == end - 1
        free_left = sum(max(0, 2 - slots(gaps[j]) + (1 if gaps[j] and gaps[j][-1].kind == 'ds' else 0)) for j in range(gi, end))
        need = sum(cost(x) for x in pend)
        extra = 0
        if need > free_left:
            debt += (need - free_left) / (end - gi)
            while debt >= 1.0 - 1e-9:
                extra += 1
                debt -= 1.0
        mine = []
        while pend:
            cands = []
            br, bw = set(), set()
            for j, it in enumerate(pend[:look]):
                ok = not (it.reads & bw or it.writes & bw or it.writes & br)
                if ok and not final:
                    if it.nb > gi:
                        ok = False
                    elif is_scalar(it.ins):
                        clash = any(it.reads & m.writes or it.writes & m.reads or it.writes & m.writes for m in mine)
                        ok = head_free(g) and not clash
                    else:
                        if any(gi - placed_w.get(r, -99) < lat for r in it.reads if r[0] in 'va' and r != 'vcc'):
                            ok = False
                        elif it.ins.meta.get('dma') and placed_w.get('m0', -99) == gi:
                            ok = False
                        elif it.ins.kind in ('vmem', 'ds'):
                            ok = all(is_scalar(x) or x.kind == 'label' for x in g)
                        else:
                            ok = slots(g + [it.ins]) <= 2 + extra
                if ok:
                    cands.append(j)
                br |= it.reads
                bw |= it.writes
            if not cands:
                break
            pick = cands[0]
            if final:
                lastw = set()
                for x in g[-2:]:
                    lastw |= set(x.writes)
                good = [j for j in cands if not (pend[j].reads & lastw)]
                pick = good[0] if good else pick
            else:
                sc = [j for j in cands if is_scalar(pend[j].ins)]
                if sc:
                    pick = sc[0]
                elif slots(g) == 0:
                    big = [j for j in cands if pend[j].ins.kind in ('ds', 'vmem')] or [j for j in cands if pend[j].ins.kind == 'trans']
                    if big:
                        pick = big[0]
            it = pend.pop(pick)
            if is_scalar(it.ins) and not final:
                g.insert(0, it.ins)
            else:
                g.append(it.ins)
            mine.append(it)
            for r in it.writes:
                placed_w[r] = gi
    assert not pend


def estimate(ins_list, name=''):
    tot = 0
    over = 0
    nm = 0
    g = []
    started = False
    for x in expand(ins_list):
        if x.kind == 'mfma':
            if started:
                o = max(0, slots(g) - 2)
                over += o
                tot += 16 + 4 * o
            else:
                tot += 4 * len([y for y in g if y.kind != 'label'])
            started = True
            nm += 1
            g = []
        elif x.kind == 'autowait':
            continue
        else:
            g.append(x)
    o = max(0, slots(g) - 2)
    over += o
    tot += 16 + 4 * o
    if name:
        print(f'  est {name}: {nm} mfma, {over} slots over, {tot} cycles')
    return tot


def force(gaps, items, positions):
    for it, gi in zip(items, positions):
        g = gaps[gi]
        seq = list(it.pre) + [it.ins]
        if it.ins.kind in ('ds', 'vmem') or is_scalar(it.ins):
            k = 0
            while k < len(g) and (is_scalar(g[k]) or g[k].kind in ('ds', 'vmem')):
                k += 1
            g[k:k] = seq
        else:
            g.extend(seq)
```

```python
import sys, os
sys.path.insert(0, os.path.dirname(__file__))
import k_ln, k_main, k_fin5 as k_fin
NAME = 'recurrent_scan__mha_block_cached__swiglu_ffn__prompt'

def build(out, force_slow=False, stamps=False):
    ref = open(f'cdna_kernels/{NAME}.s.ref').read().splitlines()
    head = [l for l in ref if l.startswith(';') and '@launch' not in l and 'Override launch' not in l and 'grid=ceil' not in l]
    head = head[:13]
    fused = k_main.OPT['fused']
    ks = [k_ln.gen_ln(), k_main.gen_main(force_slow=force_slow, stamps=stamps)] + ([] if fused else [k_fin.gen_fin(stamps=stamps)])
    txt = '\n'.join(head) + '\n'
    txt += '; @launch kernel=ln_kernel grid=(256,1,1) block=(64,1,1) lds=0\n'
    txt += '; @launch kernel=main_kernel grid=(256,1,1) block=(256,1,1) lds=163840\n'
    if not fused:
        txt += '; @launch kernel=fin_kernel grid=(256,1,1) block=(256,1,1) lds=147456\n'
    txt += '.amdgcn_target "amdgcn-amd-amdhsa--gfx950"\n.text\n'
    for body, d, nm in ks:
        txt += body
    txt += '.section .rodata,"a"\n'
    for body, d, nm in ks:
        txt += '.p2align 6\n' + d
    if stamps:
        import json
        json.dump([k[2] for k in ks[1:]], open(out + '.json', 'w'))
    open(out, 'w').write(txt)
    print('wrote', out, len(txt), 'bytes')

if __name__ == '__main__':
    build(f'cdna_kernels/{NAME}.s')
    import asmlib
    asmlib.QUIET[0] = True
    build('slow.s', force_slow=True)
    build('stamp.s', stamps=True)
    for a in sys.argv[1:]:
        nm, kv = a.split(':')
        old = dict(k_main.OPT); oldf = dict(k_fin.OPT)
        for x in kv.split(','):
            k, v = x.split('=')
            if k.startswith('f_'):
                k_fin.OPT[k[2:]] = int(v)
            else:
                k_main.OPT[k] = int(v)
        build(f'dev/{nm}.s', stamps=True)
        build(f'dev/{nm}_ns.s')
        k_main.OPT.update(old); k_fin.OPT.update(oldf)
```

```python
from asmlib import *

KA_X, KA_K, KA_V, KA_WQ, KA_WO, KA_BX, KA_WG, KA_WU, KA_WD, KA_OUT, KA_DBG, KA_WS = [8 * i for i in range(12)]

XN_OFF = 0
XN_MB = 18 * 1024
XN_BYTES = 128 * XN_MB
HF_OFF = 0x400000
STEP = 128 * 1024
HF_BYTES = 144 * STEP
OF_OFF = 0x1800000
OF_BYTES = 128 * STEP

WF_OFF = 0x2A00000
WF_BYTES = 272 * 36864
FLAG_OFF = 0x2900000
FLAG_BYTES = 9216
PART_OFF = 0x3400000
PART_SLAB = 10240
PART_BYTES = 2 * 64 * 16 * PART_SLAB

X_BYTES = 2048 * 576 * 2
KV_HEAD = 2048 * 128 * 2
WQ_BYTES = 576 * 4096 * 2
WG_BYTES = 576 * 4608 * 2
WO_BYTES = 4096 * 576 * 2
WD_BYTES = 4608 * 576 * 2


def vr(b, n=1):
    return f'v{b}' if n == 1 else f'v[{b}:{b + n - 1}]'


def ar(b, n=1):
    return f'a{b}' if n == 1 else f'a[{b}:{b + n - 1}]'


def sr(b, n=1):
    return f's{b}' if n == 1 else f's[{b}:{b + n - 1}]'


def header(name):
    return (f'.globl {name}\n.p2align 8\n.type {name},@function\n{name}:\n')


def descriptor(name, vgpr, sgpr, accum):
    return (f'.amdhsa_kernel {name}\n'
            f'  .amdhsa_next_free_vgpr {vgpr}\n'
            f'  .amdhsa_next_free_sgpr {sgpr}\n'
            f'  .amdhsa_accum_offset {accum}\n'
            f'  .amdhsa_group_segment_fixed_size 0\n'
            f'  .amdhsa_kernarg_size 96\n'
            f'  .amdhsa_user_sgpr_count 2\n'
            f'  .amdhsa_user_sgpr_kernarg_segment_ptr 1\n'
            f'  .amdhsa_system_sgpr_workgroup_id_x 1\n'
            f'  .amdhsa_float_denorm_mode_32 3\n'
            f'.end_amdhsa_kernel\n')


def srd(p, d, base, off_sgpr=None, off_imm=0, nbytes=0, nbytes_minus_off=False):
    if off_imm:
        p(f's_add_u32 s{d}, s{base}, {off_imm}')
        p(f's_addc_u32 s{d + 1}, s{base + 1}, 0')
        if off_sgpr is not None:
            p(f's_add_u32 s{d}, s{d}, s{off_sgpr}')
            p(f's_addc_u32 s{d + 1}, s{d + 1}, 0')
    elif off_sgpr is not None:
        p(f's_add_u32 s{d}, s{base}, s{off_sgpr}')
        p(f's_addc_u32 s{d + 1}, s{base + 1}, 0')
    else:
        p(f's_mov_b32 s{d}, s{base}')
        p(f's_mov_b32 s{d + 1}, s{base + 1}')
    if nbytes_minus_off:
        p(f's_sub_u32 s{d + 2}, {nbytes}, s{off_sgpr}')
    else:
        p(f's_mov_b32 s{d + 2}, {nbytes}')
    p(f's_mov_b32 s{d + 3}, 0x20000')


def finish(p, trace, name):
    settle([trace], name)
    return render(p.ins)


DBGDUMP = [None]
STAMP_OFF = 0x6000000
class Stamps:
    def __init__(self, on, first_sgpr, nmax):
        self.on, self.base, self.n, self.nmax = on, first_sgpr, 0, nmax
        self.names = []
    def stamp(self, p, name):
        if not self.on:
            return
        assert self.n < self.nmax
        p('s_waitcnt lgkmcnt(0)')
        p('s_memtime s[100:101]')
        p('s_waitcnt lgkmcnt(0)')
        p(f'v_writelane_b32 v{self.base}, s100, {self.n}')
        p('s_memrealtime s[100:101]')
        p('s_waitcnt lgkmcnt(0)')
        p(f'v_writelane_b32 v{self.base + 1}, s100, {self.n}')
        self.n += 1
        self.names.append(name)
    def dump(self, p, region, t):
        if not self.on:
            return
        p(f's_load_dwordx2 s[96:97], s[0:1], {KA_WS}')
        p('s_waitcnt lgkmcnt(0)')
        p(f's_add_u32 s96, s96, {STAMP_OFF + region * 0x100000}')
        p('s_addc_u32 s97, s97, 0')
        p('s_mov_b32 s98, 0x100000')
        p('s_mov_b32 s99, 0x20000')
        p('s_lshl_b32 s100, s2, 11')
        p(f'v_lshlrev_b32 v{t}, 3, v0')
        p(f'buffer_store_dwordx2 v[{self.base}:{self.base + 1}], v{t}, s[96:99], s100 offen')
        p('s_waitcnt vmcnt(0)')
        if DBGDUMP[0]:
            p('s_cmp_lg_u32 s2, 100')
            p('s_cbranch_scc1 L_nodump')
            p(f's_load_dwordx2 s[96:97], s[0:1], {KA_DBG}')
            p(f'v_readlane_b32 s100, v{self.base + 1}, 0')
            p('s_waitcnt lgkmcnt(0)')
            p('s_mov_b32 s98, 256')
            p(f'v_subrev_u32 v{self.base + 1}, s100, v{self.base + 1}')
            p(f'v_mov_b32 v{t}, 0x1000')
            for k, idx in enumerate(DBGDUMP[0][:6]):
                p(f's_mov_b32 s100, {(36 + 4 * k) if k < 3 else (40 + 4 * k)}')
                p(f'v_writelane_b32 v{t}, s100, {idx}')
            p(f'v_cmp_gt_u32 vcc, 64, v0')
            p('s_and_saveexec_b64 s[94:95], vcc')
            p('s_cbranch_execz L_nodump')
            p(f'buffer_store_dword v{self.base + 1}, v{t}, s[96:99], 0 offen')
            p('L_nodump:')
```

```python
import sys, os
sys.path.insert(0, os.path.dirname(__file__))
import k_ln, k_main, k_fin5 as k_fin
NAME = 'recurrent_scan__mha_block_cached__swiglu_ffn__prompt'

def build(out, force_slow=False, stamps=False):
    ref = open(f'cdna_kernels/{NAME}.s.ref').read().splitlines()
    head = [l for l in ref if l.startswith(';') and '@launch' not in l and 'Override launch' not in l and 'grid=ceil' not in l]
    head = head[:13]
    fused = k_main.OPT['fused']
    ks = [k_ln.gen_ln(), k_main.gen_main(force_slow=force_slow, stamps=stamps)] + ([] if fused else [k_fin.gen_fin(stamps=stamps)])
    txt = '\n'.join(head) + '\n'
    txt += '; @launch kernel=ln_kernel grid=(256,1,1) block=(64,1,1) lds=0\n'
    txt += '; @launch kernel=main_kernel grid=(256,1,1) block=(256,1,1) lds=163840\n'
    if not fused:
        txt += '; @launch kernel=fin_kernel grid=(256,1,1) block=(256,1,1) lds=147456\n'
    txt += '.amdgcn_target "amdgcn-amd-amdhsa--gfx950"\n.text\n'
    for body, d, nm in ks:
        txt += body
    txt += '.section .rodata,"a"\n'
    for body, d, nm in ks:
        txt += '.p2align 6\n' + d
    if stamps:
        import json
        json.dump([k[2] for k in ks[1:]], open(out + '.json', 'w'))
    open(out, 'w').write(txt)
    print('wrote', out, len(txt), 'bytes')

if __name__ == '__main__':
    build(f'cdna_kernels/{NAME}.s')
    import asmlib
    asmlib.QUIET[0] = True
    build('slow.s', force_slow=True)
    build('stamp.s', stamps=True)
    import common
    common.DBGDUMP[0] = [1, 2, 8, 10, 11, 13, 14, 18]
    build('dbg.s', stamps=True)
    common.DBGDUMP[0] = None
    for a in sys.argv[1:]:
        nm, kv = a.split(':')
        old = dict(k_main.OPT); oldf = dict(k_fin.OPT)
        for x in kv.split(','):
            k, v = x.split('=')
            if k.startswith('f_'):
                k_fin.OPT[k[2:]] = int(v)
            else:
                k_main.OPT[k] = int(v)
        build(f'dev/{nm}.s', stamps=True)
        build(f'dev/{nm}_ns.s')
        k_main.OPT.update(old); k_fin.OPT.update(oldf)
```

```python
from common import *
from sched import *

pX, pOUT, pDBG = 8, 12, 14
S_ACT, S_FLAG, S_X, S_OUT, S_PART, S_W = 16, 20, 24, 28, 40, 48
S_DBG = 44
sW = 52
fKQ, fRT, fCT, fT0, fT1, fT2, fT3 = 80, 81, 82, 83, 84, 85, 86
fABF, fABS, fWBF, fWBS, fWL, fODD, fG0, fG2 = 87, 88, 89, 90, 91, 92, 93, 94
fMS = 95
fSPIN, fOF, fTF = 97, 98, 99
sMASK, sNL2E = 73, 74
vLANE, vL16 = 1, 2
vA0, vA1, vA2, vB0, vB1, vXO, vL8 = 3, 4, 5, 6, 7, 8, 9
vT = 24
vFL = 28
vX = 10
vWF = 32
vACF = 80
vACS = 152
vE = 224
aACT = 128
aRF = 0
EP = 36864
LOOK = 3
NE = 17
FLAG_O = 8192
OPT = dict(same=0, oepi=3)


def mfma(d, a, b, c):
    return I(f'v_mfma_f32_16x16x32_bf16 {d}, {a}, {b}, {c}')


def acc(g, ms, ns):
    return (vACS if g else vACF) + (ms * 9 + ns) * 4


def act_reg(e, st, ms):
    base = (204, 220, 236, 176)[(e & 1) * 2 + (st >> 1)]
    return base + ((st & 1) * 2 + ms) * 4


def w_dma(e, sc):
    out = []
    base, el = (fWBF, e) if e < 9 else (fWBS, e - 9)
    el = 0 if OPT['same'] & 1 else el
    for n in range(9):
        pre = [f's_add_u32 m0, s{fWL}, {(e & 3) * EP + (n // 4) * 4096}', f's_add_u32 s{fT3}, s{base}, {el * 4 * EP + (n // 4) * 4096}'] if n % 4 == 0 else []
        out.append(Item(I(f'buffer_load_dwordx4 v{vL16}, {sr(S_W, 4)}, s{fT3} offen offset:{1024 * (n % 4)}{sc} lds', tag=('FW', e)), pre=pre))
    return out


def act_loads(e, pair, sc):
    out = []
    base, el = (fABF, e) if e < 9 else (fABS, e - 9)
    el = 0 if OPT['same'] & 2 else el
    for st in (2 * pair, 2 * pair + 1):
        for ms in range(2):
            pre = [f's_add_u32 s{fT0}, s{base}, {(4 * el + st) * STEP}'] if ms == 0 else []
            out.append(Item(f'buffer_load_dwordx4 {ar(act_reg(e, st, ms), 4)}, v{vB0 + ms}, {sr(S_ACT, 4)}, s{fT0} offen{sc}', pre=pre))
    return out


def early_setup():
    L = [f's_bfe_u32 s{fKQ}, s2, 0x20001', f's_and_b32 s{fT0}, s2, 1', f's_lshr_b32 s{fT1}, s2, 5',
         f's_lshl3_add_u32 s{fRT}, s{fT0}, s{fT1}', f's_bfe_u32 s{fCT}, s2, 0x20003',
         f's_lshr_b32 s{fT0}, s{fKQ}, 1', f's_lshl_b32 s{fT1}, s{fT0}, 10',
         f'v_add_u32 v{vB0}, s{fT1}, v{vL16}', f'v_xor_b32 v{vB1}, 1024, v{vB0}',
         f's_mul_i32 s{fABF}, s{fKQ}, {36 * STEP}', f's_mul_i32 s{fABS}, s{fKQ}, {32 * STEP}',
         f's_add_u32 s{fABS}, s{fABS}, {OF_OFF - HF_OFF}',
         f's_mul_i32 s{fWL}, s{sW}, 9216', f's_mul_i32 s{fT0}, s{fCT}, 9216', f's_mul_i32 s{fT1}, s{sW}, {EP}',
         f's_add_u32 s{fT0}, s{fT0}, s{fT1}', f's_mul_i32 s{fWBF}, s{fKQ}, {36 * EP}', f's_add_u32 s{fWBF}, s{fWBF}, s{fT0}',
         f's_mul_i32 s{fWBS}, s{fKQ}, {32 * EP}', f's_add_u32 s{fWBS}, s{fWBS}, s{fT0}', f's_add_u32 s{fWBS}, s{fWBS}, {144 * EP}',
         f's_lshl_b32 s{fT0}, s{fRT}, 3', f's_lshl1_add_u32 s{fT0}, s{sW}, s{fT0}', f's_lshl_b32 s{fT1}, s{fT0}, 10',
         f's_sub_u32 s{S_ACT + 2}, {OF_OFF + OF_BYTES - HF_OFF}, s{fT1}', f's_mov_b32 s{S_ACT + 3}, 0x20000',
         f's_sub_u32 s{fT1}, {WF_OFF - HF_OFF}, s{fT1}']
    glued = [f's_sub_u32 s{S_ACT}, s{S_W}, s{fT1}', f's_subb_u32 s{S_ACT + 1}, s{S_W + 1}, 0']
    return L, glued


def flag_setup():
    return [f's_sub_u32 s{S_FLAG}, s{S_W}, {WF_OFF - FLAG_OFF}', f's_subb_u32 s{S_FLAG + 1}, s{S_W + 1}, 0',
            f's_mov_b32 s{S_FLAG + 2}, {FLAG_BYTES}', f's_mov_b32 s{S_FLAG + 3}, 0x20000']


def late_setup():
    L = []
    p = L.append
    t0, t1 = vT, vT + 1
    p(f's_lshr_b32 s{fT0}, s{fKQ}, 1')
    p(f's_mul_i32 s{fMS}, s{fT0}, 5120')
    p(f's_sub_u32 s{fMS + 1}, 5120, s{fMS}')
    p(f's_and_b32 s{fODD}, s{fKQ}, 1')
    p(f's_mul_i32 s{fG0}, s{fODD}, 3072')
    p(f's_sub_u32 s{fG2}, 3072, s{fG0}')
    p(f's_lshl2_add_u32 s{fT0}, s{fRT}, s{fCT}')
    p(f's_lshl_b32 s{fTF}, s{fT0}, 7')
    p(f's_lshl2_add_u32 s{fT0}, s{fT0}, s{fKQ}')
    p(f's_lshl2_add_u32 s{fT0}, s{fT0}, s{sW}')
    p(f's_mul_i32 s{fT0}, s{fT0}, {PART_SLAB}')
    p(f's_add_u32 s{fMS}, s{fMS}, s{fT0}')
    p(f's_add_u32 s{fMS + 1}, s{fMS + 1}, s{fT0}')
    p(f's_lshr_b32 s{fT0}, s{fRT}, 1')
    p(f's_lshl_b32 s{fT0}, s{fT0}, 7')
    p(f's_lshl_b32 s{fT1}, s{fKQ}, 5')
    p(f's_add_u32 s{fOF}, s{fT0}, s{fT1}')
    p(f's_add_u32 s{fOF}, s{fOF}, {FLAG_O}')
    p(f's_lshl_b32 s{fT0}, s{fRT}, 7')
    p(f's_lshl_b32 s{fT1}, s{sW}, 5')
    p(f's_add_u32 s{fT0}, s{fT0}, s{fT1}')
    p(f's_lshr_b32 s{fT1}, s{fKQ}, 1')
    p(f's_lshl4_add_u32 s{fT0}, s{fT1}, s{fT0}')
    p(f'v_and_b32 v{t0}, 15, v{vLANE}')
    p(f'v_add_u32 v{t0}, s{fT0}, v{t0}')
    p(f'v_mul_u32_u24 v{t0}, 1152, v{t0}')
    p(f'v_lshrrev_b32 v{t1}, 4, v{vLANE}')
    p(f'v_lshl_add_u32 v{t0}, v{t1}, 3, v{t0}')
    p(f's_mul_i32 s{fT0}, s{fCT}, 288')
    p(f's_mul_i32 s{fT1}, s{fODD}, 160')
    p(f's_add_u32 s{fT0}, s{fT0}, s{fT1}')
    p(f'v_add_u32 v{vXO}, s{fT0}, v{t0}')
    p(f'v_lshlrev_b32 v{vL8}, 3, v{vLANE}')
    p(f'v_and_b32 v{vFL + 1}, 3, v{vLANE}')
    p(f'v_lshlrev_b32 v{vFL + 1}, 2, v{vFL + 1}')
    p(f's_mul_i32 s{fT1}, s{fODD}, 5120')
    p(f'v_add_u32 v{vA0}, s{fT1}, v{vL16}')
    p(f'v_mov_b32 v{vA1}, v{vL16}')
    p(f's_sub_u32 s{fT1}, 5120, s{fT1}')
    p(f'v_add_u32 v{vA2}, s{fT1}, v{vL16}')
    return L


def late_srds():
    A, B = [], []
    srd(A.append, S_PART, S_W, off_imm=PART_OFF - WF_OFF, nbytes=PART_BYTES)
    srd(B.append, S_X, pX, nbytes=X_BYTES)
    srd(B.append, S_OUT, pOUT, nbytes=X_BYTES)
    return A, B


def early_loads(sc):
    return w_dma(0, sc) + act_loads(0, 0, sc) + act_loads(0, 1, sc) + w_dma(1, sc) + act_loads(1, 0, sc)


def part_off(g):
    return g * (64 * 16 * PART_SLAB)


def publish(g):
    out = []
    for ms in (1, 0):
        for grp, slots_ in ((0, (0, 1)), (0, (2, 3)), (1, (4,)), (2, (5, 6)), (2, (7, 8))):
            if ms == 0 and grp == 0:
                continue
            r = vE if (ms == 0 and grp == 1) else acc(g, ms, slots_[0])
            for i, ns in enumerate(slots_):
                for dd in range(2):
                    out.append(Item(f'v_cvt_pk_bf16_f32 v{r + 2 * i + dd}, v{acc(g, ms, ns) + 2 * dd}, v{acc(g, ms, ns) + 2 * dd + 1}'))
            if grp == 1:
                out.append(Item(f'buffer_store_dwordx2 {vr(r, 2)}, v{vL8}, {sr(S_PART, 4)}, s{fT2} offen offset:2048 sc1',
                                pre=[f's_add_u32 s{fT2}, s{fMS + ms}, {part_off(g)}']))
            else:
                out.append(Item(f'buffer_store_dwordx4 {vr(r, 4)}, v{vL16}, {sr(S_PART, 4)}, s{fT2} offen offset:{1024 * (slots_[0] in (2, 7))} sc1',
                                pre=[f's_add_u32 s{fT2}, s{fMS + ms}, s{fG0 if grp == 0 else fG2}', f's_add_u32 s{fT2}, s{fT2}, {part_off(g)}']))
    return out


def flag_store(p, lab, back, pre, off):
    p(f'{lab}:')
    for l in pre:
        p(l)
    p(f'v_mov_b32 v{vT}, 1')
    p('s_mov_b64 exec, 1')
    p(f'buffer_store_dword v{vT}, off, {sr(S_FLAG, 4)}, s{fT1} offset:{off} sc1')
    p('s_mov_b64 exec, -1')
    p(f's_branch {back}')


def hook(lab):
    return [I(f's_cmp_eq_u32 s{sW}, 0'), I(f's_cbranch_scc1 {lab}'), I(f'{lab}_b:')]


POLLS = {
    'f': lambda: I(f'buffer_load_dword v{vFL}, v{vFL + 1}, {sr(S_FLAG, 4)}, s{fTF} offen sc1'),
    's': lambda: I(f'buffer_load_dword v{vFL}, v{vFL + 1}, {sr(S_FLAG, 4)}, s{fTF} offen offset:64 sc1'),
    'o': lambda: I(f'buffer_load_dword v{vFL}, v{vFL + 2}, {sr(S_FLAG, 4)}, s{fOF} offen sc1'),
    'a': lambda: I(f'buffer_load_dword v{vFL}, v{vFL + 3}, {sr(S_DBG, 4)}, 0 offen sc1'),
}


def test(k):
    return f'v_cmp_ne_u32 vcc, 32, v{vFL}' if k == 'a' else f'v_cmp_eq_u32 vcc, 0, v{vFL}'


def check(k, tag=''):
    return [I(test(k)), I(f's_cbranch_vccnz L_spin_{k}{tag}'), I(f'L_spin_{k}{tag}_b:')]


def spin(p, k, tag=''):
    lab = f'L_spin_{k}{tag}'
    p(f'{lab}:')
    p(f's_mov_b32 s{fSPIN}, 0')
    p(f'{lab}_l:')
    p.add(POLLS[k]())
    p(f's_add_u32 s{fSPIN}, s{fSPIN}, 1')
    p('s_waitcnt vmcnt(0)')
    p(test(k))
    p(f's_cmp_ge_u32 s{fSPIN}, 0x40000')
    p(f's_cbranch_scc1 {lab}_b')
    p(f's_cbranch_vccz {lab}_b')
    p('s_sleep 1')
    p(f's_branch {lab}_l')


def gather(g, base, rf):
    out = []
    for i in range(3):
        pre = [f's_xor_b32 s{fT1}, s{fKQ}, {i + 1}', f's_sub_u32 s{fT1}, s{fT1}, s{fKQ}', f's_mul_i32 s{fT1}, s{fT1}, {4 * PART_SLAB}',
               f's_add_u32 s{fT1}, s{fT1}, s{fMS}', f's_add_u32 s{fT1}, s{fT1}, {part_off(g)}', f's_add_u32 s{fT2}, s{fT1}, s{fG0}']
        r = base + i * 10
        out.append(Item(f'buffer_load_dwordx4 {rf(r, 4)}, v{vL16}, {sr(S_PART, 4)}, s{fT2} offen sc1', pre=pre))
        out.append(Item(f'buffer_load_dwordx4 {rf(r + 4, 4)}, v{vL16}, {sr(S_PART, 4)}, s{fT2} offen offset:1024 sc1'))
        out.append(Item(f'buffer_load_dwordx2 {rf(r + 8, 2)}, v{vL8}, {sr(S_PART, 4)}, s{fT1} offen offset:2048 sc1'))
    return out


def add_gathered(dst, base):
    out = []
    for i in range(3):
        for d in range(10):
            e = vE + 4 + (d % 4) * 2
            src = base + i * 10 + d
            out += [Item(f'v_lshlrev_b32 v{e}, 16, v{src}'), Item(f'v_and_b32 v{e + 1}, s{sMASK}, v{src}'),
                    Item(f'v_add_f32 v{dst + 2 * d}, v{dst + 2 * d}, v{e}'), Item(f'v_add_f32 v{dst + 2 * d + 1}, v{dst + 2 * d + 1}, v{e + 1}')]
    return out


def silu_items():
    out = []
    for ns in range(5):
        k, e = vACF + ns * 4, vE + 4 + (ns & 1) * 4
        for s in (f'v_mul_f32 v{{e}}, s{sNL2E}, v{{k}}', 'v_exp_f32 v{e}, v{e}', 'v_add_f32 v{e}, 1.0, v{e}',
                  'v_rcp_f32 v{e}, v{e}', 'v_mul_f32 v{k}, v{k}, v{e}'):
            out += [Item(s.format(e=e + r, k=k + r)) for r in range(4)]
    return out


def emit(p, items):
    for it in items:
        for x in it.pre + [it.ins]:
            p.add(x)


def fin_head():
    head = [W(tags=[('FW', 0)]), I('s_barrier')]
    for u in range(LOOK):
        head += [I(f'ds_read_b128 {vr(vWF + u * 8 + k * 4, 4)}, v{vA0} offset:{k * 9216 + u * 1024}') for k in range(2)]
    return head


def fin_body(p, ST, fused, o_epi=None):
    sc = ' sc1' if fused else ''
    mf, gaps = [], []
    for e in range(NE):
        g = int(e >= 9)
        for u in range(18):
            pair, ns = divmod(u, 9)
            rb = vWF + (u % 6) * 8
            for ms in range(2):
                for k in range(2):
                    d = vr(acc(g, ms, ns), 4)
                    c = '0' if (e in (0, 9) and pair == 0 and k == 0) else d
                    mf.append(mfma(d, vr(rb + k * 4, 4), ar(act_reg(e, 2 * pair + k, ms), 4), c))
                    gaps.append([])
    for U in range(NE * 18):
        e, u = divmod(U, 18)
        pair, ns = divmod(u, 9)
        a = vA0 if ns < 4 else (vA1 if ns == 4 else vA2)
        rb = vWF + (u % 6) * 8
        rd = [I(f'ds_read_b128 {vr(rb + k * 4, 4)}, v{a} offset:{(2 * pair + k) * 9216 + (ns - 5 * (ns > 4)) * 1024}') for k in range(2)]
        if U < LOOK:
            continue
        at = (U - LOOK) * 4
        if u == 0:
            d = (EP if e & 3 else -3 * EP) & 0xffffffff
            gaps[at - 1] += [W(tags=[('FW', e)]), I('s_barrier'), I(f'v_add_u32 v{vA0}, {d:#x}, v{vA0}')]
        if u == 4 or u == 5:
            pass
        gaps[at].append(rd[0])
        gaps[at + 2].append(rd[1])
        regs = rd[0].writes + rd[1].writes
        if ns == 0:
            regs = regs + [f'a{act_reg(e, 2 * pair, 0) + k}' for k in range(16)]
        g = gaps[U * 4 - 1]
        if g and g[0].kind == 'autowait':
            g[0].reads += regs
        else:
            g.insert(0, W(regs=regs))
    for e in range(1, NE):
        d = (EP if e & 3 else -3 * EP) & 0xffffffff
        b = e * 72 - LOOK * 4
        gaps[b + 0].append(I(f'v_add_u32 v{vA1}, {d:#x}, v{vA1}'))
        gaps[b + 2].append(I(f'v_add_u32 v{vA2}, {d:#x}, v{vA2}'))
    for e in range(NE):
        b = e * 72
        vm, pos = [], []
        if e + 1 < NE:
            vm += act_loads(e + 1, 1, sc)
            pos += [b + 1, b + 5, b + 9, b + 13]
        if e + 2 < NE:
            if fused and e == 7:
                gaps[b + 3].append(POLLS['o']())
                gaps[b + 51] += check('o')
            vm += w_dma(e + 2, sc)
            pos += [b + 17 + 4 * n for n in range(9)]
            vm += act_loads(e + 2, 0, sc)
            pos += [b + 53, b + 57, b + 61, b + 65]
        put_vmem(gaps, vm, pos)
    glued, free_ = late_srds()
    gaps[7] += [I(x) for x in glued]
    fill(gaps, [Item(x) for x in free_], start=8, end=40, look=2)
    if fused:
        fill(gaps, o_epi, start=4, end=OPT['oepi'] * 72, look=30)
        gaps[(OPT['oepi'] + 2) * 72 - LOOK * 4 + 1] += hook('L_flag_o')
    fill(gaps, publish(0), start=9 * 72 + 30, end=10 * 72 + 40)
    gaps[12 * 72 - LOOK * 4 + 1] += hook('L_flag_f')
    b = 15 * 72
    gaps[b + 15].append(POLLS['f']())
    put_vmem(gaps, [Item(f'buffer_load_dwordx2 {vr(vX + 2 * i, 2)}, v{vXO}, {sr(S_X, 4)}, 0 offen offset:{32 * i}') for i in range(5)],
             [b + 17 + 2 * i for i in range(5)])
    gaps[b + 45] += check('f')
    vRF = vACF + 36
    put_vmem(gaps, gather(0, vRF, vr), [b + 53, b + 55, b + 57, b + 65, b + 67, b + 69, b + 77, b + 79, b + 81])
    st = [Item(W(regs=[f'v{vRF + k}' for k in range(10)]), nb=b + 100)] + add_gathered(vACF, vRF)
    for x in st[1:]:
        x.nb = b + 101
    fill(gaps, st, start=b + 100, end=NE * 72, look=8, lat=1)
    ST.stamp(p, 'fin first')
    p.mark('fin0')
    weave(p, mf[:9 * 72], gaps[:9 * 72])
    ST.stamp(p, 'f loop')
    p.mark('fin1')
    weave(p, mf[9 * 72:], gaps[9 * 72:])
    p.mark('fin2')
    ST.stamp(p, 's loop')
    emit(p, publish(1))
    emit(p, silu_items())
    p('s_waitcnt vmcnt(0)')
    p('s_barrier')
    ST.stamp(p, 'published')
    for x in hook('L_flag_s'):
        p.add(x)
    p.add(POLLS['s']())
    for ns in range(5):
        for dd in range(2):
            p(f'v_lshlrev_b32 v{vWF + 4 * ns + 2 * dd}, 16, v{vX + 2 * ns + dd}')
            p(f'v_and_b32 v{vWF + 4 * ns + 2 * dd + 1}, s{sMASK}, v{vX + 2 * ns + dd}')
    for x in check('s'):
        p.add(x)
    vRS = vACS + 36
    emit(p, gather(1, vRS, vr))
    ST.stamp(p, 's flag')
    emit(p, add_gathered(vACS, vRS))
    p(f's_mul_i32 s{fT1}, s{fODD}, 0x7f000000')
    for ns in range(5):
        a, x, e = acc(1, 0, ns), vWF + 4 * ns, vE + (ns & 1) * 2
        for r in range(4):
            p(f'v_fmac_f32 v{x + r}, v{a + r}, v{vACF + ns * 4 + r}')
        for dd in range(2):
            p(f'v_cvt_pk_bf16_f32 v{e + dd}, v{x + 2 * dd}, v{x + 1 + 2 * dd}')
        so = f's{fT1}' if ns == 4 else '0'
        p(f'buffer_store_dwordx2 {vr(e, 2)}, v{vXO}, {sr(S_OUT, 4)}, {so} offen offset:{32 * ns}')
    ST.stamp(p, 'issued')

    def outline(p, o_pre=None):
        own = [f's_lshl2_add_u32 s{fT1}, s{fKQ}, s{fTF}']
        flag_store(p, 'L_flag_f', 'L_flag_f_b', own, 0)
        flag_store(p, 'L_flag_s', 'L_flag_s_b', own, 64)
        spin(p, 'f')
        spin(p, 's')
        if fused:
            flag_store(p, 'L_flag_o', 'L_flag_o_b', o_pre, 0)
            spin(p, 'o')
    return outline


def gen_fin(name='fin_kernel', stamps=False):
    p = Prog()
    ST = Stamps(stamps, 252, 32)
    p.mark('start')
    p('s_cmp_ge_u32 s2, 256')
    p('s_cbranch_scc1 L_fin_end')
    ST.stamp(p, 'start')
    p(f's_load_dwordx2 {sr(pX, 2)}, s[0:1], {KA_X}')
    p(f's_load_dwordx2 {sr(pOUT, 2)}, s[0:1], {KA_OUT}')
    p(f's_load_dwordx2 s[6:7], s[0:1], {KA_WS}')
    p('v_lshrrev_b32 v2, 6, v0')
    p(f'v_and_b32 v{vLANE}, 63, v0')
    p(f'v_readfirstlane_b32 s{sW}, v2')
    p(f'v_lshlrev_b32 v{vL16}, 4, v{vLANE}')
    a, b = early_setup()
    for l in a:
        p(l)
    p('s_waitcnt lgkmcnt(0)')
    srd(p, S_W, 6, off_imm=WF_OFF, nbytes=WF_BYTES)
    for l in b:
        p(l)
    ld = early_loads('')
    emit(p, ld[:17])
    for l in flag_setup():
        p(l)
    for l in late_setup():
        p(l)
    p(f's_mov_b32 s{sNL2E}, 0xbfb8aa3b')
    p(f's_mov_b32 s{sMASK}, 0xffff0000')
    emit(p, ld[17:])
    for x in fin_head():
        p.add(x)
    outline = fin_body(p, ST, False)
    if stamps:
        p('s_waitcnt vmcnt(0)')
    ST.stamp(p, 'stores done')
    ST.dump(p, 1, vT)
    p('L_fin_end:')
    p('s_endpgm')
    p.mark('fin')
    outline(p)
    S = p.seg
    settle([S('start', 'fin')], name)
    if not QUIET[0]:
        estimate(S('fin0', 'fin1'), 'f')
        estimate(S('fin1', 'fin2'), 's')
    return header(name) + render(p.ins), descriptor(name, 512, 102, 256), ST.names
```

```python
from common import *
from sched import *
import sched
import k_fin5 as F
from k_ln import row_sum

S_FO, S_XN, S_WG, S_WU, S_WQ, S_K, S_V, S_HF, S_OF, S_WX, S_FD, S_WF, S_F2 = 4, 8, 12, 16, 20, 24, 28, 32, 36, 40, 44, 48, 92
sW, sH, sRB, sT0, sT1, sT2, sOFF, sST = 52, 53, 54, 55, 56, 57, 58, 59
sXq, sHq, sXS = 60, 64, 68
sLW, sLX, sLK, sMASK, sNL2E, sSCALE, sTILE, sCNT, sBIG, sFL = 70, 71, 72, 73, 74, 75, 76, 77, 78, 79
sRW = 80
sRX = 86
sFS0, sFD0, sFS2, sFD2 = 96, 97, 98, 99
vLANE, vL16, vWG, vWX, vWQ = 1, 2, 3, 4, 5
vA = 6
vTMP = 10
vWF = 24
vXNV = 48
vSG = 80
vACC0, vACC1 = 112, 176
vWF2 = 240
vKD, vVD = 240, 244
vVA = 112
vKA = 120
vL = 124
vS = 128
vNEGM = 160
vP = 176
vRL = 246
aO, aK, aV = 0, 128, 160

aONE, aLS = 192, 196
vFD, vFA, vFZ = 254, 255, 11
OPT = dict(ln=True, wpre=6, cpf=True, nt=True, rot=True, kvwrap=False, fmt=True, sc1=False, fused=True)
RING0, SLOT = 40960, 24576
CH = 12288


def slot_base(e):
    return RING0 + SLOT * ((e + 4) % 5)


def xn_reg(qb, ks):
    i = ks * 4 + qb
    return vr(vXNV + 4 * (i - 64), 4) if i >= 64 else ar(4 * i, 4)


def q_reg(ks, qb):
    return vr((vSG if ks < 2 else vXNV) + ((ks & 1) * 4 + qb) * 4, 4)


def q_base(ks, qb):
    return (vSG if ks < 2 else vXNV) + ((ks & 1) * 4 + qb) * 4


def mfma(d, a, b, c):
    return I(f'v_mfma_f32_16x16x32_bf16 {d}, {a}, {b}, {c}')


def NT():
    return ' nt' if OPT['nt'] else ''


CHUNKS = ([(k, 0, cc, acc) for cc in range(6) for k, acc in (('G', vACC0), ('U', vACC1))]
          + [('G', 1, cc, vACC1) for cc in range(6)] + [('U', 1, cc, vACC0) for cc in range(6)]
          + [('X', 0, cc, vACC1) for cc in range(6)]
          + [('Q', 0, cc, vACC0) for cc in range(6)] + [('Q', 1, cc, vACC1) for cc in range(6)])
REGIONS = [('GU', 0, 12), ('G2', 12, 18), ('U2', 18, 24), ('X', 24, 30), ('Q1', 30, 36), ('Q2', 36, 42)]


def w_dma(c):
    kind, half, cc, _ = CHUNKS[c]
    e = c // 2
    lds = slot_base(e) + (c & 1) * CH
    out = []
    for i in range(3):
        if kind in 'GU':
            srd_, vo, sl = (S_WG if kind == 'G' else S_WU), vWG, sLW
            so = i * 32 * 9216 + half * 128
            l = lds + i * 4096
        elif kind == 'Q':
            srd_, vo, sl = S_WQ, vWQ, sLW
            so = i * 32 * 8192 + half * 128
            l = lds + i * 4096
        else:
            srd_, vo, sl = S_WX, vWX, sLX
            so = i * 16 * 9216
            l = lds + i * 1024
        pre = [f's_add_u32 m0, s{sl}, {l}', f's_add_u32 s{sOFF}, s{sRW + cc}, {so}']
        if kind == 'Q' and half == 0 and i == 0:
            pre = [f's_mul_i32 s{sRW + cc}, s{sRX + cc}, 256'] + pre
        out.append(Item(I(f'buffer_load_dwordx4 v{vo}, {sr(srd_, 4)}, s{sOFF} offen{NT()} lds', tag=('W', e)), pre=pre))
    return out


def kv_dma(which, slot, tile=None):
    out = []
    base = (0 if which == 'K' else 65536) + slot * 16384
    for pc in range(4):
        pre = []
        so = sTILE if tile is None else sOFF
        if pc == 0:
            pre.append(f's_add_u32 m0, s{sLK}, {base}')
            if tile is not None:
                pre.append(f's_mov_b32 s{sOFF}, {(tile + (which == "V")) * 16384}')
        vo = vKD + pc if which == 'K' else vVD + (pc & 1)
        srd_ = S_K if which == 'K' else S_V
        out.append(Item(I(f'buffer_load_dwordx4 v{vo}, {sr(srd_, 4)}, s{so} offen offset:{1024 * pc}{NT()} lds',
                          tag=(which, slot)), pre=pre))
    return out


def xn_loads(c):
    out = []
    for qb in range(4):
        for kk in range(3):
            pre = [f's_add_u32 s{sT0}, s{sXq + qb}, s{sRX + c}'] if kk == 0 else []
            out.append(Item(I(f'buffer_load_dwordx4 {xn_reg(qb, 3 * c + kk)}, v{vL16}, {sr(S_XN, 4)}, s{sT0} offen offset:{1024 * kk}{" sc1" if OPT["ln"] else ""}'),
                            pre=pre))
    return out


def emit_items(p, items):
    for it in items:
        for x in it.pre:
            p.add(x)
        p.add(it.ins)


def addr_gu(base):
    t0, t1, t2 = vTMP, vTMP + 1, vTMP + 2
    L = [f'v_lshrrev_b32 v{t0}, 4, v{vLANE}',
         f'v_bfe_u32 v{t1}, v{vLANE}, 2, 2',
         f'v_lshl_add_u32 v{t2}, v{t0}, 3, v{t1}',
         f'v_lshlrev_b32 v{t2}, 7, v{t2}',
         f'v_and_b32 v{t0}, 1, v{t0}',
         f'v_lshrrev_b32 v{t1}, 1, v{t1}',
         f'v_lshl_or_b32 v{t0}, v{t0}, 1, v{t1}',
         f'v_and_b32 v{t1}, 3, v{vLANE}',
         f'v_lshl_add_u32 v{t2}, v{t1}, 3, v{t2}',
         f'v_add_u32 v{t2}, {base}, v{t2}']
    for nb in range(4):
        L += [f'v_xor_b32 v{t1}, {nb}, v{t0}', f'v_lshl_add_u32 v{vA + nb}, v{t1}, 5, v{t2}']
    return L


def addr_x(base):
    t0, t1, t2 = vTMP, vTMP + 1, vTMP + 2
    L = [f'v_lshrrev_b32 v{t0}, 4, v{vLANE}',
         f'v_bfe_u32 v{t1}, v{vLANE}, 2, 2',
         f'v_lshl_add_u32 v{t2}, v{t0}, 3, v{t1}',
         f'v_lshlrev_b32 v{t2}, 6, v{t2}',
         f'v_and_b32 v{t0}, 1, v{t0}',
         f'v_and_b32 v{t1}, 3, v{vLANE}',
         f'v_lshl_add_u32 v{t2}, v{t1}, 3, v{t2}',
         f'v_add_u32 v{t2}, {base}, v{t2}']
    for nb in range(2):
        L += [f'v_xor_b32 v{t1}, {nb}, v{t0}', f'v_lshl_add_u32 v{vA + nb}, v{t1}, 5, v{t2}']
    return L


def addr_q(base):
    t0, t1, t2 = vTMP, vTMP + 1, vTMP + 2
    L = [f'v_lshrrev_b32 v{t0}, 4, v{vLANE}',
         f'v_bfe_u32 v{t1}, v{vLANE}, 2, 2',
         f'v_lshl_add_u32 v{t2}, v{t0}, 3, v{t1}',
         f'v_lshlrev_b32 v{t2}, 7, v{t2}',
         f'v_add_u32 v{t2}, {base}, v{t2}',
         f'v_and_b32 v{t0}, 1, v{t0}',
         f'v_lshrrev_b32 v{t1}, 1, v{t1}',
         f'v_lshl_or_b32 v{t0}, v{t0}, 1, v{t1}',
         f'v_lshlrev_b32 v{t0}, 1, v{t0}',
         f'v_and_b32 v{t1}, 3, v{vLANE}',
         f'v_xor_b32 v{t0}, v{t0}, v{t1}',
         f'v_lshl_add_u32 v{vA}, v{t0}, 4, v{t2}',
         f'v_xor_b32 v{t0}, 4, v{t0}',
         f'v_lshl_add_u32 v{vA + 1}, v{t0}, 4, v{t2}']
    return L


def kv_dma_addr():
    t0, t1, t2 = vTMP + 3, vTMP + 4, vTMP + 5
    L = [f'v_lshrrev_b32 v{t0}, 4, v{vLANE}',
         f'v_and_b32 v{t1}, 15, v{vLANE}',
         f'v_lshlrev_b32 v{t2}, 8, v{t0}',
         f'v_add_u32 v{t2}, s{sLK}, v{t2}']
    for pc in range(4):
        L += [f'v_or_b32 v{vKD + pc}, {4 * pc}, v{t0}', f'v_xor_b32 v{vKD + pc}, v{vKD + pc}, v{t1}',
              f'v_lshl_add_u32 v{vKD + pc}, v{vKD + pc}, 4, v{t2}']
    for pc in range(2):
        L += [f'v_or_b32 v{vVD + pc}, {4 * pc}, v{t0}', f'v_lshlrev_b32 v{vVD + pc}, 1, v{vVD + pc}',
              f'v_xor_b32 v{vVD + pc}, v{vVD + pc}, v{t1}', f'v_lshl_add_u32 v{vVD + pc}, v{vVD + pc}, 4, v{t2}']
    return L


def kv_read_addr(vbase=65536):
    t0, t1, t2 = vTMP + 3, vTMP + 4, vTMP + 5
    L = [f'v_lshrrev_b32 v{t0}, 4, v{vLANE}',
         f'v_and_b32 v{t1}, 15, v{vLANE}',
         f'v_lshlrev_b32 v{t2}, 8, v{t1}',
         f'v_xor_b32 v{t1}, v{t0}, v{t1}']
    for ks in range(4):
        L += [f'v_xor_b32 v{vKA + ks}, {4 * ks}, v{t1}', f'v_lshl_add_u32 v{vKA + ks}, v{vKA + ks}, 4, v{t2}']
    L += [f'v_lshrrev_b32 v{t0}, 2, v{vLANE}',
          f'v_and_b32 v{t1}, 3, v{vLANE}',
          f'v_lshlrev_b32 v{t1}, 3, v{t1}',
          f'v_lshl_add_u32 v{t2}, v{t0}, 8, v{t1}',
          f'v_add_u32 v{t2}, {vbase}, v{t2}',
          f'v_and_b32 v{t0}, 7, v{t0}']
    for db in range(8):
        L += [f'v_xor_b32 v{vVA + db}, {db}, v{t0}', f'v_lshl_add_u32 v{vVA + db}, v{vVA + db}, 5, v{t2}']
    return L


def tile(acc, nb, qb, nq=4):
    return acc + (nb * nq + qb) * 4


def silu_ops(g, t0, t1):
    return [f'v_mul_f32 v{t0}, s{sNL2E}, v{g}', f'v_exp_f32 v{t0}, v{t0}', f'v_add_f32 v{t0}, 1.0, v{t0}',
            f'v_rcp_f32 v{t0}, v{t0}', f'v_mul_f32 v{g}, v{g}, v{t0}']


def stream_silu(acc):
    out = []
    for j in range(2):
        for qb in range(4):
            for half in range(2):
                tb = tile(acc, 2 * j + half, qb)
                tmp = vTMP + 6 + 4 * (half & 1)
                st = [silu_ops(tb + r, tmp + r, None) for r in range(4)]
                for s in range(5):
                    for r in range(4):
                        out.append(Item(st[r][s]))
                sg = vSG + (j * 4 + qb) * 4 + 2 * half
                out.append(Item(f'v_cvt_pk_bf16_f32 v{sg}, v{tb}, v{tb + 1}'))
                out.append(Item(f'v_cvt_pk_bf16_f32 v{sg + 1}, v{tb + 2}, v{tb + 3}'))
    return out


def stream_finish_h(acc, pair):
    out = []
    n = 0
    for j in range(2):
        for qb in range(4):
            sg = vSG + (j * 4 + qb) * 4
            for half in range(2):
                tb = tile(acc, 2 * j + half, qb)
                tmp = vTMP + 6 + 4 * (n & 1)
                n += 1
                for dd in range(2):
                    out.append(Item(f'v_lshlrev_b32 v{tmp + 2 * dd}, 16, v{sg + 2 * half + dd}'))
                    out.append(Item(f'v_and_b32 v{tmp + 2 * dd + 1}, s{sMASK}, v{sg + 2 * half + dd}'))
                for r in range(4):
                    out.append(Item(f'v_mul_f32 v{tb + r}, v{tb + r}, v{tmp + r}'))
                for dd in range(2):
                    out.append(Item(f'v_cvt_pk_bf16_f32 v{sg + 2 * half + dd}, v{tb + 2 * dd}, v{tb + 2 * dd + 1}'))
            out.append(Item(f'buffer_store_dwordx4 {vr(sg, 4)}, v{vL16}, {sr(S_HF, 4)}, s{sST} offen{SC1()}',
                            pre=[f's_add_u32 s{sST}, s{sHq + qb}, {(2 * pair + j) * STEP}']))
    return out


def sg_reg(nb, qb):
    return vSG + ((nb >> 1) * 4 + qb) * 4 + 2 * (nb & 1)


def stream_h_direct(acc):
    out = []
    n = 0
    for j in range(2):
        for qb in range(4):
            for half in range(2):
                tb, sg = tile(acc, 2 * j + half, qb), sg_reg(2 * j + half, qb)
                tmp = vTMP + 6 + 4 * (n & 1)
                n += 1
                st = [silu_ops(tb + r, tmp + r, None) for r in range(4)]
                for k in range(5):
                    out += [Item(st[r][k]) for r in range(4)]
                for dd in range(2):
                    out.append(Item(f'v_lshlrev_b32 v{tmp + 2 * dd}, 16, v{sg + dd}'))
                    out.append(Item(f'v_and_b32 v{tmp + 2 * dd + 1}, s{sMASK}, v{sg + dd}'))
                out += [Item(f'v_mul_f32 v{tb + r}, v{tb + r}, v{tmp + r}') for r in range(4)]
                out += [Item(f'v_cvt_pk_bf16_f32 v{sg + dd}, v{tb + 2 * dd}, v{tb + 2 * dd + 1}') for dd in range(2)]
            out.append(Item(f'buffer_store_dwordx4 {vr(vSG + (j * 4 + qb) * 4, 4)}, v{vL16}, {sr(S_HF, 4)}, s{sST} offen{SC1()}',
                            pre=[f's_add_u32 s{sST}, s{sHq + qb}, {j * STEP}']))
    return out


def stream_x_epi(acc):
    out = []
    for qb in range(2):
        dst = vSG + qb * 4
        for half in range(2):
            tg = tile(acc, half, qb, 2)
            tu = tile(acc, 2 + half, qb, 2)
            tmp = vTMP + 6 + 4 * half
            st = [silu_ops(tg + r, tmp + r, None) + [f'v_mul_f32 v{tg + r}, v{tg + r}, v{tu + r}'] for r in range(4)]
            for s in range(6):
                for r in range(4):
                    out.append(Item(st[r][s]))
            for dd in range(2):
                out.append(Item(f'v_cvt_pk_bf16_f32 v{dst + 2 * half + dd}, v{tg + 2 * dd}, v{tg + 2 * dd + 1}'))
        out.append(Item(f'buffer_store_dwordx4 {vr(dst, 4)}, v{vL16}, {sr(S_HF, 4)}, s{sXS + qb} offen{SC1()}'))
    return out


def stream_q_epi(acc, ps, nbs=None):
    out = []
    for ksub in range(2):
        for half in range(2):
            for qb in range(4):
                tb = tile(acc, 2 * ksub + half, qb)
                nb = nbs[(ksub, half, qb)] if nbs else 0
                for r in range(4):
                    out.append(Item(f'v_mul_f32 v{tb + r}, s{sSCALE}, v{tb + r}', nb=nb))
                d = q_base(2 * ps + ksub, qb) + 2 * half
                nbw = nbs[('w', ksub, qb)] if nbs else 0
                for dd in range(2):
                    out.append(Item(f'v_cvt_pk_bf16_f32 v{d + dd}, v{tb + 2 * dd}, v{tb + 2 * dd + 1}', nb=max(nb, nbw)))
    return out


def SC1():
    return ' sc1' if (OPT['sc1'] or OPT['fused']) else ''


def fmt_dma(i):
    out = []
    for pc in range(4):
        pp = [f's_add_u32 m0, s{sFL}, {(i & 1) * 4096 + pc * 1024}', f's_add_u32 s{sOFF}, s{sFS2 if i == 2 else sFS0}, {pc * 9216}']
        out.append(Item(I(f'buffer_load_dwordx4 v{vFD}, {sr((S_FD, S_FO, S_F2)[i], 4)}, s{sOFF} offen{NT()} lds', tag=('F', i)), pre=pp))
    return out


def fmt_out(gaps, i, at):
    for nb in range(4):
        r = vWF + ((i * 4 + nb) % 6) * 4
        a = vTMP + 3 + (nb & 1)
        g = at + 6 * nb
        force(gaps, [Item(f'v_xor_b32 v{a}, {nb << 5}, v{vFA}')], [g])
        if nb == 0:
            force(gaps, [Item(W(tags=[('F', i)]))], [g + 2])
        rd = [Item(f'ds_read_b64_tr_b16 {vr(r + 2 * t, 2)}, v{a} offset:{(i & 1) * 4096 + t * 2048}') for t in range(2)]
        force(gaps, rd, [g + 2, g + 4])
        pre = [f's_add_u32 s{sFD0}, s{sFD0}, {144 * 36864}'] if (i == 1 and nb == 0) else []
        force(gaps, [Item(f'buffer_store_dwordx4 {vr(r, 4)}, v{vL16}, {sr(S_WF, 4)}, s{sFD2 if i == 2 else sFD0} offen offset:{nb * 1024}{SC1()}', pre=pre)], [g + 16])


def fmt_in(gaps, i, at):
    force(gaps, fmt_dma(i), [at + 2 * n for n in range(4)])


def k_reads(slot, kb, buf):
    return [I(f'ds_read_b128 {ar(aK + buf * 16 + ks * 4, 4)}, v{vKA + ks} offset:{slot * 16384 + kb * 4096}') for ks in range(4)]


def v_reads(slot, db, base, kks=(0, 1)):
    out = []
    for n, kk in enumerate(kks):
        for t in range(2):
            out.append(I(f'ds_read_b64_tr_b16 {ar(base + n * 4 + 2 * t, 2)}, v{vVA + db} offset:{slot * 16384 + kk * 8192 + t * 4096}'))
    return out


def qk_block(kb, c0=False):
    sb = vS + (kb & 1) * 16
    out = []
    for qb in range(4):
        for ks in range(4):
            d = vr(sb + qb * 4, 4)
            c = d if ks else ('0' if c0 else vr(vNEGM + qb * 4, 4))
            out.append(mfma(d, ar(aK + (kb & 1) * 16 + ks * 4, 4), q_reg(ks, qb), c))
    return out


def p_reg(buf, kk, qb):
    return vP + buf * 32 + (kk * 4 + qb) * 4


MS = (1, 3)
VS = (0, 2)
NMS = 2


def ones_mfma(pbuf, kk, qb, first=False):
    d = ar(aLS + (qb >> 1) * 4, 4)
    return mfma(d, ar(aONE, 4), vr(p_reg(pbuf, kk, qb), 4), '0' if first else d)


def pv_block(i, pbuf, first=False):
    out = []
    for db in (2 * i, 2 * i + 1):
        for qb in range(4):
            for kk in range(2):
                d = ar(aO + (db * 4 + qb) * 4, 4)
                c = '0' if (first and kk == 0) else d
                out.append(mfma(d, ar(aV + (db & 1) * 8 + kk * 4, 4), vr(p_reg(pbuf, kk, qb), 4), c))
    if i in (0, 2):
        out += [ones_mfma(pbuf, 0, i + 1, first), ones_mfma(pbuf, 1, i + 1)]
    return out


def sm_stream(kb, pbuf, sub=False, init=False):
    sb = vS + (kb & 1) * 16
    out = []
    for qb in range(4):
        for r in range(4):
            s = sb + qb * 4 + r
            if sub:
                out.append(Item(f'v_add_f32 v{s}, v{vNEGM + qb * 4}, v{s}'))
            out.append(Item(f'v_exp_f32 v{s}, v{s}'))
            if qb in VS:
                if init and r == 0:
                    out.append(Item(f'v_mov_b32 v{vL + qb}, v{s}'))
                else:
                    out.append(Item(f'v_add_f32 v{vL + qb}, v{vL + qb}, v{s}'))
            if r & 1:
                d = p_reg(pbuf, kb >> 1, qb) + (kb & 1) * 2 + (r >> 1)
                out.append(Item(f'v_cvt_pk_bf16_f32 v{d}, v{s - 1}, v{s}'))
    return out


def xlane(op, v, t):
    return [f'v_mov_b32 v{t}, v{v}', f'v_permlane16_swap_b32 v{t}, v{v}', f'{op} v{v}, v{v}, v{t}',
            f'v_mov_b32 v{t}, v{v}', f'v_permlane32_swap_b32 v{t}, v{v}', f'{op} v{v}, v{v}, v{t}']


BLK = [0, 34, 66, 100, 132]
PER = 132


def wr(ins_list):
    return [r for x in ins_list for r in x.writes]


def period_skeleton(T, first=False, final=False):
    mf, gaps = [], []
    ksl, vsl = (T + 1) & 3, T & 3
    dma = kv_dma('K', T & 3) + kv_dma('V', (T + 3) & 3)
    for i in range(4):
        mf += qk_block(i) + pv_block(i, T & 1, first)
        g = [[] for _ in range(BLK[i + 1] - BLK[i])]
        vo = v_reads(vsl, 2 * i + 1, aV + 8)
        for n in range(4):
            g[1 + 2 * n].append(vo[n])
        for n in range(0 if final else 2):
            it = dma[2 * i + n]
            g[8 + 2 * n][0:0] = it.pre
            g[9 + 2 * n].append(it.ins)
        if i < 3:
            g[15].append(W(lgkm0=True))
            kr = k_reads(ksl, i + 1, (i + 1) & 1)
            ve = v_reads(vsl, 2 * i + 2, aV)
        else:
            g[15] += [W(tags=[('K', (T + 2) & 3), ('V', (T + 1) & 3)], lgkm0=True), I('s_barrier')]
            g[12].append(I(f's_add_u32 s{sTILE}, s{sTILE}, {0 if OPT["kvwrap"] else 16384}'))
            kr = k_reads((T + 2) & 3, 0, 0)
            if final:
                kr = v_reads(3, 1, aK, (0,)) + v_reads(3, 2, aK + 4, (0,))
            ve = v_reads((T + 1) & 3, 0, aV)
        for n in range(4):
            g[17 + 2 * n].append(kr[n])
            g[25 + 2 * n].append(ve[n])
        g[-1].insert(0, W(regs=wr(kr)))
        gaps += g
    return mf, gaps


def clone(ins):
    if ins.kind == 'autowait':
        return W(ins.reads, ins.meta['wait_tags'], ins.meta['wait_lgkm0'])
    m = {k: v for k, v in ins.meta.items() if k in ('tag', 'wait_tags', 'wait_lgkm0', 'own')}
    return Ins(ins.text, **m)


def place_softmax(G):
    n = len(G)
    plain = []
    for T in range(4):
        for kb in range(4):
            eg = [T * PER + BLK[kb] + k for k in range(16, 32, 2)] + [T * PER + BLK[kb + 1] + k for k in range(0, 16, 2)]
            at = {}
            k = 0
            for it in sm_stream(kb, (T + 1) & 1):
                it.ins.meta['own'] = (T, kb)
                if it.ins.kind == 'trans':
                    assert slots(G[eg[k] % n]) == 0
                    G[eg[k] % n].append(it.ins)
                    at[it.ins.writes[0]] = eg[k]
                    k += 1
                else:
                    plain.append((max(at[r] for r in it.ins.reads if r in at) + 2, it.ins, T, kb))
    cur = 0
    cut = next(k for k, e in enumerate(plain) if e[0] > BLK[1])
    plain = plain[cut:] + [(lo + n, x, T + 4, kb) for lo, x, T, kb in plain[:cut]]
    for lo, x, T, kb in plain:
        gi = max(lo, cur)
        while slots(G[gi % n] + [x]) > 2:
            gi += 1
        G[gi % n].append(x)
        cur = gi
        qb = (int(x.reads[-1][1:]) - vS) % 16 // 4
        lim = T * PER + (BLK[kb + 2] if kb < 2 else PER + BLK[kb - 2]) + 4 * qb
        if kb >= 2 and x.op.startswith('v_cvt'):
            lim = min(lim, (T + 1) * PER + 16 + 2 * qb - 1)
        assert gi < lim, (gi, lim, x.text)


def o_epi_items(j, tmpsets, nb=0):
    out = []
    for qb in range(4):
        t = tmpsets[(j * 4 + qb) % len(tmpsets)]
        for half in range(2):
            for r in range(4):
                out.append(Item(f'v_accvgpr_read_b32 v{t + 4 * half + r}, a{aO + ((2 * j + half) * 4 + qb) * 4 + r}', nb=nb))
        for r in range(8):
            out.append(Item(f'v_mul_f32 v{t + r}, v{t + r}, v{vRL + qb}'))
        for dd in range(4):
            out.append(Item(f'v_cvt_pk_bf16_f32 v{t + 8 + dd}, v{t + 2 * dd}, v{t + 2 * dd + 1}'))
        out.append(Item(f'buffer_store_dwordx4 {vr(t + 8, 4)}, v{vL16}, {sr(S_OF, 4)}, s{sST} offen{SC1()}',
                        pre=[f's_add_u32 s{sST}, s{sHq + qb}, {j * STEP}']))
    return out


DBG_SRD = [f's_mov_b32 s{F.S_DBG}, s{F.pDBG}', f's_mov_b32 s{F.S_DBG + 1}, s{F.pDBG + 1}',
           f's_mov_b32 s{F.S_DBG + 2}, 256', f's_mov_b32 s{F.S_DBG + 3}, 0x20000']


PIV, OWN, FL, XCH = 112, 116, 128, 160


def ln_loads(p, ST):
    t0, t1 = vTMP, vTMP + 1
    p(f'v_and_b32 v{t0}, 7, v{vLANE}')
    p(f'v_lshrrev_b32 v{t1}, 3, v{vLANE}')
    p(f'v_mul_u32_u24 v{vA + 2}, 1152, v{t0}')
    p(f'v_lshl_add_u32 v{vA}, v{t1}, 4, v{vA + 2}')
    p(f's_lshl_b32 s{sT0}, s{sRB}, 5')
    p(f's_add_u32 s{sT0}, s{sT0}, s{sH}')
    p(f's_mul_i32 s{sT1}, s{sT0}, 9216')
    p(f's_lshl_b32 s{sT2}, s{sW}, 8')
    p(f's_add_u32 s{sT2}, s{sT2}, s{sT1}')
    p('s_waitcnt lgkmcnt(0)')
    ST.stamp(p, 'kernarg')
    srd(p, S_K, 8, nbytes=X_BYTES)
    p(f'buffer_load_dword v{PIV}, v{vA + 2}, {sr(S_K, 4)}, s{sT1} offen')
    for i in range(3):
        p(f'buffer_load_dwordx4 {vr(OWN + 4 * i, 4)}, v{vA}, {sr(S_K, 4)}, s{sT2} offen offset:{128 * i}')
    p(f'v_lshlrev_b32 v{vA + 1}, 8, v{t1}')
    p(f'v_lshl_add_u32 v{vA + 1}, v{t0}, 4, v{vA + 1}')
    p(f'v_lshlrev_b32 v{vA + 2}, 5, v{t0}')
    p(f's_lshl_b32 s{sT1}, s{sW}, 3')
    p(f'v_add_u32 v{vA + 3}, s{sT1}, v{vA + 2}')
    p(f's_lshr_b32 s{sCNT}, s{sT0}, 1')
    p(f's_mul_i32 s{sCNT}, s{sCNT}, {XN_MB}')
    p(f's_and_b32 s{sT0}, s{sT0}, 1')
    p(f's_lshl_b32 s{sT0}, s{sT0}, 7')
    p(f's_add_u32 s{sCNT}, s{sCNT}, s{sT0}')
    p(f's_lshl_b32 s{sT0}, s{sW}, 12')
    p(f's_add_u32 s{sCNT}, s{sCNT}, s{sT0}')


def ln_compute(p, ST):
    a0, q0, a2, q2, m, v, t = vTMP, vTMP + 1, vTMP + 2, vTMP + 3, vTMP + 4, vTMP + 6, vTMP + 8
    p(f's_cmp_eq_u32 s{sW}, 3')
    p(f's_cselect_b32 s{sT1}, 1.0, 0')
    p(f's_cselect_b32 s{sT0}, 0, 0x7f000000')
    p(f's_add_u32 s{sT0}, s{sT0}, s{sCNT}')
    p(f's_add_u32 s{sT0}, s{sT0}, 4096')
    ST.stamp(p, 'setup1')
    if ST.on:
        p('s_waitcnt vmcnt(1)')
    ST.stamp(p, 'x here')
    p(f'v_lshlrev_b32 v{PIV}, 16, v{PIV}')
    for d in range(12):
        p(f'v_lshlrev_b32 v{FL + 2 * d}, 16, v{OWN + d}')
        p(f'v_and_b32 v{FL + 2 * d + 1}, s{sMASK}, v{OWN + d}')
    for k in range(24):
        sa, sq = (a0, q0) if k < 16 else (a2, q2)
        dtmp = XCH + (k & 3)
        p(f'v_sub_f32 v{dtmp}, v{FL + k}, v{PIV}')
        if k in (0, 16):
            p(f'v_mov_b32 v{sa}, v{dtmp}')
            p(f'v_mul_f32 v{sq}, v{dtmp}, v{dtmp}')
        else:
            p(f'v_add_f32 v{sa}, v{sa}, v{dtmp}')
            p(f'v_fmac_f32 v{sq}, v{dtmp}, v{dtmp}')
    p(f'v_fmac_f32 v{a0}, s{sT1}, v{a2}')
    p(f'v_fmac_f32 v{q0}, s{sT1}, v{q2}')
    for x in (a0, q0):
        p(f'v_add_f32_dpp v{x}, v{x}, v{x} row_ror:8 row_mask:0xf bank_mask:0xf')
    for sw in ('v_permlane16_swap_b32', 'v_permlane32_swap_b32'):
        p(f'v_mov_b32 v{a2}, v{a0}')
        p(f'v_mov_b32 v{q2}, v{q0}')
        p(f'{sw} v{a2}, v{a0}')
        p(f'{sw} v{q2}, v{q0}')
        p(f'v_add_f32 v{a0}, v{a0}, v{a2}')
        p(f'v_add_f32 v{q0}, v{q0}, v{q2}')
    p(f'ds_write_b64 v{vA + 3}, {vr(a0, 2)}')
    p('s_waitcnt lgkmcnt(0)')
    p('s_barrier')
    ST.stamp(p, 'xch')
    p(f'ds_read_b128 {vr(XCH, 4)}, v{vA + 2}')
    p(f'ds_read_b128 {vr(XCH + 4, 4)}, v{vA + 2} offset:16')
    p(f'v_add_f32 v{a0}, v{XCH}, v{XCH + 2}')
    p(f'v_add_f32 v{q0}, v{XCH + 1}, v{XCH + 3}')
    p(f'v_add_f32 v{a2}, v{XCH + 4}, v{XCH + 6}')
    p(f'v_add_f32 v{q2}, v{XCH + 5}, v{XCH + 7}')
    p(f'v_add_f32 v{a0}, v{a0}, v{a2}')
    p(f'v_add_f32 v{q0}, v{q0}, v{q2}')
    p(f'v_mul_f32 v{a0}, 0x3ae38e39, v{a0}')
    p(f'v_mul_f32 v{q0}, 0x3ae38e39, v{q0}')
    p(f'v_add_f32 v{m}, v{PIV}, v{a0}')
    p(f'v_fma_f32 v{v}, -v{a0}, v{a0}, v{q0}')
    p(f'v_max_f32 v{v}, 0, v{v}')
    p(f'v_cvt_pk_bf16_f32 v{t}, v{m}, v{v}')
    p(f'v_lshlrev_b32 v{m}, 16, v{t}')
    p(f'v_and_b32 v{v}, s{sMASK}, v{t}')
    p(f'v_add_f32 v{v}, 0x3727c5ac, v{v}')
    p(f'v_cvt_pk_bf16_f32 v{v}, v{v}, v{v}')
    p(f'v_and_b32 v{v}, s{sMASK}, v{v}')
    p(f'v_sqrt_f32 v{v}, v{v}')
    for k in range(8):
        p(f'v_sub_f32 v{FL + k}, v{FL + k}, v{m}')
    p(f'v_cvt_pk_bf16_f32 v{v}, v{v}, v{v}')
    p(f'v_and_b32 v{v}, s{sMASK}, v{v}')
    p(f'v_rcp_f32 v{v}, v{v}')
    for i in range(3):
        for k in range(0 if i else 1, 5):
            for dd in range(4):
                d = 4 * i + dd
                f = FL + 2 * d
                p([f'v_sub_f32 v{f}, v{f}, v{m}\nv_sub_f32 v{f + 1}, v{f + 1}, v{m}',
                   f'v_cvt_pk_bf16_f32 v{OWN + d}, v{f}, v{f + 1}',
                   f'v_lshlrev_b32 v{f}, 16, v{OWN + d}\nv_and_b32 v{f + 1}, s{sMASK}, v{OWN + d}',
                   f'v_mul_f32 v{f}, v{f}, v{v}\nv_mul_f32 v{f + 1}, v{f + 1}, v{v}',
                   f'v_cvt_pk_bf16_f32 v{OWN + d}, v{f}, v{f + 1}'][k])
        so, off = (sCNT, 2048 * i) if i < 2 else (sT0, 0)
        p(f'buffer_store_dwordx4 {vr(OWN + 4 * i, 4)}, v{vA + 1}, {sr(S_V, 4)}, s{so} offen offset:{off} sc1', tag='XN')


def ln_signal(p):
    p.add(W(tags=['XN']))
    p('s_barrier')
    p(f's_lshl_b32 s{sCNT}, s{sRB}, 5')
    p(f's_cmp_lg_u32 s{sW}, 0')
    p('s_cbranch_scc1 L_ln_sent')
    p(f'v_mov_b32 v{vTMP}, 1')
    p('s_mov_b64 exec, 1')
    p(f'buffer_atomic_add v{vTMP}, off, {sr(S_HF, 4)}, s{sCNT} offset:16 sc1')
    p('s_mov_b64 exec, -1')
    p('L_ln_sent:')


def ln_wait(p):
    p(f's_cmp_lg_u32 s{sW}, 0')
    p('s_cbranch_scc1 L_ln_ready')
    p(f's_mov_b32 s{sT0}, 0')
    p('L_ln_poll:')
    p(f'buffer_load_dword v{vTMP + 8}, off, {sr(S_HF, 4)}, s{sCNT} offset:16 sc1')
    p(f's_add_u32 s{sT0}, s{sT0}, 1')
    p('s_waitcnt vmcnt(0)')
    p(f'v_cmp_ne_u32 vcc, 32, v{vTMP + 8}')
    p(f's_cmp_ge_u32 s{sT0}, 0x40000')
    p('s_cbranch_scc1 L_ln_ready')
    p('s_cbranch_vccnz L_ln_poll')
    p('L_ln_ready:')
    p('s_barrier')


def setup(p, ST):
    p('s_cmp_ge_u32 s2, 256')
    p('s_cbranch_scc1 L_main_end')
    ST.stamp(p, 'start')
    ln = OPT['ln']
    if ln:
        p(f's_load_dwordx2 s[8:9], s[0:1], {KA_X}')
        p(f's_load_dwordx2 s[10:11], s[0:1], {KA_DBG}')
    p(f's_load_dwordx4 s[48:51], s[0:1], {KA_WG}')
    p(f's_load_dwordx2 s[46:47], s[0:1], {KA_WS}')
    p(f's_load_dwordx4 s[4:7], s[0:1], {KA_K}')
    p(f's_load_dwordx2 s[44:45], s[0:1], {KA_WQ}')
    p(f's_load_dwordx2 s[98:99], s[0:1], {KA_WO}')
    p(f's_load_dwordx2 s[92:93], s[0:1], {KA_WD}')
    p('v_lshrrev_b32 v2, 6, v0')
    p(f'v_and_b32 v{vLANE}, 63, v0')
    p(f'v_readfirstlane_b32 s{sW}, v2')
    p(f'v_lshlrev_b32 v{vL16}, 4, v{vLANE}')
    p(f's_and_b32 s{sT0}, s2, 7')
    p(f's_lshr_b32 s{sT1}, s2, 3')
    p(f's_and_b32 s{sRB}, s{sT1}, 7')
    p(f's_lshr_b32 s{sT1}, s{sT1}, 3')
    p(f's_lshl2_add_u32 s{sH}, s{sT0}, s{sT1}')
    t0, t1, t2 = vTMP, vTMP + 1, vTMP + 2
    if ln:
        ln_loads(p, ST)
    if OPT['cpf']:
        p('s_getpc_b64 s[20:21]')
        p('L_cpf:')
        p('s_mov_b32 s22, L_slow-L_cpf')
        p('s_mov_b32 s23, 0x20000')
        p(f's_lshr_b32 s{sT0}, s2, 3')
        p(f's_lshl2_add_u32 s{sT0}, s{sT0}, s{sW}')
        p(f's_mul_i32 s{sT0}, s{sT0}, 768')
        p(f'v_lshlrev_b32 v{t0}, 7, v{vLANE}')
        p('s_mov_b64 exec, 0x3f')
        p(f'buffer_load_dword v{vTMP + 12}, v{t0}, s[20:23], s{sT0} offen')
        p('s_mov_b64 exec, -1')
    if ln:
        srd(p, S_HF, 10, nbytes=256)
        srd(p, S_V, 46, off_imm=XN_OFF, nbytes=XN_BYTES)
        p(f's_mov_b32 s{sMASK}, 0xffff0000')
        ln_compute(p, ST)
        ST.stamp(p, 'ln done')
        ln_signal(p)
        ST.stamp(p, 'ln sent')
    p(f's_and_b32 s{sT2}, s{sH}, 2')
    for q in range(4):
        p(f's_xor_b32 s{sT0}, s{sT2}, {q}')
        p(f's_mul_i32 s{sXq + q}, s{sT0}, {XN_MB}')
    p(f's_mov_b32 s{sT0}, s{sRB}' if OPT['rot'] else f's_mov_b32 s{sT0}, 0')
    for c in range(6):
        if c:
            p(f's_add_u32 s{sT0}, s{sT0}, 1')
        p(f's_sub_u32 s{sT1}, s{sT0}, 6')
        p(f's_cmp_ge_u32 s{sT0}, 6')
        p(f's_cselect_b32 s{sT0}, s{sT1}, s{sT0}')
        p(f's_mul_i32 s{sRX + c}, s{sT0}, 3072')
        p(f's_mul_i32 s{sRW + c}, s{sT0}, {96 * 9216}')
    p(f's_lshl_b32 s{sLW}, s{sW}, 10')
    t0, t1, t2 = vTMP, vTMP + 1, vTMP + 2
    p(f'v_lshrrev_b32 v{t0}, 3, v{vLANE}')
    p(f'v_bfe_u32 v{t1}, v{vLANE}, 4, 1')
    p(f's_and_b32 s{sT0}, s{sW}, 1')
    p(f's_lshl_b32 s{sT1}, s{sT0}, 1')
    p(f'v_or_b32 v{t1}, s{sT1}, v{t1}')
    p(f'v_lshlrev_b32 v{t1}, 1, v{t1}')
    p(f'v_and_b32 v{t2}, 7, v{vLANE}')
    p(f'v_xor_b32 v{t1}, v{t1}, v{t2}')
    p(f'v_lshlrev_b32 v{t1}, 4, v{t1}')
    p(f's_lshl_b32 s{sT1}, s{sW}, 3')
    p(f'v_add_u32 v{t0}, s{sT1}, v{t0}')
    p(f'v_mul_u32_u24 v{vWG}, 9216, v{t0}')
    p(f'v_add_u32 v{vWG}, v{vWG}, v{t1}')
    p(f'v_lshl_add_u32 v{vWQ}, v{t0}, 13, v{t1}')
    p(f's_lshl_b32 s{sT0}, s{sH}, 8')
    p(f's_lshl_b32 s{sT1}, s{sRB}, 4')
    p(f's_lshl2_add_u32 s{sST}, s{sW}, s{sT1}')
    p(f's_mul_i32 s{sT2}, s{sST}, {XN_MB}')
    p('s_waitcnt lgkmcnt(0)')
    srd(p, S_WG, 48, off_sgpr=sT0, nbytes=WG_BYTES, nbytes_minus_off=True)
    srd(p, S_WU, 50, off_sgpr=sT0, nbytes=WG_BYTES, nbytes_minus_off=True)
    srd(p, S_XN, 46, off_sgpr=sT2, off_imm=XN_OFF, nbytes=4 * XN_MB)
    emit_items(p, [x for c in range(OPT['wpre']) for x in w_dma(c)] if ln else w_dma(0) + xn_loads(0) + w_dma(1))
    p(f's_lshl_b32 s{sT0}, s{sH}, 8')
    srd(p, S_WQ, 44, off_sgpr=sT0, nbytes=WQ_BYTES, nbytes_minus_off=True)
    p(f's_lshl_b32 s{sT2}, s{sST}, 10')
    p(f's_add_u32 s{sTILE}, s46, s{sT2}')
    p(f's_addc_u32 s{sBIG}, s47, 0')
    srd(p, S_OF, 46, off_sgpr=sT2, off_imm=OF_OFF, nbytes=OF_BYTES, nbytes_minus_off=True)
    p(f's_lshl_b32 s{sT2}, s{sH}, 19')
    srd(p, S_K, 4, off_sgpr=sT2, nbytes=KV_HEAD)
    p('s_sub_u32 s6, s6, 16384')
    p('s_subb_u32 s7, s7, 0')
    srd(p, S_V, 6, off_sgpr=sT2, nbytes=KV_HEAD + 16384)
    p(f's_lshr_b32 s{sT0}, s{sH}, 2')
    p(f's_and_b32 s{sT1}, s{sH}, 1')
    p(f's_lshl1_add_u32 s{sT0}, s{sT0}, s{sT1}')
    p(f's_lshl_b32 s{sT2}, s{sT0}, 17')
    p(f's_add_u32 s{sT2}, s{sT2}, {128 * STEP}')
    p(f's_and_b32 s{sT1}, s{sH}, 2')
    for q in range(4):
        p(f's_xor_b32 s{sOFF}, s{sT1}, {q}')
        p(f's_lshl_b32 s{sOFF}, s{sOFF}, 10')
        if q < 2:
            p(f's_add_u32 s{sXS + q}, s{sT2}, s{sOFF}')
        p(f's_lshl_b32 s{sHq + q}, s{sH}, 19')
        p(f's_add_u32 s{sHq + q}, s{sHq + q}, s{sOFF}')
    p(f's_lshl_b32 s{sT0}, s{sT0}, 6')
    p(f's_add_u32 s{sT0}, s{sT0}, 8192')
    p(f's_cmp_ge_u32 s{sW}, 2')
    p('s_cselect_b64 s[44:45], s[50:51], s[48:49]')
    srd(p, S_WX, 44, off_sgpr=sT0, nbytes=WG_BYTES, nbytes_minus_off=True)
    srd(p, S_WF, 46, off_imm=WF_OFF, nbytes=WF_BYTES)
    srd(p, S_FD, 92, nbytes=WD_BYTES)
    srd(p, S_FO, 98, nbytes=WO_BYTES)
    p(f's_lshl2_add_u32 s{sT0}, s2, s{sW}')
    for fs, fd in ((sFS0, sFD0), (sFS2, sFD2)):
        if fs == sFS2:
            p(f's_cmp_ge_u32 s{sT0}, 272')
            p(f's_cselect_b64 {sr(S_F2, 2)}, s[98:99], s[92:93]')
            p(f's_mov_b32 s{S_F2 + 2}, {WD_BYTES}')
            p(f's_cselect_b32 s{S_F2 + 2}, {WO_BYTES}, s{S_F2 + 2}')
            p(f's_mov_b32 s{S_F2 + 3}, 0x20000')
            p(f's_cselect_b32 s{sT2}, {144 * 36864}, 0')
            p(f's_cselect_b32 s{sT1}, 272, 0')
            p(f's_sub_u32 s{sT0}, s{sT0}, s{sT1}')
            p(f's_add_u32 s{sT0}, s{sT0}, 1024')
        p(f's_mul_i32 s{sT1}, s{sT0}, 7282')
        p(f's_lshr_b32 s{sT1}, s{sT1}, 16')
        p(f's_mul_i32 s{sOFF}, s{sT1}, 9')
        p(f's_sub_u32 s{sOFF}, s{sT0}, s{sOFF}')
        p(f's_mul_i32 s{sT1}, s{sT1}, 36864')
        p(f's_lshl_b32 s{fs}, s{sOFF}, 7')
        p(f's_add_u32 s{fs}, s{fs}, s{sT1}')
        p(f's_lshl_b32 s{fd}, s{sOFF}, 12')
        p(f's_add_u32 s{fd}, s{fd}, s{sT1}')
    p(f's_add_u32 s{sFD2}, s{sFD2}, s{sT2}')
    p(f's_lshl_b32 s{sFL}, s{sW}, 13')
    p(f's_add_u32 s{sFL}, s{sFL}, 131072')
    p(f's_cmp_eq_u32 s{sW}, 0')
    p('s_cselect_b32 s3, 6, 0')
    p(f's_lshl_b32 s{sLK}, s{sW}, 12')
    p(f's_mul_i32 s{sLX}, s{sW}, 3072')
    p(f's_mov_b32 s{sMASK}, 0xffff0000')
    p(f's_mov_b32 s{sNL2E}, 0xbfb8aa3b')
    p(f's_mov_b32 s{sSCALE}, 0x3e0293ee')
    p(f'v_lshrrev_b32 v{t0}, 2, v{vLANE}')
    p(f'v_bfe_u32 v{t1}, v{vLANE}, 5, 1')
    p(f'v_lshlrev_b32 v{t1}, 1, v{t1}')
    p(f'v_and_b32 v{t2}, 3, v{vLANE}')
    p(f'v_xor_b32 v{t1}, v{t1}, v{t2}')
    p(f's_and_b32 s{sT0}, s{sW}, 1')
    p(f's_mul_i32 s{sT1}, s{sT0}, 48')
    p(f'v_add_u32 v{t0}, s{sT1}, v{t0}')
    p(f'v_mul_u32_u24 v{vWX}, 9216, v{t0}')
    p(f'v_lshl_add_u32 v{vWX}, v{t1}, 4, v{vWX}')
    p(f'v_lshrrev_b32 v{t0}, 3, v{vLANE}')
    p(f'v_lshrrev_b32 v{t1}, 4, v{vLANE}')
    p(f'v_lshlrev_b32 v{t1}, 1, v{t1}')
    p(f'v_and_b32 v{t2}, 7, v{vLANE}')
    p(f'v_xor_b32 v{t1}, v{t1}, v{t2}')
    p(f'v_mul_u32_u24 v{t0}, 1152, v{t0}')
    p(f'v_lshl_add_u32 v{vFD}, v{t1}, 4, v{t0}')
    p(f'v_lshrrev_b32 v{t0}, 2, v{vLANE}')
    p(f'v_and_b32 v{t1}, 3, v{vLANE}')
    p(f'v_lshlrev_b32 v{t1}, 3, v{t1}')
    p(f'v_lshl_add_u32 v{t2}, v{t0}, 7, v{t1}')
    p(f'v_bfe_u32 v{t0}, v{vLANE}, 3, 2')
    p(f'v_lshl_add_u32 v{t2}, v{t0}, 5, v{t2}')
    p(f'v_add_u32 v{vFA}, s{sFL}, v{t2}')
    for l in addr_gu(slot_base(0)):
        p(l)
    if ln:
        ln_wait(p)
        ST.stamp(p, 'ln ready')
        emit_items(p, xn_loads(0))
    p(f's_add_u32 s{S_HF}, s{sTILE}, {HF_OFF}')
    p(f's_addc_u32 s{S_HF + 1}, s{sBIG}, 0')
    p(f's_lshl_b32 s{sT2}, s{sST}, 10')
    p(f's_sub_u32 s{S_HF + 2}, {HF_BYTES}, s{sT2}')
    p(f's_mov_b32 s{S_HF + 3}, 0x20000')
    p(f's_mov_b32 s{sBIG}, 0x53800000')
    emit_items(p, [] if ln else w_dma(2) + w_dma(3) + xn_loads(1))


def phase_ab(p, ST):
    units = [(c, nb) for c in range(42) for nb in range(4)]
    NU = len(units)
    isx = [CHUNKS[c][0] == 'X' for c, nb in units]
    bufs = []
    for u in range(NU):
        busy = {bufs[u - 1]} if u else set()
        if u >= 2 and isx[u]:
            busy.add(bufs[u - 2])
        bufs.append([b for b in ((0, 1, 2) if isx[u] else (0, 1)) if b not in busy][0])
    mf, gaps, ust = [], [], []
    for u, (c, nb) in enumerate(units):
        cc, ac = CHUNKS[c][2:]
        nq = 2 if isx[u] else 4
        rb = (vWF, vWF + 12, vWF2)[bufs[u]]
        ust.append(len(gaps))
        for qb in range(nq):
            for kk in range(3):
                d = vr(tile(ac, nb, qb, nq), 4)
                mf.append(mfma(d, vr(rb + kk * 4, 4), xn_reg(qb, 3 * cc + kk), '0' if (cc == 0 and kk == 0) else d))
                gaps.append([])
    ust.append(len(gaps))
    reg = {nm: (ust[4 * a], ust[4 * b]) for nm, a, b in REGIONS}
    head = []
    win = slot_base(0)
    rpos = 0
    for u, (c, nb) in enumerate(units):
        kind = CHUNKS[c][0]
        e = c // 2
        base = slot_base(e) + (c & 1) * CH
        at = None if u == 0 else max(rpos, ust[u - 2] if (isx[u] and isx[u - 1]) else ust[u - 1])
        fix = []
        if nb == 0:
            if c == 24:
                win = slot_base(e)
                fix = addr_x(win)
            elif c == 30:
                win = slot_base(e)
                fix = addr_q(win)
            elif not (win <= base and base + CH <= win + 65536):
                d = slot_base(e) - win
                win = slot_base(e)
                fix = [f'v_add_u32 v{vA + k}, {d & 0xffffffff:#x}, v{vA + k}' for k in range(4 if kind in 'GU' else 2)]
        if fix:
            lo = max(rpos, at - 6)
            if lo < at:
                fill(gaps, [Item(x) for x in fix], start=lo, end=at, lat=1)
            else:
                gaps[at - 1] += [I(x) for x in fix]
        if nb == 0 and (c & 1) == 0:
            tags = [('W', e)] + ([('K', 0), ('K', 1)] if e == 20 else [])
            if u == 0:
                head += [W(tags=tags), I('s_barrier')]
            else:
                g = gaps[at - 1]
                g[0:0] = [W(tags=tags), I('s_barrier')]
        rb = (vWF, vWF + 12, vWF2)[bufs[u]]
        for kk in range(3):
            for t in range(2):
                o = base - win
                if kind in 'GU':
                    a, o = vA + nb, o + kk * 4096 + t * 512
                elif kind == 'Q':
                    a, o = vA + (nb >> 1), o + kk * 4096 + t * 512 + (nb & 1) * 8
                else:
                    a, o = vA + (nb & 1), o + (nb >> 1) * 6144 + kk * 2048 + t * 256
                x = I(f'ds_read_b64_tr_b16 {vr(rb + kk * 4 + 2 * t, 2)}, v{a} offset:{o}')
                if u == 0:
                    head.append(x)
                else:
                    gaps[at].append(x)
                    at += 1
            if u:
                regs = [f'v{rb + kk * 4 + k}' for k in range(4)]
                g = gaps[ust[u] - 1 + kk]
                if g and g[0].kind == 'autowait':
                    g[0].reads += regs
                else:
                    g.insert(0, W(regs=regs))
        rpos = at if u else 0
    early = {0: 'w4 w5', 1: 'x2', 2: 'w6 w7', 3: 'x3', 4: 'w8 w9', 5: 'x4', 6: 'w10 w11', 7: 'x5', 8: 'w12 w13', 9: 'w14',
             10: 'w15 w16', 11: 'w17'}
    if OPT['ln']:
        early.update({0: 'x1', 1: 'x2', 2: 'w6 w7', 3: 'x3', 4: 'w8 w9', 5: 'x4', 6: 'w10 w11', 7: 'x5', 8: 'w12 w13',
                      9: 'w14 w15', 10: 'w16', 11: 'w17'})
        if OPT['wpre'] == 4:
            early.update({0: 'x1', 1: 'w4 w5', 2: 'x2', 3: 'w6 w7', 4: 'x3', 5: 'w8 w9', 6: 'x4', 7: 'w10 w11', 8: 'x5 w12',
                          9: 'w13 w14', 10: 'w15 w16', 11: 'w17'})
        if OPT['wpre'] == 2:
            early.update({0: 'w2 w3 x1', 1: 'w4 w5', 2: 'x2', 3: 'w6 w7', 4: 'x3', 5: 'w8 w9', 6: 'x4', 7: 'w10 w11', 8: 'x5 w12',
                          9: 'w13 w14', 10: 'w15 w16', 11: 'w17'})
    for c in range(42):
        vm = []
        if c < 12:
            for k in early[c].split():
                vm += w_dma(int(k[1:])) if k[0] == 'w' else xn_loads(int(k[1:]))
        elif c + 6 < 42:
            vm += w_dma(c + 6)
        kv = {34: ('K', 0), 35: ('K', 1), 36: ('K', 2), 37: ('K', 3), 38: ('V', 0), 40: ('V', 1), 41: ('V', 2)}.get(c)
        if kv:
            vm += kv_dma(kv[0], kv[1], kv[1])
        g0, lim = ust[4 * c], ust[4 * c + 3] - 1
        free = [gi for gi in range(g0, lim) if slots(gaps[gi]) == 0]
        if len(free) < len(vm):
            free = list(range(g0 + 1, lim))
        step = len(free) / max(1, len(vm))
        put_vmem(gaps, vm, [free[int(n * step + step * 0.5)] for n in range(len(vm))])
    e0 = reg['GU'][1]
    for nb in range(4):
        for qb in range(4):
            t = nb * 4 + qb
            tb, sg = tile(vACC1, nb, qb), sg_reg(nb, qb)
            lo = e0 - 48 + 3 * t + 2 + 7
            fill(gaps, [Item(f'v_cvt_pk_bf16_f32 v{sg + dd}, v{tb + 2 * dd}, v{tb + 2 * dd + 1}') for dd in range(2)],
                 start=lo, end=min(lo + 8, e0 + 3 * t - 1))
    for nm, st, cut in (('G2', stream_h_direct(vACC0), 0), ('U2', stream_silu(vACC1), 0), ('X', stream_finish_h(vACC0, 1), 0),
                        ('Q1', [Item(x) for x in kv_dma_addr()] + stream_x_epi(vACC1), 0),
                        ('Q2', stream_q_epi(vACC0, 0) + [Item(x) for x in kv_read_addr()], 48)):
        fill(gaps, st, start=reg[nm][0] + (12 if nm == 'G2' else 2), end=reg[nm][1] - cut)
    n = len(gaps)
    nbs = {}
    for ksub in range(2):
        for half in range(2):
            for qb in range(4):
                nbs[(ksub, half, qb)] = n - 48 + (2 * ksub + half) * 12 + qb * 3 + 2 + 6
        for qb in range(4):
            nbs[('w', ksub, qb)] = n
    ptrs = [I(f's_load_dwordx2 {sr(F.pX, 2)}, s[0:1], {KA_X}'), I(f's_load_dwordx4 {sr(F.pOUT, 4)}, s[0:1], {KA_OUT}')] if OPT['fused'] else [I('s_nop 1')]
    gaps.append(ptrs + k_reads(0, 0, 0) + k_reads(0, 1, 1))
    gaps[-1] += [I(f'v_accvgpr_write_b32 a{aONE + k}, v{vTMP + 3}') for k in range(4)]
    gaps[n - 50].append(I(f'v_mov_b32 v{vTMP + 3}, 0x3f803f80'))
    fill(gaps, stream_q_epi(vACC1, 1, nbs), start=n - 48, end=n + 1, look=200)
    for x in head:
        p.add(x)
    ST.stamp(p, 'first reads')
    for nm, _, _ in REGIONS:
        p.mark('r' + nm)
        a, b = reg[nm]
        weave(p, mf[a:b], gaps[a:b])
        if nm == 'Q2':
            for x in gaps[-1]:
                p.add(x)
        ST.stamp(p, nm)
    p.mark('ps7')


def attention(p, ST, force_slow):
    p(f's_mov_b32 s{sTILE}, {4 * 16384}')
    if OPT['fused']:
        for l in F.flag_setup():
            p(l)
        p(f's_and_b32 s{sT0}, s2, 1')
        p(f's_lshr_b32 s{sT1}, s2, 3')
        p(f's_lshl_b32 s{sT0}, s{sT0}, 5')
        p(f's_add_u32 s{sT0}, s{sT0}, s{sT1}')
        p(f's_lshl_b32 s{sT0}, s{sT0}, 7')
        p(f's_bfe_u32 s{sT1}, s2, 0x20001')
        p(f's_lshl2_add_u32 s{sT0}, s{sT1}, s{sT0}')
        p(f'v_lshl_add_u32 v{vFZ}, v{vLANE}, 6, s{sT0}')
        p(f's_lshl_b32 s{sT0}, s{sRB}, 7')
        p(f's_lshl2_add_u32 s{sT0}, s{sH}, s{sT0}')
        p(f's_add_u32 s{sT0}, s{sT0}, {F.FLAG_O}')
        p(f'v_writelane_b32 v{vFZ}, s{sT0}, 2')
        p(f'v_mov_b32 v{vTMP}, 0')
        p('s_mov_b64 exec, 7')
        p(f'buffer_store_dword v{vTMP}, v{vFZ}, {sr(F.S_FLAG, 4)}, 0 offen sc1')
        p('s_mov_b64 exec, -1')
    p('s_nop 1')
    mf = qk_block(0, True) + qk_block(1, True) + qk_block(2) + qk_block(3)
    gaps = [[] for _ in range(64)]
    for n, x in enumerate(k_reads(0, 2, 0)):
        gaps[16 + n].append(x)
    for n, x in enumerate(k_reads(0, 3, 1)):
        gaps[32 + n].append(x)
    gaps[47] += [W(tags=[('K', 1), ('V', 0)], lgkm0=True), I('s_barrier')]
    kr = k_reads(1, 0, 0)
    for n, x in enumerate(kr):
        gaps[48 + n].append(x)
    for n, x in enumerate(v_reads(0, 0, aV)):
        gaps[52 + n].append(x)
    gaps[63].append(W(regs=wr(kr)))
    st = []
    for qb in range(4):
        s, m = vS + qb * 4, vNEGM + qb * 4
        nb = 4 * qb + 3 + 8
        st.append(Item(f'v_max3_f32 v{m}, v{s}, v{s + 1}, v{s + 2}', nb=nb))
        st.append(Item(f'v_max_f32 v{m}, v{m}, v{s + 3}', nb=nb))
    for k in range(6):
        for qb in range(4):
            st.append(Item(xlane('v_max_f32', vNEGM + qb * 4, vTMP + qb)[k]))
    for qb in range(4):
        st.append(Item(f'v_sub_f32 v{vNEGM + qb * 4}, 0, v{vNEGM + qb * 4}'))
    for r in range(1, 4):
        for qb in range(4):
            st.append(Item(f'v_mov_b32 v{vNEGM + qb * 4 + r}, v{vNEGM + qb * 4}'))
    st += sm_stream(0, 0, sub=True, init=True)
    fill(gaps, st, start=8, end=32)
    fill(gaps, sm_stream(1, 0, sub=True), start=32, end=47)
    fill(gaps, sm_stream(2, 0), start=48, end=64)
    weave(p, mf, gaps)
    ST.stamp(p, 'att prologue')

    sk = [period_skeleton(T) for T in range(4)]
    G = [g for T in range(4) for g in sk[T][1]]
    place_softmax(G)
    mf0, g0 = period_skeleton(0, first=True)
    for gi in range(PER):
        g0[gi] = [clone(x) for x in sk[0][1][gi] if x.meta.get('own') != (3, 3)]
    fill(g0, [Item(x.ins, nb=4) if n == 0 else x for n, x in enumerate(sm_stream(3, 0))], start=0, end=16)
    mf1, g1 = period_skeleton(1)
    g1 = [[clone(x) for x in g] for g in sk[1][1]]
    if OPT['fmt']:
        fmt_in(g0, 0, 0)
        fmt_in(g0, 1, BLK[1] + 14)
        fmt_out(g0, 0, BLK[2] + 14)
        fmt_in(g0, 2, BLK[3] + 18)
        fmt_out(g1, 1, 2)
        fmt_out(g1, 2, BLK[2])
    p.mark('t0')
    weave(p, mf0, g0)
    p.mark('t1')
    weave(p, mf1, g1)
    p(f's_mov_b32 s{sCNT}, 7')
    p('s_branch L_att_p2')
    mf30, g30 = period_skeleton(2, final=True)
    for gi in range(PER):
        g30[gi] += [clone(x) for x in sk[2][1][gi] if 'own' in x.meta]
    fused = OPT['fused']
    if fused:
        a, b = F.early_setup()
        lane = [f'v_and_b32 v{F.vFL + 2}, 7, v{vLANE}', f'v_lshlrev_b32 v{F.vFL + 3}, 5, v{F.vFL + 2}', f'v_lshlrev_b32 v{F.vFL + 2}, 2, v{F.vFL + 2}']
        fill(g30, [Item(x) for x in DBG_SRD + lane], start=0, end=9, look=3, lat=1)
        g30[9].append(F.POLLS['a']())
        fill(g30, [Item(x) for x in a], start=10, end=42, look=4, lat=1)
        g30[43] += [I(x) for x in b]
        g30[45] += [I('s_waitcnt vmcnt(0)'), I('s_barrier')] + F.check('a')
        ld = F.early_loads(' sc1')
        force(g30, ld[:17], [47 + 4 * n for n in range(17)])
    p.mark('p0')
    p('.p2align 6')
    p('L_att_p0:')
    weave(p, *sk[0])
    p.mark('p1')
    put_head(sk[1][1], I(f's_sub_u32 s{sCNT}, s{sCNT}, 1'), 120, 128)
    put_head(sk[1][1], I(f's_cmp_eq_u32 s{sCNT}, 0'), 129, 130)
    weave(p, *sk[1])
    p('s_cbranch_scc1 L_att_last')
    p.mark('p2')
    p('L_att_p2:')
    weave(p, *sk[2])
    p.mark('p3')
    if fused:
        put_head(sk[3][1], I(f's_cmp_eq_u32 s{sCNT}, s3'), BLK[3] + 16, BLK[3] + 16)
        sk[3][1][BLK[3] + 16] += [I('s_cbranch_scc1 L_flag_a'), I('L_flag_a_b:')]
    weave(p, *sk[3])
    p('s_branch L_att_p0')
    p.mark('last')
    p('L_att_last:')
    ST.stamp(p, 'att loop')
    weave(p, mf30, g30)
    p.mark('t31')
    ST.stamp(p, 'T30')
    rest = [Item(clone(x)) for g in sk[3][1] for x in g if x.meta.get('own') == (2, 3)]
    order = [(db, 0) for db in range(8)] + [(db, 1) for db in range(8)]
    fr = {(0, 0): aV, (0, 1): aV + 4}
    for n, key in enumerate(k for k in order if k[0]):
        fr[key] = aK + (n % 8) * 4
    mf = []
    for db, kk in order:
        if db == 0:
            mf += [ones_mfma(1, kk, qb) for qb in MS]
        for qb in range(4):
            d = ar(aO + (db * 4 + qb) * 4, 4)
            mf.append(mfma(d, ar(fr[(db, kk)], 4), vr(p_reg(1, kk, qb), 4), d))
    nm = len(mf)
    h = nm // 2
    gaps = [[] for _ in range(nm + 1)]
    rd = [x for key in order if key[0] and key not in ((1, 0), (2, 0)) for x in v_reads(3, key[0], fr[key], (key[1],))]
    for n, x in enumerate(rd):
        gaps[2 * n].append(x)
    if fused:
        put_vmem(gaps, ld[17:], [1 + 2 * n for n in range(13)])
    st = list(rest)
    for k in range(6):
        for qb in VS:
            st.append(Item(xlane('v_add_f32', vL + qb, vTMP + qb)[k]))
    fill(gaps, st, start=0, end=h - 2)
    st = [Item(f'v_accvgpr_read_b32 v{vL + qb}, a{aLS + 4 * (qb >> 1)}', nb=h + NMS + 5) for qb in MS]
    st = [Item(f'v_rcp_f32 v{vRL + qb}, v{vL + qb}') for qb in VS] + st + [Item(f'v_rcp_f32 v{vRL + qb}, v{vL + qb}') for qb in MS]
    fill(gaps, st, start=h, end=h + 13)
    thr = '0' if force_slow else f's{sBIG}'
    for qb in range(4):
        gaps[h + 13 + qb] += [I(f'v_cmp_nge_f32 vcc, {thr}, v{vL + qb}'), I('s_cbranch_vccnz L_slow')]
    if fused:
        tmpsets = [F.vACS + 12 * k for k in range(4)]
        fill(gaps, [Item(x) for x in F.late_setup()], start=h - 8, end=nm - 8, look=4, lat=1)
        force(gaps, [Item(x) for x in F.fin_head()], [nm - 8, nm - 8] + list(range(nm - 7, nm - 1)))
    else:
        tmpsets = [vS, vS + 12, vP, vP + 12]
        st = []
        for j in range(4):
            st += o_epi_items(j, tmpsets, nb=h + NMS + 8 * j + 7 + 6)
        fill(gaps, st, start=h + 17, end=nm + 1, look=30)
    weave(p, mf, gaps[:nm])
    if not fused:
        p('s_nop 4')
        for x in gaps[nm]:
            p.add(x)
    return tmpsets


def slow_path(p, tmpsets):
    p.mark('slow')
    p('L_slow:')
    p('s_waitcnt vmcnt(0) lgkmcnt(0)')
    p('s_nop 7')
    vM, vKG, vVG, vAL = vNEGM, vTMP + 4, vTMP + 5, vNEGM + 4
    for i in range(128):
        p(f'v_accvgpr_write_b32 a{aO + i}, 0')
    for qb in range(4):
        p(f'v_mov_b32 v{vM + qb}, 0xff800000')
        p(f'v_mov_b32 v{vL + qb}, 0')
    p(f'v_and_b32 v{vTMP}, 15, v{vLANE}')
    p(f'v_lshrrev_b32 v{vTMP + 1}, 4, v{vLANE}')
    p(f'v_lshlrev_b32 v{vKG}, 8, v{vTMP}')
    p(f'v_lshl_add_u32 v{vKG}, v{vTMP + 1}, 4, v{vKG}')
    p(f'v_subrev_u32 v{vVG}, s{sLK}, v{vVD}')
    p(f'v_subrev_u32 v{vVG + 1}, s{sLK}, v{vVD + 1}')
    p(f's_lshl_b32 s{sT0}, s{sW}, 13')
    p(f's_add_u32 s{sT0}, s{sT0}, 131072')
    p(f's_sub_u32 s{sT1}, s{sT0}, 65536')
    for db in range(8):
        p(f'v_add_u32 v{vVA + db}, s{sT1}, v{vVA + db}')
    p(f's_mov_b32 s{sTILE}, 0')
    p.mark('slow_loop')
    p('L_slow_loop:')
    for kb in range(2):
        p(f's_add_u32 s{sOFF}, s{sTILE}, {kb * 4096}')
        for ks in range(4):
            p(f'buffer_load_dwordx4 {ar(aK + kb * 16 + ks * 4, 4)}, v{vKG}, {sr(S_K, 4)}, s{sOFF} offen offset:{64 * ks}')
    for hf in range(2):
        p(f's_add_u32 m0, s{sT0}, {hf * 4096}')
        p(f's_add_u32 s{sOFF}, s{sTILE}, {hf * 4096 + 16384}')
        for pc in range(4):
            p(f'buffer_load_dwordx4 v{vVG + (pc & 1)}, {sr(S_V, 4)}, s{sOFF} offen offset:{1024 * pc} lds')
    p('s_waitcnt vmcnt(0)')
    for db in range(8):
        for t in range(2):
            p(f'ds_read_b64_tr_b16 {ar(aV + db * 4 + 2 * t, 2)}, v{vVA + db} offset:{t * 4096}')
    for x in qk_block(0, True) + qk_block(1, True):
        p.add(x)
    p('s_nop 7')
    for qb in range(4):
        s0, s1, t, t2 = vS + qb * 4, vS + 16 + qb * 4, vTMP, vTMP + 1
        p(f'v_max3_f32 v{t}, v{s0}, v{s0 + 1}, v{s0 + 2}')
        p(f'v_max3_f32 v{t}, v{t}, v{s0 + 3}, v{s1}')
        p(f'v_max3_f32 v{t}, v{t}, v{s1 + 1}, v{s1 + 2}')
        p(f'v_max3_f32 v{t}, v{t}, v{s1 + 3}, v{vM + qb}')
        for x in xlane('v_max_f32', t, t2):
            if 'permlane' in x:
                p('s_nop 1')
            p(x)
        p(f'v_sub_f32 v{vAL + qb}, v{vM + qb}, v{t}')
        p(f'v_exp_f32 v{vAL + qb}, v{vAL + qb}')
        p(f'v_mov_b32 v{vM + qb}, v{t}')
        p(f'v_mul_f32 v{vL + qb}, v{vL + qb}, v{vAL + qb}')
        for kb in range(2):
            for r in range(4):
                s = vS + kb * 16 + qb * 4 + r
                p(f'v_sub_f32 v{s}, v{s}, v{t}')
                p(f'v_exp_f32 v{s}, v{s}')
                p('s_nop 0')
                p(f'v_add_f32 v{vL + qb}, v{vL + qb}, v{s}')
            for dd in range(2):
                s = vS + kb * 16 + qb * 4 + 2 * dd
                p(f'v_cvt_pk_bf16_f32 v{p_reg(0, 0, qb) + kb * 2 + dd}, v{s}, v{s + 1}')
        for db in range(8):
            for r in range(4):
                a = aO + (db * 4 + qb) * 4 + r
                p(f'v_accvgpr_read_b32 v{t2}, a{a}')
                p(f'v_mul_f32 v{t2}, v{t2}, v{vAL + qb}')
                p(f'v_accvgpr_write_b32 a{a}, v{t2}')
    p('s_nop 1')
    for db in range(8):
        for qb in range(4):
            d = ar(aO + (db * 4 + qb) * 4, 4)
            p.add(mfma(d, ar(aV + db * 4, 4), vr(p_reg(0, 0, qb), 4), d))
    p('s_nop 7')
    p(f's_add_u32 s{sTILE}, s{sTILE}, 8192')
    p(f's_cmp_lt_u32 s{sTILE}, {KV_HEAD}')
    p('s_cbranch_scc1 L_slow_loop')
    p.mark('slow_end')
    for qb in range(4):
        for x in xlane('v_add_f32', vL + qb, vTMP):
            if 'permlane' in x:
                p('s_nop 1')
            p(x)
        p(f'v_rcp_f32 v{vRL + qb}, v{vL + qb}')
    p('s_nop 0')
    if OPT['fused']:
        for l in F.late_setup():
            p(l)
        p('s_waitcnt vmcnt(0)')
        for x in F.fin_head():
            p.add(x)
        p('s_waitcnt lgkmcnt(0)')
        p('s_branch L_fin_join')
    else:
        for j in range(4):
            emit_items(p, o_epi_items(j, tmpsets))


def gen_main(name='main_kernel', force_slow=False, stamps=False):
    p = Prog()
    ST = Stamps(stamps, 252, 32)
    p.mark('start')
    setup(p, ST)
    phase_ab(p, ST)
    tmpsets = attention(p, ST, force_slow)
    ST.stamp(p, 'last issued')
    p.mark('att_end')
    if OPT['fused']:
        p('L_fin_join:')
        outline = F.fin_body(p, ST, True, [x for j in range(4) for x in o_epi_items(j, tmpsets)])
    if stamps:
        p('s_waitcnt vmcnt(0)')
    ST.stamp(p, 'stores done')
    ST.dump(p, 0, vTMP)
    p.mark('end')
    p('L_main_end:')
    p('s_endpgm')
    slow_path(p, tmpsets)
    p('s_endpgm')
    p.mark('fin')
    if OPT['fused']:
        outline(p, [f's_lshl_b32 s{F.fT1}, s{sRB}, 7', f's_lshl2_add_u32 s{F.fT1}, s{sH}, s{F.fT1}', f's_add_u32 s{F.fT1}, s{F.fT1}, {F.FLAG_O}'])
        F.spin(p, 'a')
        p('L_flag_a:')
        for l in DBG_SRD:
            p(l)
        p(f's_and_b32 s{sT0}, s2, 7')
        p(f's_lshl_b32 s{sT0}, s{sT0}, 5')
        p(f'v_mov_b32 v{vTMP}, 1')
        p('s_mov_b64 exec, 1')
        p(f'buffer_atomic_add v{vTMP}, off, {sr(F.S_DBG, 4)}, s{sT0} sc1')
        p('s_mov_b64 exec, -1')
        p('s_branch L_flag_a_b')
    S = p.seg
    main = S('start', 'p0') + S('p2', 'last') + S('p0', 'last') + S('p0', 'p2') + S('last', 'end')
    settle([main, S('slow', 'slow_end') + S('slow_loop', 'fin')], name)
    if not QUIET[0]:
        nms = ['r' + r[0] for r in REGIONS] + ['ps7']
        for a, b in zip(nms, nms[1:]):
            estimate(S(a, b), a)
        estimate(S('ps7', 't0'), 'att prologue')
        estimate(S('t0', 't1'), 'T0')
        estimate(S('t1', 'p0'), 'T1')
        for a, b in (('p0', 'p1'), ('p1', 'p2'), ('p2', 'p3'), ('p3', 'last'), ('last', 't31'), ('t31', 'att_end')) + ((('fin0', 'fin1'), ('fin1', 'fin2')) if OPT['fused'] else ()):
            estimate(S(a, b), a)
    return header(name) + render(p.ins), descriptor(name, 512, 102, 256), ST.names
```

```python
import sys, os
sys.path.insert(0, os.path.dirname(__file__))
import k_ln, k_main, k_fin5 as k_fin
NAME = 'recurrent_scan__mha_block_cached__swiglu_ffn__prompt'

def build(out, force_slow=False, stamps=False):
    ref = open(f'cdna_kernels/{NAME}.s.ref').read().splitlines()
    head = [l for l in ref if l.startswith(';') and '@launch' not in l and 'Override launch' not in l and 'grid=ceil' not in l]
    head = head[:13]
    fused = k_main.OPT['fused']
    single = fused and k_main.OPT['ln']
    if single:
        ks = [k_main.gen_main(NAME + '_kernel', force_slow=force_slow, stamps=stamps)]
    else:
        ks = [k_ln.gen_ln(), k_main.gen_main(force_slow=force_slow, stamps=stamps)] + ([] if fused else [k_fin.gen_fin(stamps=stamps)])
    txt = '\n'.join(head) + '\n'
    if single:
        txt += '; @launch grid=(256,1,1) block=(256,1,1) lds=163840\n'
    else:
        txt += '; @launch kernel=ln_kernel grid=(256,1,1) block=(64,1,1) lds=0\n'
        txt += '; @launch kernel=main_kernel grid=(256,1,1) block=(256,1,1) lds=163840\n'
    if not fused:
        txt += '; @launch kernel=fin_kernel grid=(256,1,1) block=(256,1,1) lds=147456\n'
    txt += '.amdgcn_target "amdgcn-amd-amdhsa--gfx950"\n.text\n'
    for body, d, nm in ks:
        txt += body
    txt += '.section .rodata,"a"\n'
    for body, d, nm in ks:
        txt += '.p2align 6\n' + d
    if stamps:
        import json
        json.dump([k[2] for k in ks if k[2]], open(out + '.json', 'w'))
    open(out, 'w').write(txt)
    print('wrote', out, len(txt), 'bytes')

if __name__ == '__main__':
    build(f'cdna_kernels/{NAME}.s')
    import asmlib
    asmlib.QUIET[0] = True
    build('slow.s', force_slow=True)
    build('stamp.s', stamps=True)
    import common
    common.DBGDUMP[0] = [8, 14, 17, 25, 29, 33]
    build('dbg.s', stamps=True)
    common.DBGDUMP[0] = None
    for a in sys.argv[1:]:
        nm, kv = a.split(':')
        old = dict(k_main.OPT); oldf = dict(k_fin.OPT)
        for x in kv.split(','):
            k, v = x.split('=')
            if k.startswith('f_'):
                k_fin.OPT[k[2:]] = int(v)
            else:
                k_main.OPT[k] = int(v)
        build(f'dev/{nm}.s', stamps=True)
        build(f'dev/{nm}_ns.s')
        k_main.OPT.update(old); k_fin.OPT.update(oldf)
```

```python
import re

REG_RE = re.compile(r'^(-|abs\()?([vas])(\d+)\)?$')
RNG_RE = re.compile(r'^(-)?([vas])\[(\d+):(\d+)\]$')


def regs_of(tok):
    tok = tok.strip()
    m = REG_RE.match(tok)
    if m:
        return [m.group(2) + m.group(3)]
    m = RNG_RE.match(tok)
    if m:
        return [m.group(2) + str(i) for i in range(int(m.group(3)), int(m.group(4)) + 1)]
    if tok in ('vcc', 'exec', 'm0', 'scc'):
        return [tok]
    if tok in ('vcc_lo', 'vcc_hi'):
        return ['vcc']
    if tok in ('exec_lo', 'exec_hi'):
        return ['exec']
    return []


TRANS = ('v_exp_f32', 'v_log_f32', 'v_rcp_f32', 'v_rsq_f32', 'v_sqrt_f32', 'v_sin_f32', 'v_cos_f32', 'v_rcp_iflag_f32')


class Ins:
    __slots__ = ('text', 'op', 'kind', 'reads', 'writes', 'ops', 'meta')

    def __init__(self, text, **meta):
        self.text = text
        self.meta = meta
        t = text.split(';')[0].strip()
        if t.endswith(':') or t.startswith('.') or not t:
            self.op = t
            self.kind = 'label'
            self.reads = []
            self.writes = []
            self.ops = []
            return
        parts = t.split(None, 1)
        op = parts[0]
        self.op = op
        rest = parts[1] if len(parts) > 1 else ''
        ops = []
        cur = ''
        depth = 0
        for ch in rest:
            if ch in '[(':
                depth += 1
            if ch in '])':
                depth -= 1
            if ch == ',' and depth == 0:
                ops.append(cur.strip())
                cur = ''
            else:
                cur += ch
        if cur.strip():
            ops.append(cur.strip())
        mods = ''
        if ops:
            last = ops[-1].split(None, 1)
            ops[-1] = last[0]
            mods = last[1] if len(last) > 1 else ''
        self.ops = ops
        R = []
        W = []
        base = re.sub(r'_(e32|e64|dpp|sdwa)$', '', op)
        if op.startswith('v_mfma'):
            self.kind = 'mfma'
            W = regs_of(ops[0])
            R = regs_of(ops[1]) + regs_of(ops[2]) + regs_of(ops[3])
            self.meta['A'] = regs_of(ops[1])
            self.meta['B'] = regs_of(ops[2])
            self.meta['C'] = regs_of(ops[3])
            self.meta['passes'] = 4 if '16x16x32' in op else 8
        elif op.startswith('ds_read') or op.startswith('ds_bpermute') or op.startswith('ds_swizzle'):
            self.kind = 'ds'
            W = regs_of(ops[0])
            for o in ops[1:]:
                R += regs_of(o)
        elif op.startswith('ds_write'):
            self.kind = 'ds'
            for o in ops:
                R += regs_of(o)
        elif op.startswith('buffer_load') or op.startswith('global_load'):
            self.kind = 'vmem'
            if ' lds' in (' ' + mods) or op.startswith('global_load_lds'):
                for o in ops:
                    R += regs_of(o)
                R.append('m0')
                self.meta['dma'] = True
            else:
                W = regs_of(ops[0])
                for o in ops[1:]:
                    R += regs_of(o)
        elif op.startswith('buffer_store') or op.startswith('global_store'):
            self.kind = 'vmem'
            for o in ops:
                R += regs_of(o)
            self.meta['store'] = True
            dtok = ops[0] if op.startswith('buffer') else ops[1]
            self.meta['data'] = regs_of(dtok)
            self.meta['wide'] = op.endswith('x4') or op.endswith('x3')
        elif op.startswith('buffer_atomic') or op.startswith('global_atomic'):
            self.kind = 'vmem'
            for o in ops:
                R += regs_of(o)
            if 'sc0' in mods:
                W = regs_of(ops[0])
        elif op in ('buffer_wbl2', 'buffer_inv'):
            self.kind = 'vmem'
        elif op == 's_waitcnt':
            self.kind = 'wait'
            m = re.search(r'vmcnt\((\d+)\)', t)
            self.meta['vm'] = int(m.group(1)) if m else None
            m = re.search(r'lgkmcnt\((\d+)\)', t)
            self.meta['lgkm'] = int(m.group(1)) if m else None
        elif op == 's_nop':
            self.kind = 'nop'
            self.meta['n'] = int(ops[0], 0) + 1
        elif op == 's_barrier':
            self.kind = 'barrier'
        elif op.startswith('s_cbranch') or op == 's_branch' or op == 's_endpgm':
            self.kind = 'branch'
            if 'scc' in op:
                R = ['scc']
            if 'vcc' in op:
                R = ['vcc']
            if 'exec' in op:
                R = ['exec']
        elif op.startswith('s_load') or op in ('s_memtime', 's_memrealtime'):
            self.kind = 'smem'
            W = regs_of(ops[0])
            for o in ops[1:]:
                R += regs_of(o)
        elif op.startswith('s_'):
            self.kind = 'salu'
            if op.startswith('s_cmp') or op.startswith('s_bitcmp'):
                for o in ops:
                    R += regs_of(o)
                W = ['scc']
            elif op in ('s_setprio', 's_sleep'):
                pass
            else:
                W = regs_of(ops[0])
                for o in ops[1:]:
                    R += regs_of(o)
                if 'saveexec' in op:
                    W = W + ['exec', 'scc']
                    R = R + ['exec']
                elif op.startswith('s_cselect') or op.startswith('s_addc') or op.startswith('s_subb') or op.startswith('s_cmov'):
                    R = R + ['scc']
                    if not op.startswith('s_cselect') and not op.startswith('s_cmov'):
                        W = W + ['scc']
                elif not (op.startswith('s_mov') or op.startswith('s_mul') or op.startswith('s_getreg')):
                    W = W + ['scc']
                if op in ('s_addk_i32', 's_mulk_i32') or op.startswith('s_cmov'):
                    R = R + regs_of(ops[0])
        elif op.startswith('v_'):
            self.kind = 'trans' if base in TRANS else 'valu'
            if base.startswith('v_cmp'):
                W = regs_of(ops[0])
                for o in ops[1:]:
                    R += regs_of(o)
                if base.startswith('v_cmpx'):
                    W = W + ['exec']
            elif base.startswith('v_permlane') and 'swap' in base:
                W = regs_of(ops[0]) + regs_of(ops[1])
                R = list(W)
                self.meta['permlane'] = True
            elif base in ('v_add_co_u32', 'v_sub_co_u32', 'v_subrev_co_u32', 'v_addc_co_u32', 'v_subb_co_u32', 'v_div_scale_f32'):
                W = regs_of(ops[0]) + regs_of(ops[1])
                for o in ops[2:]:
                    R += regs_of(o)
            else:
                W = regs_of(ops[0])
                for o in ops[1:]:
                    R += regs_of(o)
                if base in ('v_fmac_f32', 'v_dot2c_f32_bf16', 'v_writelane_b32') or op.endswith('_dpp'):
                    R = R + W
                if base == 'v_cndmask_b32' and len(ops) == 3:
                    R.append('vcc')
                if base == 'v_div_fmas_f32':
                    R.append('vcc')
            if op.endswith('_dpp'):
                self.meta['dpp'] = True
            if base in ('v_readfirstlane_b32', 'v_readlane_b32'):
                self.meta['readlane'] = True
        else:
            raise ValueError('unknown instruction: ' + text)
        self.reads = R
        self.writes = W


class Prog:
    def __init__(self):
        self.ins = []
        self.marks = {}

    def __call__(self, text, **meta):
        for line in text.split('\n'):
            line = line.strip()
            if line:
                self.ins.append(Ins(line, **meta))

    def add(self, ins):
        self.ins.append(ins)

    def mark(self, name):
        self.marks[name] = len(self.ins)

    def text(self):
        out = []
        for i in self.ins:
            if i.kind == 'label':
                out.append(i.text)
            else:
                out.append('    ' + i.text)
        return '\n'.join(out) + '\n'

    def seg(self, a, b):
        return self.ins[self.marks[a]:self.marks[b]]


def check_trace(trace, name='', verbose=True, fix=False):
    errs = []
    vm = []
    lg = []
    pos = 0
    last_mfma_w = {}
    last_mfma_c = {}
    last_valu_w = {}
    last_trans_w = {}
    last_valu_sw = {}
    last_salu_m0 = -100
    last_store_data = {}
    need_raw = {4: 8, 8: 12}
    need_cwar = {4: 3, 8: 7}
    need_cpart = {4: 6, 8: 10}

    def err(i, ins, msg, deficit=None):
        if fix and deficit is not None:
            ins.meta['nop_new'] = max(ins.meta.get('nop_new', 0), deficit)
        errs.append(f'{name}[{i}] {ins.text}  :: {msg}')

    for i, ins in enumerate(trace):
        k = ins.kind
        if k == 'label':
            continue
        if k == 'wait':
            if ins.meta['vm'] is not None:
                while len(vm) > ins.meta['vm']:
                    vm.pop(0)
            if ins.meta['lgkm'] is not None:
                n = ins.meta['lgkm']
                if n > 0 and any(x[2] == 'smem' for x in lg):
                    err(i, ins, 'counted lgkmcnt with smem outstanding')
                while len(lg) > n:
                    lg.pop(0)
            pos += 1
            continue
        if k == 'nop':
            pos += ins.meta['n']
            continue
        touched = set(ins.reads) | set(ins.writes)
        for (j, w, kk) in vm:
            bad = touched & set(w)
            if bad:
                err(i, ins, f'touches {sorted(bad)[:4]} pending from vmem [{j}] {trace[j].text}')
        for (j, w, kk) in lg:
            bad = touched & set(w)
            if bad:
                err(i, ins, f'touches {sorted(bad)[:4]} pending from lgkm [{j}] {trace[j].text}')
        if k == 'mfma':
            for r in ins.meta['A'] + ins.meta['B']:
                if r in last_mfma_w:
                    p, ps, pi = last_mfma_w[r]
                    if pos - p - 1 < need_raw[ps]:
                        err(i, ins, f'mfma A/B reads {r} too early after mfma write', need_raw[ps] - (pos - p - 1))
            C = ins.meta['C']
            for r in C:
                if r in last_mfma_w:
                    p, ps, pi = last_mfma_w[r]
                    if pi.writes != C or ps != ins.meta['passes']:
                        if pos - p - 1 < need_cpart[ps]:
                            err(i, ins, f'mfma C partially overlaps recent D ({r})', need_cpart[ps] - (pos - p - 1))
            for r in ins.writes:
                if r in last_mfma_w and r not in C:
                    p, ps, pi = last_mfma_w[r]
                    if pos - p - 1 < need_raw[ps]:
                        err(i, ins, f'mfma WAW on {r} close to previous mfma write (conservative)', need_raw[ps] - (pos - p - 1))
            for r in ins.reads:
                if r in last_valu_w and pos - last_valu_w[r] - 1 < 2:
                    err(i, ins, f'mfma reads {r} <2 after valu write', 2 - (pos - last_valu_w[r] - 1))
        elif k in ('valu', 'trans', 'ds', 'vmem'):
            for r in touched:
                if r in last_mfma_w:
                    p, ps, pi = last_mfma_w[r]
                    if pos - p - 1 < need_raw[ps]:
                        err(i, ins, f'{k} touches {r} {pos-p-1} states after mfma write (need {need_raw[ps]})', need_raw[ps] - (pos - p - 1))
        if k in ('valu', 'trans'):
            for r in ins.writes:
                if r in last_mfma_c:
                    p, ps = last_mfma_c[r]
                    if pos - p - 1 < need_cwar[ps]:
                        err(i, ins, f'valu overwrites {r} read as srcC too early', need_cwar[ps] - (pos - p - 1))
                if r in last_store_data and pos - last_store_data[r] - 1 < 2:
                    err(i, ins, f'valu overwrites store data {r} too early', 2 - (pos - last_store_data[r] - 1))
            if k == 'valu':
                for r in ins.reads:
                    if r in last_trans_w and pos - last_trans_w[r] - 1 < 1:
                        err(i, ins, f'valu reads trans result {r} with 0 wait states', 1)
            if ins.meta.get('permlane') or ins.meta.get('dpp'):
                for r in ins.reads:
                    if r in last_valu_w and pos - last_valu_w[r] - 1 < 2:
                        err(i, ins, f'permlane/dpp reads {r} <2 after valu write', 2 - (pos - last_valu_w[r] - 1))
            if ins.meta.get('readlane'):
                for r in ins.reads:
                    if r in last_valu_w and pos - last_valu_w[r] - 1 < 1:
                        err(i, ins, f'readlane reads {r} <1 after valu write', 1)
            for r in ins.reads:
                if r in last_valu_sw and pos - last_valu_sw[r] - 1 < 2:
                    err(i, ins, f'valu reads sgpr {r} <2 after valu write', 2 - (pos - last_valu_sw[r] - 1))
            if ins.op.startswith('v_div_fmas') and 'vcc' in last_valu_sw and pos - last_valu_sw['vcc'] - 1 < 4:
                err(i, ins, 'div_fmas <4 after vcc write', 4 - (pos - last_valu_sw['vcc'] - 1))
        if k == 'ds' or (k == 'vmem' and not ins.meta.get('store')):
            for r in ins.writes:
                if r in last_store_data and pos - last_store_data[r] - 1 < 1:
                    err(i, ins, f'load overwrites store data {r} too early', 1)
        if k == 'vmem':
            for r in ins.reads:
                if r in last_valu_sw and pos - last_valu_sw[r] - 1 < 5:
                    err(i, ins, f'vmem reads sgpr {r} <5 after valu write', 5 - (pos - last_valu_sw[r] - 1))
            if ins.meta.get('dma') and pos - last_salu_m0 - 1 < 1:
                err(i, ins, 'dma <1 after m0 write', 1)
        if k in ('salu', 'branch'):
            for r in ins.reads:
                if r in last_valu_sw and pos - last_valu_sw[r] - 1 < 1 and r not in ('vcc', 'exec'):
                    err(i, ins, f'salu reads sgpr {r} right after valu write (pad)', 1)
        if k == 'mfma':
            for r in ins.writes:
                last_mfma_w[r] = (pos, ins.meta['passes'], ins)
                last_valu_w.pop(r, None)
            for r in ins.meta['C']:
                last_mfma_c[r] = (pos, ins.meta['passes'])
        elif k in ('valu', 'trans'):
            for r in ins.writes:
                last_mfma_w.pop(r, None)
                if r[0] in 'va' and r != 'vcc':
                    last_valu_w[r] = pos
                    if k == 'trans':
                        last_trans_w[r] = pos
                    else:
                        last_trans_w.pop(r, None)
                else:
                    last_valu_sw[r] = pos
        elif k == 'salu':
            for r in ins.writes:
                last_valu_sw.pop(r, None)
            if 'm0' in ins.writes:
                last_salu_m0 = pos
        if k == 'ds':
            lg.append((i, ins.writes, 'ds'))
            if len(lg) > 15 and not ins.meta.get('ovf_ok'):
                pass
            for r in ins.writes:
                last_mfma_w.pop(r, None)
                last_valu_w.pop(r, None)
        if k == 'smem':
            lg.append((i, ins.writes, 'smem'))
        if k == 'vmem':
            vm.append((i, ins.writes, 'vm'))
            if len(vm) > 63:
                err(i, ins, f'more than 63 vmem outstanding ({len(vm)})')
            if ins.meta.get('store') and ins.meta.get('wide'):
                for r in ins.meta['data']:
                    last_store_data[r] = pos
            for r in ins.writes:
                last_mfma_w.pop(r, None)
                last_valu_w.pop(r, None)
        pos += 1
    if verbose:
        for e in errs[:40]:
            print('HAZARD', e)
        if len(errs) > 40:
            print('...', len(errs) - 40, 'more')
    return errs


def autowait(trace, max_iter=20):
    for ins in trace:
        ins.meta.pop('pre', None)
    for _ in range(max_iter):
        changed = False
        vm = []
        lg = []
        for ins in trace:
            if ins.kind == 'label':
                continue
            pre = ins.meta.get('pre')

            def tighten(key, n):
                nonlocal pre, changed
                if pre is None:
                    pre = ins.meta['pre'] = {}
                if key not in pre or pre[key] > n:
                    pre[key] = n
                    changed = True
            if pre:
                if 'vm' in pre:
                    del vm[:max(0, len(vm) - pre['vm'])]
                if 'lgkm' in pre:
                    del lg[:max(0, len(lg) - pre['lgkm'])]
            if ins.kind == 'wait':
                if ins.meta['vm'] is not None:
                    del vm[:max(0, len(vm) - ins.meta['vm'])]
                if ins.meta['lgkm'] is not None:
                    del lg[:max(0, len(lg) - ins.meta['lgkm'])]
                continue
            touched = set(ins.reads) | set(ins.writes)
            need = None
            for j in range(len(vm) - 1, -1, -1):
                if touched & vm[j][0] or (vm[j][1] is not None and vm[j][1] in ins.meta.get('wait_tags', ())):
                    need = len(vm) - 1 - j
                    break
            if need is not None:
                tighten('vm', need)
                del vm[:len(vm) - need]
            need = None
            for j in range(len(lg) - 1, -1, -1):
                if touched & lg[j][0]:
                    need = len(lg) - 1 - j
                    break
            if need is not None:
                if any(x[1] == 'smem' for x in lg):
                    need = 0
                need = min(need, 15)
                tighten('lgkm', need)
                del lg[:len(lg) - need]
            if ins.meta.get('wait_lgkm0') and lg:
                tighten('lgkm', 0)
                lg = []
            if ins.kind == 'vmem':
                vm.append((set(ins.writes), ins.meta.get('tag')))
            elif ins.kind == 'ds':
                lg.append((set(ins.writes), 'ds'))
            elif ins.kind == 'smem':
                lg.append((set(ins.writes), 'smem'))
        if not changed:
            return
    raise RuntimeError('autowait did not converge')


def wait_text(pre):
    s = 's_waitcnt'
    if 'vm' in pre:
        s += f" vmcnt({pre['vm']})"
    if 'lgkm' in pre:
        s += f" lgkmcnt({pre['lgkm']})"
    return s


def expand(trace):
    out = []
    for ins in trace:
        pre = ins.meta.get('pre')
        if pre:
            out.append(Ins(wait_text(pre)))
        if ins.meta.get('nop'):
            out.append(Ins(f"s_nop {ins.meta['nop'] - 1}"))
        if ins.kind != 'autowait':
            out.append(ins)
    return out


def render(ins_list):
    out = []
    for i in ins_list:
        pre = i.meta.get('pre')
        if pre:
            out.append(' ' + wait_text(pre))
        if i.meta.get('nop'):
            out.append(f" s_nop {i.meta['nop'] - 1}")
        if i.kind == 'autowait':
            continue
        out.append(i.text if i.kind == 'label' else ' ' + i.text)
    return '\n'.join(out) + '\n'


def I(text, **meta):
    return Ins(text, **meta)


def weave(p, mfmas, gaps):
    for i, m in enumerate(mfmas):
        p.add(m)
        for f in gaps[i] if i < len(gaps) else []:
            p.add(f)


class Item:
    def __init__(self, ins, pre=(), nb=0):
        self.ins = ins if isinstance(ins, Ins) else Ins(ins)
        self.pre = [x if isinstance(x, Ins) else Ins(x) for x in pre]
        self.nb = nb
        k = self.ins.kind
        self.cost = 2 if k == 'trans' else (0 if k in ('salu', 'nop', 'barrier', 'wait', 'autowait') else 1)
        self.first = k in ('ds', 'vmem')
        self.reads = set(self.ins.reads)
        self.writes = set(self.ins.writes)
        for x in self.pre:
            self.reads |= set(x.reads)
            self.writes |= set(x.writes)


def gap_used(g):
    return sum(2 if x.kind == 'trans' else (1 if x.kind in ('valu', 'ds', 'vmem') else 0) for x in g)


def fill(gaps, stream, start=0, end=None, look=14, lat=2, cap=2):
    end = len(gaps) if end is None else end
    pend = list(stream)
    placed_w = {}
    debt = 0.0
    for gi in range(start, end):
        g = gaps[gi]
        free_left = sum(max(0, cap - gap_used(gaps[j])) for j in range(gi, end))
        need = sum(x.cost for x in pend)
        left = end - gi
        extra = 0
        if need > free_left:
            debt += (need - free_left) / left
            while debt >= 1.0 - 1e-9:
                extra += 1
                debt -= 1.0
        if gi == end - 1:
            extra = 10 ** 6
        while pend:
            room = cap + extra - gap_used(g)
            pick = None
            cands = []
            blocked_r, blocked_w = set(), set()
            for j, it in enumerate(pend[:look]):
                ok = not (it.reads & blocked_w or it.writes & blocked_w or it.writes & blocked_r)
                if ok and it.nb > gi and gi != end - 1:
                    ok = False
                if ok and gi != end - 1:
                    if any(gi - placed_w.get(r, -99) < lat for r in it.reads if r[0] in 'va' and r != 'vcc'):
                        ok = False
                    if it.cost > room:
                        ok = False
                    if it.first and gap_used(g) > 0:
                        ok = False
                if ok:
                    cands.append(j)
                blocked_r |= it.reads
                blocked_w |= it.writes
            if cands:
                pick = cands[0]
                if gi == end - 1:
                    lastw = set()
                    for x in g[-2:]:
                        lastw |= set(x.writes)
                    good = [j for j in cands if not (pend[j].reads & lastw)]
                    if good:
                        pick = good[0]
                elif gap_used(g) == 0:
                    big = [j for j in cands if pend[j].first] or [j for j in cands if pend[j].cost == 2]
                    if big:
                        pick = big[0]
            if pick is None:
                break
            it = pend.pop(pick)
            g.extend(it.pre)
            g.append(it.ins)
            for r in it.writes:
                placed_w[r] = gi
    assert not pend


QUIET = [False]


def settle(traces, name, show=True):
    allins = [i for t in traces for i in t]
    sep = []
    for t in traces:
        sep += t + [Ins('s_waitcnt vmcnt(0) lgkmcnt(0)')]
    autowait(sep)
    for _ in range(50):
        errs = []
        for t in traces:
            errs += check_trace(expand(t), name, verbose=False, fix=True)
        if not errs:
            break
        seen = set()
        applied = 0
        last = -10 ** 9
        for n, i in enumerate(allins):
            if id(i) in seen:
                continue
            seen.add(id(i))
            d = i.meta.pop('nop_new', 0)
            if d and n - last > 24:
                i.meta['nop'] = i.meta.get('nop', 0) + d
                applied += 1
                last = n
        if not applied:
            for e in errs[:40]:
                print('HAZARD', e)
            raise SystemExit(f'{name}: {len(errs)} unresolved hazards')
    else:
        raise SystemExit('settle did not converge')
    if show and not QUIET[0]:
        seen = set()
        for i in allins:
            if id(i) not in seen and i.meta.get('nop'):
                print(f"  [{name}] pad {i.meta['nop']} before: {i.text}")
            seen.add(id(i))
```

```python
from asmlib import *

KA_X, KA_K, KA_V, KA_WQ, KA_WO, KA_BX, KA_WG, KA_WU, KA_WD, KA_OUT, KA_DBG, KA_WS = [8 * i for i in range(12)]

XN_OFF = 0
XN_MB = 18 * 1024
XN_BYTES = 128 * XN_MB
HF_OFF = 0x400000
STEP = 128 * 1024
HF_BYTES = 144 * STEP
OF_OFF = 0x1800000
OF_BYTES = 128 * STEP

WF_OFF = 0x2A00000
WF_BYTES = 272 * 36864
FLAG_OFF = 0x2900000
FLAG_BYTES = 9216
PART_OFF = 0x3400000
PART_SLAB = 8192
PART_BYTES = 2 * 64 * 16 * PART_SLAB

X_BYTES = 2048 * 576 * 2
KV_HEAD = 2048 * 128 * 2
WQ_BYTES = 576 * 4096 * 2
WG_BYTES = 576 * 4608 * 2
WO_BYTES = 4096 * 576 * 2
WD_BYTES = 4608 * 576 * 2


def vr(b, n=1):
    return f'v{b}' if n == 1 else f'v[{b}:{b + n - 1}]'


def ar(b, n=1):
    return f'a{b}' if n == 1 else f'a[{b}:{b + n - 1}]'


def sr(b, n=1):
    return f's{b}' if n == 1 else f's[{b}:{b + n - 1}]'


def header(name):
    return (f'.globl {name}\n.p2align 8\n.type {name},@function\n{name}:\n')


def descriptor(name, vgpr, sgpr, accum):
    return (f'.amdhsa_kernel {name}\n'
            f'  .amdhsa_next_free_vgpr {vgpr}\n'
            f'  .amdhsa_next_free_sgpr {sgpr}\n'
            f'  .amdhsa_accum_offset {accum}\n'
            f'  .amdhsa_group_segment_fixed_size 0\n'
            f'  .amdhsa_kernarg_size 96\n'
            f'  .amdhsa_user_sgpr_count 2\n'
            f'  .amdhsa_user_sgpr_kernarg_segment_ptr 1\n'
            f'  .amdhsa_system_sgpr_workgroup_id_x 1\n'
            f'  .amdhsa_float_denorm_mode_32 3\n'
            f'.end_amdhsa_kernel\n')


def srd(p, d, base, off_sgpr=None, off_imm=0, nbytes=0, nbytes_minus_off=False):
    if off_imm:
        p(f's_add_u32 s{d}, s{base}, {off_imm}')
        p(f's_addc_u32 s{d + 1}, s{base + 1}, 0')
        if off_sgpr is not None:
            p(f's_add_u32 s{d}, s{d}, s{off_sgpr}')
            p(f's_addc_u32 s{d + 1}, s{d + 1}, 0')
    elif off_sgpr is not None:
        p(f's_add_u32 s{d}, s{base}, s{off_sgpr}')
        p(f's_addc_u32 s{d + 1}, s{base + 1}, 0')
    else:
        p(f's_mov_b32 s{d}, s{base}')
        p(f's_mov_b32 s{d + 1}, s{base + 1}')
    if nbytes_minus_off:
        p(f's_sub_u32 s{d + 2}, {nbytes}, s{off_sgpr}')
    else:
        p(f's_mov_b32 s{d + 2}, {nbytes}')
    p(f's_mov_b32 s{d + 3}, 0x20000')


def finish(p, trace, name):
    settle([trace], name)
    return render(p.ins)


DBGDUMP = [None]
STAMP_OFF = 0x6000000
class Stamps:
    def __init__(self, on, first_sgpr, nmax):
        self.on, self.base, self.n, self.nmax = on, first_sgpr, 0, nmax
        self.names = []
    def stamp(self, p, name):
        if not self.on:
            return
        assert self.n < self.nmax
        p('s_waitcnt lgkmcnt(0)')
        p('s_memtime s[100:101]')
        p('s_waitcnt lgkmcnt(0)')
        p(f'v_writelane_b32 v{self.base}, s100, {self.n}')
        p('s_memrealtime s[100:101]')
        p('s_waitcnt lgkmcnt(0)')
        p(f'v_writelane_b32 v{self.base + 1}, s100, {self.n}')
        self.n += 1
        self.names.append(name)
    def dump(self, p, region, t):
        if not self.on:
            return
        p(f's_load_dwordx2 s[96:97], s[0:1], {KA_WS}')
        p('s_getreg_b32 s100, hwreg(HW_REG_XCC_ID)')
        p(f'v_writelane_b32 v{self.base}, s100, 40')
        p('s_getreg_b32 s100, hwreg(HW_REG_HW_ID)')
        p(f'v_writelane_b32 v{self.base}, s100, 41')
        p('s_waitcnt lgkmcnt(0)')
        p(f's_add_u32 s96, s96, {STAMP_OFF + region * 0x100000}')
        p('s_addc_u32 s97, s97, 0')
        p('s_mov_b32 s98, 0x100000')
        p('s_mov_b32 s99, 0x20000')
        p('s_lshl_b32 s100, s2, 11')
        p(f'v_lshlrev_b32 v{t}, 3, v0')
        p(f'buffer_store_dwordx2 v[{self.base}:{self.base + 1}], v{t}, s[96:99], s100 offen')
        p('s_waitcnt vmcnt(0)')
        if DBGDUMP[0]:
            p('s_cmp_lg_u32 s2, 100')
            p('s_cbranch_scc1 L_nodump')
            p(f's_load_dwordx2 s[96:97], s[0:1], {KA_DBG}')
            p(f'v_readlane_b32 s100, v{self.base + 1}, 0')
            p('s_waitcnt lgkmcnt(0)')
            p('s_mov_b32 s98, 256')
            p(f'v_subrev_u32 v{self.base + 1}, s100, v{self.base + 1}')
            p(f'v_mov_b32 v{t}, 0x1000')
            for k, idx in enumerate(DBGDUMP[0][:6]):
                p(f's_mov_b32 s100, {(36 + 4 * k) if k < 3 else (40 + 4 * k)}')
                p(f'v_writelane_b32 v{t}, s100, {idx}')
            p(f'v_cmp_gt_u32 vcc, 64, v0')
            p('s_and_saveexec_b64 s[94:95], vcc')
            p('s_cbranch_execz L_nodump')
            p(f'buffer_store_dword v{self.base + 1}, v{t}, s[96:99], 0 offen')
            p('L_nodump:')
```

```python
from common import *
from sched import *

pX, pOUT, pDBG = 8, 12, 14
S_ACT, S_FLAG, S_X, S_OUT, S_PART, S_W = 16, 20, 24, 28, 40, 48
S_DBG = 44
sW = 52
fKQ, fRT, fCT, fT0, fT1, fT2, fT3 = 80, 81, 82, 83, 84, 85, 86
fABF, fABS, fWBF, fWBS, fWL, fODD, fG0, fG2 = 87, 88, 89, 90, 91, 92, 93, 94
fMS = 95
fSV = 60
fSPIN, fOF, fTF = 97, 98, 99
sMASK, sNL2E = 73, 74
vLANE, vL16 = 1, 2
vA0, vA1, vA2, vB0, vB1, vXO, vL8 = 3, 4, 5, 6, 7, 8, 9
vT = 24
vFL = 28
vX = 10
vWF = 32
vACF = 80
vACS = 152
vE = 224
aACT = 128
aRF = 0
EP = 36864
LOOK = 3
NE = 17
FLAG_O = 8192
OPT = dict(same=0, oepi=3, sent=1, outf=0)


def mfma(d, a, b, c):
    return I(f'v_mfma_f32_16x16x32_bf16 {d}, {a}, {b}, {c}')


def acc(g, ms, ns):
    return (vACS if g else vACF) + (ms * 9 + ns) * 4


def act_reg(e, st, ms):
    base = (204, 220, 236, 176)[(e & 1) * 2 + (st >> 1)]
    return base + ((st & 1) * 2 + ms) * 4


def w_dma(e, sc):
    out = []
    base, el = (fWBF, e) if e < 9 else (fWBS, e - 9)
    el = 0 if OPT['same'] & 1 else el
    for n in range(9):
        pre = [f's_add_u32 m0, s{fWL}, {(e & 3) * EP + (n // 4) * 4096}', f's_add_u32 s{fT3}, s{base}, {el * 4 * EP + (n // 4) * 4096}'] if n % 4 == 0 else []
        out.append(Item(I(f'buffer_load_dwordx4 v{vL16}, {sr(S_W, 4)}, s{fT3} offen offset:{1024 * (n % 4)}{sc} lds', tag=('FW', e)), pre=pre))
    return out


def act_loads(e, pair, sc):
    out = []
    base, el = (fABF, e) if e < 9 else (fABS, e - 9)
    el = 0 if OPT['same'] & 2 else el
    for st in (2 * pair, 2 * pair + 1):
        for ms in range(2):
            pre = [f's_add_u32 s{fT0}, s{base}, {(4 * el + st) * STEP}'] if ms == 0 else []
            out.append(Item(f'buffer_load_dwordx4 {ar(act_reg(e, st, ms), 4)}, v{vB0 + ms}, {sr(S_ACT, 4)}, s{fT0} offen{sc}', pre=pre))
    return out


def early_setup():
    L = [f's_bfe_u32 s{fKQ}, s2, 0x20001', f's_and_b32 s{fT0}, s2, 1', f's_lshr_b32 s{fT1}, s2, 5',
         f's_lshl3_add_u32 s{fRT}, s{fT0}, s{fT1}', f's_bfe_u32 s{fCT}, s2, 0x20003',
         f's_lshr_b32 s{fT0}, s{fKQ}, 1', f's_lshl_b32 s{fT1}, s{fT0}, 10',
         f'v_add_u32 v{vB0}, s{fT1}, v{vL16}', f'v_xor_b32 v{vB1}, 1024, v{vB0}',
         f's_mul_i32 s{fABF}, s{fKQ}, {36 * STEP}', f's_mul_i32 s{fABS}, s{fKQ}, {32 * STEP}',
         f's_add_u32 s{fABS}, s{fABS}, {OF_OFF - HF_OFF}',
         f's_mul_i32 s{fWL}, s{sW}, 9216', f's_mul_i32 s{fT0}, s{fCT}, 9216', f's_mul_i32 s{fT1}, s{sW}, {EP}',
         f's_add_u32 s{fT0}, s{fT0}, s{fT1}', f's_mul_i32 s{fWBF}, s{fKQ}, {36 * EP}', f's_add_u32 s{fWBF}, s{fWBF}, s{fT0}',
         f's_mul_i32 s{fWBS}, s{fKQ}, {32 * EP}', f's_add_u32 s{fWBS}, s{fWBS}, s{fT0}', f's_add_u32 s{fWBS}, s{fWBS}, {144 * EP}',
         f's_lshl_b32 s{fT0}, s{fRT}, 3', f's_lshl1_add_u32 s{fT0}, s{sW}, s{fT0}', f's_lshl_b32 s{fT1}, s{fT0}, 10',
         f's_sub_u32 s{S_ACT + 2}, {OF_OFF + OF_BYTES - HF_OFF}, s{fT1}', f's_mov_b32 s{S_ACT + 3}, 0x20000',
         f's_sub_u32 s{fT1}, {WF_OFF - HF_OFF}, s{fT1}']
    glued = [f's_sub_u32 s{S_ACT}, s{S_W}, s{fT1}', f's_subb_u32 s{S_ACT + 1}, s{S_W + 1}, 0']
    return L, glued


def flag_setup():
    return [f's_sub_u32 s{S_FLAG}, s{S_W}, {WF_OFF - FLAG_OFF}', f's_subb_u32 s{S_FLAG + 1}, s{S_W + 1}, 0',
            f's_mov_b32 s{S_FLAG + 2}, {FLAG_BYTES}', f's_mov_b32 s{S_FLAG + 3}, 0x20000']


def late_setup():
    L = []
    p = L.append
    t0, t1 = vT, vT + 1
    p(f's_and_b32 s{fODD}, s{fKQ}, 1')
    p(f's_lshl2_add_u32 s{fT0}, s{fRT}, s{fCT}')
    p(f's_lshl_b32 s{fTF}, s{fT0}, 7')
    p(f's_lshl2_add_u32 s{fT0}, s{fT0}, s{fKQ}')
    p(f's_lshl2_add_u32 s{fT0}, s{fT0}, s{sW}')
    p(f's_mul_i32 s{fMS}, s{fT0}, {PART_SLAB}')
    p(f's_lshr_b32 s{fT0}, s{fRT}, 1')
    p(f's_lshl_b32 s{fT0}, s{fT0}, 7')
    p(f's_lshl_b32 s{fT1}, s{fKQ}, 5')
    p(f's_add_u32 s{fOF}, s{fT0}, s{fT1}')
    p(f's_add_u32 s{fOF}, s{fOF}, {FLAG_O}')
    p(f's_lshl_b32 s{fT0}, s{fRT}, 7')
    p(f's_lshl_b32 s{fT1}, s{sW}, 5')
    p(f's_add_u32 s{fT0}, s{fT0}, s{fT1}')
    p(f's_lshr_b32 s{fT1}, s{fKQ}, 1')
    p(f's_lshl4_add_u32 s{fT0}, s{fT1}, s{fT0}')
    p(f'v_and_b32 v{t0}, 15, v{vLANE}')
    p(f'v_add_u32 v{t0}, s{fT0}, v{t0}')
    p(f'v_mul_u32_u24 v{t0}, 1152, v{t0}')
    p(f'v_lshrrev_b32 v{t1}, 4, v{vLANE}')
    p(f'v_lshl_add_u32 v{t0}, v{t1}, 3, v{t0}')
    p(f's_mul_i32 s{fT0}, s{fCT}, 288')
    p(f's_mul_i32 s{fT1}, s{fODD}, 160')
    p(f's_add_u32 s{fT0}, s{fT0}, s{fT1}')
    p(f'v_add_u32 v{vXO}, s{fT0}, v{t0}')
    p(f'v_lshlrev_b32 v{vL8}, 3, v{vLANE}')
    p(f'v_and_b32 v{vFL + 1}, 3, v{vLANE}')
    p(f'v_lshlrev_b32 v{vFL + 1}, 2, v{vFL + 1}')
    p(f's_mul_i32 s{fT1}, s{fODD}, 5120')
    p(f'v_add_u32 v{vA0}, s{fT1}, v{vL16}')
    p(f'v_mov_b32 v{vA1}, v{vL16}')
    p(f's_sub_u32 s{fT1}, 5120, s{fT1}')
    p(f'v_add_u32 v{vA2}, s{fT1}, v{vL16}')
    return L


def late_srds():
    A, B = [], []
    srd(A.append, S_PART, S_W, off_imm=PART_OFF - WF_OFF, nbytes=PART_BYTES)
    srd(B.append, S_X, pX, nbytes=X_BYTES)
    srd(B.append, S_OUT, pOUT, nbytes=X_BYTES)
    return A, B


def early_loads(sc):
    return w_dma(0, sc) + act_loads(0, 0, sc) + act_loads(0, 1, sc) + w_dma(1, sc) + act_loads(1, 0, sc)


def part_off(g):
    return g * (64 * 16 * PART_SLAB)


def publish(g):
    out = []
    first = True
    for ms, slots_, off in ((1, (0, 1), 2048), (1, (2, 3), 3072), (1, (5, 6), 4096), (1, (7, 8), 5120), (1, (4,), 6656),
                            (0, (5, 6), 0), (0, (7, 8), 1024), (0, (4,), 6144)):
        r = vE if (ms == 0 and len(slots_) == 1) else acc(g, ms, slots_[0])
        for i, ns in enumerate(slots_):
            for dd in range(2):
                out.append(Item(f'v_cvt_pk_bf16_f32 v{r + 2 * i + dd}, v{acc(g, ms, ns) + 2 * dd}, v{acc(g, ms, ns) + 2 * dd + 1}'))
        pre = [f's_add_u32 s{fG0}, s{fMS}, {part_off(g)}', f's_add_u32 s{fG2}, s{fMS}, {part_off(g) + 4096}'] if first else []
        first = False
        so = fG2 if off >= 4096 else fG0
        if len(slots_) == 1:
            out.append(Item(f'buffer_store_dwordx2 {vr(r, 2)}, v{vL8}, {sr(S_PART, 4)}, s{so} offen offset:{off & 4095} sc1', pre=pre))
        else:
            out.append(Item(f'buffer_store_dwordx4 {vr(r, 4)}, v{vL16}, {sr(S_PART, 4)}, s{so} offen offset:{off & 4095} sc1', pre=pre))
    return out


def flag_store(p, lab, back, pre, off):
    p(f'{lab}:')
    for l in pre:
        p(l)
    p(f'v_mov_b32 v{vT}, 1')
    p('s_mov_b64 exec, 1')
    p(f'buffer_store_dword v{vT}, off, {sr(S_FLAG, 4)}, s{fT1} offset:{off} sc1')
    p('s_mov_b64 exec, -1')
    p(f's_branch {back}')


def hook(lab):
    return [I(f's_cmp_eq_u32 s{sW}, 0'), I(f's_cbranch_scc1 {lab}'), I(f'{lab}_b:')]


POLLS = {
    'f': lambda: I(f'buffer_load_dword v{vFL}, v{vFL + 1}, {sr(S_FLAG, 4)}, s{fTF} offen sc1'),
    's': lambda: I(f'buffer_load_dword v{vFL}, v{vFL + 1}, {sr(S_FLAG, 4)}, s{fTF} offen offset:64 sc1'),
    'o': lambda: I(f'buffer_load_dword v{vFL}, v{vFL + 2}, {sr(S_FLAG, 4)}, s{fOF} offen sc1'),
    'a': lambda: I(f'buffer_load_dword v{vFL}, v{vFL + 3}, {sr(S_DBG, 4)}, 0 offen sc1'),
}


def test(k):
    return f'v_cmp_gt_u32 vcc, 32, v{vFL}' if k == 'a' else f'v_cmp_eq_u32 vcc, 0, v{vFL}'


def check(k, tag=''):
    return [I(test(k)), I(f's_cbranch_vccnz L_spin_{k}{tag}'), I(f'L_spin_{k}{tag}_b:')]


def spin(p, k, tag=''):
    lab = f'L_spin_{k}{tag}'
    p(f'{lab}:')
    p(f's_mov_b32 s{fSPIN}, 0')
    p(f'{lab}_l:')
    p.add(POLLS[k]())
    p(f's_add_u32 s{fSPIN}, s{fSPIN}, 1')
    p('s_waitcnt vmcnt(0)')
    p(test(k))
    p(f's_cmp_ge_u32 s{fSPIN}, 0x40000')
    p(f's_cbranch_scc1 {lab}_b')
    p(f's_cbranch_vccz {lab}_b')
    p('s_sleep 1')
    p(f's_branch {lab}_l')


def gather_loads(i, r, rf):
    s0 = fSV + 2 * i
    return [f'buffer_load_dwordx4 {rf(r, 4)}, v{vL16}, {sr(S_PART, 4)}, s{s0} offen sc1',
            f'buffer_load_dwordx4 {rf(r + 4, 4)}, v{vL16}, {sr(S_PART, 4)}, s{s0} offen offset:1024 sc1',
            f'buffer_load_dwordx2 {rf(r + 8, 2)}, v{vL8}, {sr(S_PART, 4)}, s{s0 + 1} offen sc1']


def gather(g, base, rf):
    out = []
    for i in range(3):
        s0 = fSV + 2 * i
        pre = [f's_xor_b32 s{s0}, s{fKQ}, {i + 1}', f's_sub_u32 s{s0}, s{s0}, s{fKQ}', f's_mul_i32 s{s0}, s{s0}, {4 * PART_SLAB}',
               f's_add_u32 s{s0}, s{s0}, s{fMS}', f's_add_u32 s{s0 + 1}, s{s0}, {part_off(g) + (6144 if i == 0 else 6656)}',
               f's_add_u32 s{s0}, s{s0}, {part_off(g) + 2048 * i}']
        ld = gather_loads(i, base + i * 10, rf)
        out += [Item(ld[0], pre=pre), Item(ld[1]), Item(ld[2])]
    return out


def add_gathered(dst, base):
    out = []
    for i in range(3):
        for d in range(10):
            e = vE + 4 + (d % 4) * 2
            src = base + i * 10 + d
            out += [Item(f'v_lshlrev_b32 v{e}, 16, v{src}'), Item(f'v_and_b32 v{e + 1}, s{sMASK}, v{src}'),
                    Item(f'v_add_f32 v{dst + 2 * d}, v{dst + 2 * d}, v{e}'), Item(f'v_add_f32 v{dst + 2 * d + 1}, v{dst + 2 * d + 1}, v{e + 1}')]
    return out


def sent_test(r):
    t = vE + 12
    return [f'v_max3_u32 v{t}, v{r}, v{r + 1}, v{r + 2}', f'v_max3_u32 v{t + 1}, v{r + 3}, v{r + 4}, v{r + 5}',
            f'v_max3_u32 v{t + 2}, v{r + 6}, v{r + 7}, v{r + 8}', f'v_max3_u32 v{t}, v{t}, v{t + 1}, v{r + 9}',
            f'v_max_u32 v{t}, v{t}, v{t + 2}', f'v_cmp_eq_u32 vcc, -1, v{t}']


def slab_offset(a, b):
    return [f's_and_b32 s{a}, s2, 1', f's_lshl_b32 s{a}, s{a}, 5', f's_lshr_b32 s{b}, s2, 3', f's_add_u32 s{a}, s{a}, s{b}',
            f's_bfe_u32 s{b}, s2, 0x20001', f's_lshl2_add_u32 s{a}, s{a}, s{b}', f's_lshl2_add_u32 s{a}, s{a}, s{sW}',
            f's_mul_i32 s{a}, s{a}, {PART_SLAB}', f's_add_u32 s{a}, s{a}, {PART_OFF - WF_OFF + part_off(1)}']


def silu_items():
    out = []
    for ns in range(5):
        k, e = vACF + ns * 4, vE + 4 + (ns & 1) * 4
        for s in (f'v_mul_f32 v{{e}}, s{sNL2E}, v{{k}}', 'v_exp_f32 v{e}, v{e}', 'v_add_f32 v{e}, 1.0, v{e}',
                  'v_rcp_f32 v{e}, v{e}', 'v_mul_f32 v{k}, v{k}, v{e}'):
            out += [Item(s.format(e=e + r, k=k + r)) for r in range(4)]
    return out


def emit(p, items):
    for it in items:
        for x in it.pre + [it.ins]:
            p.add(x)


def fin_head():
    head = [W(tags=[('FW', 0)]), I('s_barrier')]
    for u in range(LOOK):
        head += [I(f'ds_read_b128 {vr(vWF + u * 8 + k * 4, 4)}, v{vA0} offset:{k * 9216 + u * 1024}') for k in range(2)]
    return head


def fin_body(p, ST, fused, o_epi=None):
    sc = ' sc1' if fused else ''
    mf, gaps = [], []
    for e in range(NE):
        g = int(e >= 9)
        for u in range(18):
            pair, ns = divmod(u, 9)
            rb = vWF + (u % 6) * 8
            for ms in range(2):
                for k in range(2):
                    d = vr(acc(g, ms, ns), 4)
                    c = '0' if (e in (0, 9) and pair == 0 and k == 0) else d
                    mf.append(mfma(d, vr(rb + k * 4, 4), ar(act_reg(e, 2 * pair + k, ms), 4), c))
                    gaps.append([])
    for U in range(NE * 18):
        e, u = divmod(U, 18)
        pair, ns = divmod(u, 9)
        a = vA0 if ns < 4 else (vA1 if ns == 4 else vA2)
        rb = vWF + (u % 6) * 8
        rd = [I(f'ds_read_b128 {vr(rb + k * 4, 4)}, v{a} offset:{(2 * pair + k) * 9216 + (ns - 5 * (ns > 4)) * 1024}') for k in range(2)]
        if U < LOOK:
            continue
        at = (U - LOOK) * 4
        if u == 0:
            d = (EP if e & 3 else -3 * EP) & 0xffffffff
            gaps[at - 1] += [W(tags=[('FW', e)]), I('s_barrier'), I(f'v_add_u32 v{vA0}, {d:#x}, v{vA0}')]
        if u == 4 or u == 5:
            pass
        gaps[at].append(rd[0])
        gaps[at + 2].append(rd[1])
        regs = rd[0].writes + rd[1].writes
        if ns == 0:
            regs = regs + [f'a{act_reg(e, 2 * pair, 0) + k}' for k in range(16)]
        g = gaps[U * 4 - 1]
        if g and g[0].kind == 'autowait':
            g[0].reads += regs
        else:
            g.insert(0, W(regs=regs))
    for e in range(1, NE):
        d = (EP if e & 3 else -3 * EP) & 0xffffffff
        b = e * 72 - LOOK * 4
        gaps[b + 0].append(I(f'v_add_u32 v{vA1}, {d:#x}, v{vA1}'))
        gaps[b + 2].append(I(f'v_add_u32 v{vA2}, {d:#x}, v{vA2}'))
    for e in range(NE):
        b = e * 72
        vm, pos = [], []
        if e + 1 < NE and not (fused and e == 0):
            vm += act_loads(e + 1, 1, sc)
            pos += [b + 1, b + 5, b + 9, b + 13]
        if e + 2 < NE:
            if fused and e == 7:
                gaps[b + 3].append(POLLS['o']())
                gaps[b + 51] += check('o')
            vm += w_dma(e + 2, sc)
            pos += [b + 17 + 4 * n for n in range(9)]
            vm += act_loads(e + 2, 0, sc)
            pos += [b + 53, b + 57, b + 61, b + 65]
        put_vmem(gaps, vm, pos)
    glued, free_ = late_srds()
    gaps[7] += [I(x) for x in glued]
    fill(gaps, [Item(x) for x in free_], start=8, end=40, look=2)
    if fused:
        fill(gaps, o_epi, start=4, end=OPT['oepi'] * 72, look=30)
        gaps[(OPT['oepi'] + 2) * 72 - LOOK * 4 + 1] += hook('L_flag_o')
    fill(gaps, publish(0), start=9 * 72 + 30, end=10 * 72 + 40)
    gaps[12 * 72 - LOOK * 4 + 1] += hook('L_flag_f')
    b = 15 * 72
    gaps[b + 15].append(POLLS['f']())
    put_vmem(gaps, [Item(f'buffer_load_dwordx2 {vr(vX + 2 * i, 2)}, v{vXO}, {sr(S_X, 4)}, 0 offen offset:{32 * i}') for i in range(5)],
             [b + 17 + 2 * i for i in range(5)])
    gaps[b + 45] += check('f')
    vRF = vACF + 36
    put_vmem(gaps, gather(0, vRF, vr), [b + 53, b + 55, b + 57, b + 65, b + 67, b + 69, b + 77, b + 79, b + 81])
    st = [Item(W(regs=[f'v{vRF + k}' for k in range(10)]), nb=b + 100)] + add_gathered(vACF, vRF)
    for x in st[1:]:
        x.nb = b + 101
    fill(gaps, st, start=b + 100, end=NE * 72, look=8, lat=1)
    ST.stamp(p, 'fin first')
    p.mark('fin0')
    for a, b, nm in ((0, 1, 'f e0'), (1, 3, 'f e1-2'), (3, 5, 'f e3-4'), (5, 7, 'f e5-6'), (7, 9, 'f loop')):
        weave(p, mf[a * 72:b * 72], gaps[a * 72:b * 72])
        ST.stamp(p, nm)
    p.mark('fin1')
    for a, b, nm in ((9, 11, 's e9-10'), (11, 13, 's e11-12'), (13, 15, 's e13-14'), (15, 17, None)):
        weave(p, mf[a * 72:b * 72], gaps[a * 72:b * 72])
        if nm:
            ST.stamp(p, nm)
    p.mark('fin2')
    ST.stamp(p, 's loop')
    emit(p, publish(1))
    vRS = vACF + 36
    sent = fused and OPT['sent']
    if sent:
        emit(p, gather(1, vRS, vr))
    emit(p, silu_items())
    if not sent:
        p('s_waitcnt vmcnt(0)')
        p('s_barrier')
        ST.stamp(p, 'published')
        for x in hook('L_flag_s'):
            p.add(x)
        p.add(POLLS['s']())
    for ns in range(5):
        for dd in range(2):
            p(f'v_lshlrev_b32 v{vWF + 4 * ns + 2 * dd}, 16, v{vX + 2 * ns + dd}')
            p(f'v_and_b32 v{vWF + 4 * ns + 2 * dd + 1}, s{sMASK}, v{vX + 2 * ns + dd}')
    p(f's_mov_b32 s{fT0}, 0x3f80')
    p(f's_mov_b32 s{fT3}, 0x3f800000')
    if sent:
        ST.stamp(p, 'published')
    else:
        for x in check('s'):
            p.add(x)
        emit(p, gather(1, vRS, vr))
    for i in range(3):
        if sent:
            for l in sent_test(vRS + 10 * i):
                p(l)
            p(f's_cbranch_vccnz L_sent_{i}')
            p(f'L_sent_{i}_b:')
        for d in range(10):
            p(f'v_dot2_f32_bf16 v{vACS + 2 * d}, v{vRS + 10 * i + d}, s{fT0}, v{vACS + 2 * d}')
            p(f'v_dot2_f32_bf16 v{vACS + 2 * d + 1}, v{vRS + 10 * i + d}, s{fT3}, v{vACS + 2 * d + 1}')
    ST.stamp(p, 's flag')
    p(f's_mul_i32 s{fT1}, s{fODD}, 0x7f000000')
    for ns in range(5):
        a, x, e = acc(1, 0, ns), vWF + 4 * ns, vE + (ns & 1) * 2
        for r in range(4):
            p(f'v_fmac_f32 v{x + r}, v{a + r}, v{vACF + ns * 4 + r}')
        for dd in range(2):
            p(f'v_cvt_pk_bf16_f32 v{e + dd}, v{x + 2 * dd}, v{x + 1 + 2 * dd}')
        so = f's{fT1}' if ns == 4 else '0'
        p(f'buffer_store_dwordx2 {vr(e, 2)}, v{vXO}, {sr(S_OUT, 4)}, {so} offen offset:{32 * ns}{("", " sc1", " nt")[OPT["outf"]]}')
    ST.stamp(p, 'issued')

    def outline(p, o_pre=None):
        own = [f's_lshl2_add_u32 s{fT1}, s{fKQ}, s{fTF}']
        flag_store(p, 'L_flag_f', 'L_flag_f_b', own, 0)
        if not sent:
            flag_store(p, 'L_flag_s', 'L_flag_s_b', own, 64)
        spin(p, 'f')
        if sent:
            for i in range(3):
                r = vRS + 10 * i
                p(f'L_sent_{i}:')
                p(f's_mov_b32 s{fSPIN}, 0')
                p(f'L_sent_{i}_l:')
                for l in gather_loads(i, r, vr):
                    p(l)
                p(f's_add_u32 s{fSPIN}, s{fSPIN}, 1')
                p('s_waitcnt vmcnt(0)')
                for l in sent_test(r):
                    p(l)
                p(f's_cmp_ge_u32 s{fSPIN}, 0x40000')
                p(f's_cbranch_scc1 L_sent_{i}_b')
                p(f's_cbranch_vccnz L_sent_{i}_l')
                p(f's_branch L_sent_{i}_b')
        else:
            spin(p, 's')
        if fused:
            flag_store(p, 'L_flag_o', 'L_flag_o_b', o_pre, 0)
            spin(p, 'o')
    return outline


def gen_fin(name='fin_kernel', stamps=False):
    p = Prog()
    ST = Stamps(stamps, 252, 32)
    p.mark('start')
    p('s_cmp_ge_u32 s2, 256')
    p('s_cbranch_scc1 L_fin_end')
    ST.stamp(p, 'start')
    p(f's_load_dwordx2 {sr(pX, 2)}, s[0:1], {KA_X}')
    p(f's_load_dwordx2 {sr(pOUT, 2)}, s[0:1], {KA_OUT}')
    p(f's_load_dwordx2 s[6:7], s[0:1], {KA_WS}')
    p('v_lshrrev_b32 v2, 6, v0')
    p(f'v_and_b32 v{vLANE}, 63, v0')
    p(f'v_readfirstlane_b32 s{sW}, v2')
    p(f'v_lshlrev_b32 v{vL16}, 4, v{vLANE}')
    a, b = early_setup()
    for l in a:
        p(l)
    p('s_waitcnt lgkmcnt(0)')
    srd(p, S_W, 6, off_imm=WF_OFF, nbytes=WF_BYTES)
    for l in b:
        p(l)
    ld = early_loads('')
    emit(p, ld[:17])
    for l in flag_setup():
        p(l)
    for l in late_setup():
        p(l)
    p(f's_mov_b32 s{sNL2E}, 0xbfb8aa3b')
    p(f's_mov_b32 s{sMASK}, 0xffff0000')
    emit(p, ld[17:])
    for x in fin_head():
        p.add(x)
    outline = fin_body(p, ST, False)
    if stamps:
        p('s_waitcnt vmcnt(0)')
    ST.stamp(p, 'stores done')
    ST.dump(p, 1, vT)
    p('L_fin_end:')
    p('s_endpgm')
    p.mark('fin')
    outline(p)
    S = p.seg
    settle([S('start', 'fin')], name)
    if not QUIET[0]:
        estimate(S('fin0', 'fin1'), 'f')
        estimate(S('fin1', 'fin2'), 's')
    return header(name) + render(p.ins), descriptor(name, 512, 102, 256), ST.names
```

```python
from common import *
from sched import *
import sched
import k_fin5 as F
from k_ln import row_sum

S_FO, S_XN, S_WG, S_WU, S_WQ, S_K, S_V, S_HF, S_OF, S_WX, S_FD, S_WF, S_F2 = 4, 8, 12, 16, 20, 24, 28, 32, 36, 40, 44, 48, 92
sW, sH, sRB, sT0, sT1, sT2, sOFF, sST = 52, 53, 54, 55, 56, 57, 58, 59
sXq, sHq, sXS = 60, 64, 68
sLW, sLX, sLK, sMASK, sNL2E, sSCALE, sTILE, sCNT, sBIG, sFL = 70, 71, 72, 73, 74, 75, 76, 77, 78, 79
sRW = 80
sRX = 86
sFS0, sFD0, sFS2, sFD2 = 96, 97, 98, 99
vLANE, vL16, vWG, vWX, vWQ = 1, 2, 3, 4, 5
vA = 6
vTMP = 10
vWF = 24
vXNV = 48
vSG = 80
vACC0, vACC1 = 112, 176
vKD, vVD = 240, 244
vVA = 16
vKA = 246
vL = 124
vS = 128
vNEGM = 160
vP = 176
vRL = 240
aO, aK, aV = 0, 128, 160

aONE, aLS = 192, 196
vFD, vFA, vFZ = 254, 255, 11
OPT = dict(xp=0, loc=0, grp=2, grpab=0, job=0, lag=9, ln=True, wpre=6, bal=True, cpf=True, nt=True, rot=True, kvwrap=False, fmt=True, sc1=False, fused=True)
RING0, SLOT = 40960, 24576
CH = 12288


def slot_base(e):
    return RING0 + SLOT * ((e + 2) % 5)


def xn_reg(qb, ks):
    i = ks * 4 + qb
    return vr(vXNV + 4 * (i - 64), 4) if i >= 64 else ar(4 * i, 4)


def q_reg(ks, qb):
    return vr((vSG if ks < 2 else vXNV) + ((ks & 1) * 4 + qb) * 4, 4)


def q_base(ks, qb):
    return (vSG if ks < 2 else vXNV) + ((ks & 1) * 4 + qb) * 4


def mfma(d, a, b, c):
    return I(f'v_mfma_f32_16x16x32_bf16 {d}, {a}, {b}, {c}')


def NT():
    return ' nt' if OPT['nt'] else ''


class Plan:
    def __init__(self, heavy):
        six = lambda k, h, acc: [(k, h, cc, acc) for cc in range(6)]
        self.heavy = heavy
        self.ch = [(k, 0, cc, acc) for cc in range(6) for k, acc in (('G', vACC0), ('U', vACC1))] + six('G', 1, vACC1) + six('U', 1, vACC0)
        self.regions = [('GU', 0, 12), ('G2', 12, 18), ('U2', 18, 24)]
        sizes = [2] * 12
        if heavy:
            self.ch += six('X', 0, vACC1)
            self.regions.append(('X', 24, 30))
            sizes += [2, 1, 1, 1, 1]
        n = len(self.ch)
        self.q1, self.q2 = (vACC0, vACC1) if heavy else (vACC1, vACC0)
        self.ch += six('Q', 0, self.q1) + six('Q', 1, self.q2)
        self.regions += [('Q1', n, n + 6), ('Q2', n + 6, n + 12)]
        sizes += [2] * 6
        self.epoch = [e for e, k in enumerate(sizes) for _ in range(k)]
        self.pos = [i for k in sizes for i in range(k)]
        self.members = [[c for c in range(len(self.ch)) if self.epoch[c] == e] for e in range(len(sizes))]


PLAN = Plan(True)


def w_dma(c, plan=PLAN):
    kind, half, cc, _ = plan.ch[c]
    e = plan.epoch[c]
    lds = slot_base(e) + plan.pos[c] * CH
    out = []
    for i in range(3):
        if kind in 'GU':
            srd_, vo, sl = (S_WG if kind == 'G' else S_WU), vWG, sLW
            so = i * 32 * 9216 + half * 128
            l = lds + i * 4096
        elif kind == 'Q':
            srd_, vo, sl = S_WQ, vWQ, sLW
            so = i * 32 * 8192 + half * 128
            l = lds + i * 4096
        else:
            srd_, vo, sl = S_WX, vWX, sLX
            so = i * 16 * 9216
            l = lds + i * 1024
        pre = [f's_add_u32 m0, s{sl}, {l}', f's_add_u32 s{sOFF}, s{sRW + cc}, {so}']
        if kind == 'Q' and half == 0 and i == 0:
            pre = [f's_mul_i32 s{sRW + cc}, s{sRX + cc}, 256'] + pre
        out.append(Item(I(f'buffer_load_dwordx4 v{vo}, {sr(srd_, 4)}, s{sOFF} offen{NT()} lds', tag=('W', e)), pre=pre))
    return out


def kv_dma(which, slot, tile=None):
    out = []
    base = (0 if which == 'K' else 65536) + slot * 16384
    for pc in range(4):
        pre = []
        so = sTILE if tile is None else sOFF
        if pc == 0:
            pre.append(f's_add_u32 m0, s{sLK}, {base}')
            if tile is not None:
                pre.append(f's_mov_b32 s{sOFF}, {(tile + (which == "V")) * 16384}')
        vo = vKD + pc if which == 'K' else vVD + (pc & 1)
        srd_ = S_K if which == 'K' else S_V
        out.append(Item(I(f'buffer_load_dwordx4 v{vo}, {sr(srd_, 4)}, s{so} offen offset:{1024 * pc}{NT()} lds',
                          tag=(which, slot)), pre=pre))
    return out


def xn_loads(c):
    out = []
    for qb in range(4):
        for kk in range(3):
            pre = [f's_add_u32 s{sT0}, s{sRX + c}, {qb * XN_MB}'] if kk == 0 else []
            out.append(Item(I(f'buffer_load_dwordx4 {xn_reg(qb, 3 * c + kk)}, v{vL16}, {sr(S_XN, 4)}, s{sT0} offen offset:{1024 * kk}{" sc1" if OPT["ln"] else ""}'),
                            pre=pre))
    return out


def emit_items(p, items):
    for it in items:
        for x in it.pre:
            p.add(x)
        p.add(it.ins)


def addr_gu(base):
    t0, t1, t2 = vTMP, vTMP + 1, vTMP + 2
    L = [f'v_lshrrev_b32 v{t0}, 4, v{vLANE}',
         f'v_bfe_u32 v{t1}, v{vLANE}, 2, 2',
         f'v_lshl_add_u32 v{t2}, v{t0}, 3, v{t1}',
         f'v_lshlrev_b32 v{t2}, 7, v{t2}',
         f'v_and_b32 v{t0}, 1, v{t0}',
         f'v_lshrrev_b32 v{t1}, 1, v{t1}',
         f'v_lshl_or_b32 v{t0}, v{t0}, 1, v{t1}',
         f'v_and_b32 v{t1}, 3, v{vLANE}',
         f'v_lshl_add_u32 v{t2}, v{t1}, 3, v{t2}',
         f'v_add_u32 v{t2}, {base}, v{t2}']
    for nb in range(4):
        L += [f'v_xor_b32 v{t1}, {nb}, v{t0}', f'v_lshl_add_u32 v{vA + nb}, v{t1}, 5, v{t2}']
    return L


def addr_x(base):
    t0, t1, t2 = vTMP, vTMP + 1, vTMP + 2
    L = [f'v_lshrrev_b32 v{t0}, 4, v{vLANE}',
         f'v_bfe_u32 v{t1}, v{vLANE}, 2, 2',
         f'v_lshl_add_u32 v{t2}, v{t0}, 3, v{t1}',
         f'v_lshlrev_b32 v{t2}, 6, v{t2}',
         f'v_and_b32 v{t0}, 1, v{t0}',
         f'v_and_b32 v{t1}, 3, v{vLANE}',
         f'v_lshl_add_u32 v{t2}, v{t1}, 3, v{t2}',
         f'v_add_u32 v{t2}, {base}, v{t2}']
    for nb in range(2):
        L += [f'v_xor_b32 v{t1}, {nb}, v{t0}', f'v_lshl_add_u32 v{vA + nb}, v{t1}, 5, v{t2}']
    return L


def addr_q(base):
    t0, t1, t2 = vTMP, vTMP + 1, vTMP + 2
    L = [f'v_lshrrev_b32 v{t0}, 4, v{vLANE}',
         f'v_bfe_u32 v{t1}, v{vLANE}, 2, 2',
         f'v_lshl_add_u32 v{t2}, v{t0}, 3, v{t1}',
         f'v_lshlrev_b32 v{t2}, 7, v{t2}',
         f'v_add_u32 v{t2}, {base}, v{t2}',
         f'v_and_b32 v{t0}, 1, v{t0}',
         f'v_lshrrev_b32 v{t1}, 1, v{t1}',
         f'v_lshl_or_b32 v{t0}, v{t0}, 1, v{t1}',
         f'v_lshlrev_b32 v{t0}, 1, v{t0}',
         f'v_and_b32 v{t1}, 3, v{vLANE}',
         f'v_xor_b32 v{t0}, v{t0}, v{t1}',
         f'v_lshl_add_u32 v{vA}, v{t0}, 4, v{t2}',
         f'v_xor_b32 v{t0}, 4, v{t0}',
         f'v_lshl_add_u32 v{vA + 1}, v{t0}, 4, v{t2}']
    return L


def kv_dma_addr():
    t0, t1, t2 = vTMP + 3, vTMP + 4, vTMP + 5
    L = [f'v_lshrrev_b32 v{t0}, 4, v{vLANE}',
         f'v_and_b32 v{t1}, 15, v{vLANE}',
         f'v_lshlrev_b32 v{t2}, 8, v{t0}',
         f'v_add_u32 v{t2}, s{sLK}, v{t2}']
    for pc in range(4):
        L += [f'v_or_b32 v{vKD + pc}, {4 * pc}, v{t0}', f'v_xor_b32 v{vKD + pc}, v{vKD + pc}, v{t1}',
              f'v_lshl_add_u32 v{vKD + pc}, v{vKD + pc}, 4, v{t2}']
    for pc in range(2):
        L += [f'v_or_b32 v{vVD + pc}, {4 * pc}, v{t0}', f'v_lshlrev_b32 v{vVD + pc}, 1, v{vVD + pc}',
              f'v_xor_b32 v{vVD + pc}, v{vVD + pc}, v{t1}', f'v_lshl_add_u32 v{vVD + pc}, v{vVD + pc}, 4, v{t2}']
    return L


def kv_read_addr(vbase=65536):
    t0, t1, t2 = vTMP + 3, vTMP + 4, vTMP + 5
    L = [f'v_lshrrev_b32 v{t0}, 4, v{vLANE}',
         f'v_and_b32 v{t1}, 15, v{vLANE}',
         f'v_lshlrev_b32 v{t2}, 8, v{t1}',
         f'v_xor_b32 v{t1}, v{t0}, v{t1}']
    for ks in range(4):
        L += [f'v_xor_b32 v{vKA + ks}, {4 * ks}, v{t1}', f'v_lshl_add_u32 v{vKA + ks}, v{vKA + ks}, 4, v{t2}']
    L += [f'v_lshrrev_b32 v{t0}, 2, v{vLANE}',
          f'v_and_b32 v{t1}, 3, v{vLANE}',
          f'v_lshlrev_b32 v{t1}, 3, v{t1}',
          f'v_lshl_add_u32 v{t2}, v{t0}, 8, v{t1}',
          f'v_add_u32 v{t2}, {vbase}, v{t2}',
          f'v_and_b32 v{t0}, 7, v{t0}']
    for db in range(8):
        L += [f'v_xor_b32 v{vVA + db}, {db}, v{t0}', f'v_lshl_add_u32 v{vVA + db}, v{vVA + db}, 5, v{t2}']
    return L


def tile(acc, nb, qb, nq=4):
    return acc + (nb * nq + qb) * 4


def silu_ops(g, t0, t1):
    return [f'v_mul_f32 v{t0}, s{sNL2E}, v{g}', f'v_exp_f32 v{t0}, v{t0}', f'v_add_f32 v{t0}, 1.0, v{t0}',
            f'v_rcp_f32 v{t0}, v{t0}', f'v_mul_f32 v{g}, v{g}, v{t0}']


def stream_silu(acc):
    out = []
    for j in range(2):
        for qb in range(4):
            for half in range(2):
                tb = tile(acc, 2 * j + half, qb)
                tmp = vTMP + 6 + 4 * (half & 1)
                st = [silu_ops(tb + r, tmp + r, None) for r in range(4)]
                for s in range(5):
                    for r in range(4):
                        out.append(Item(st[r][s]))
                sg = vSG + (j * 4 + qb) * 4 + 2 * half
                out.append(Item(f'v_cvt_pk_bf16_f32 v{sg}, v{tb}, v{tb + 1}'))
                out.append(Item(f'v_cvt_pk_bf16_f32 v{sg + 1}, v{tb + 2}, v{tb + 3}'))
    return out


def stream_finish_h(acc, pair):
    out = []
    n = 0
    for j in range(2):
        for qb in range(4):
            sg = vSG + (j * 4 + qb) * 4
            for half in range(2):
                tb = tile(acc, 2 * j + half, qb)
                tmp = vTMP + 6 + 4 * (n & 1)
                n += 1
                for dd in range(2):
                    out.append(Item(f'v_lshlrev_b32 v{tmp + 2 * dd}, 16, v{sg + 2 * half + dd}'))
                    out.append(Item(f'v_and_b32 v{tmp + 2 * dd + 1}, s{sMASK}, v{sg + 2 * half + dd}'))
                for r in range(4):
                    out.append(Item(f'v_mul_f32 v{tb + r}, v{tb + r}, v{tmp + r}'))
                for dd in range(2):
                    out.append(Item(f'v_cvt_pk_bf16_f32 v{sg + 2 * half + dd}, v{tb + 2 * dd}, v{tb + 2 * dd + 1}'))
            out.append(Item(f'buffer_store_dwordx4 {vr(sg, 4)}, v{vL16}, {sr(S_HF, 4)}, s{sST} offen{LOC()}',
                            pre=[f's_add_u32 s{sST}, s{sHq + qb}, {(2 * pair + j) * STEP}']))
    return out


def sg_reg(nb, qb):
    return vSG + ((nb >> 1) * 4 + qb) * 4 + 2 * (nb & 1)


def stream_h_direct(acc):
    out = []
    n = 0
    for j in range(2):
        for qb in range(4):
            for half in range(2):
                tb, sg = tile(acc, 2 * j + half, qb), sg_reg(2 * j + half, qb)
                tmp = vTMP + 6 + 4 * (n & 1)
                n += 1
                st = [silu_ops(tb + r, tmp + r, None) for r in range(4)]
                for k in range(5):
                    out += [Item(st[r][k]) for r in range(4)]
                for dd in range(2):
                    out.append(Item(f'v_lshlrev_b32 v{tmp + 2 * dd}, 16, v{sg + dd}'))
                    out.append(Item(f'v_and_b32 v{tmp + 2 * dd + 1}, s{sMASK}, v{sg + dd}'))
                out += [Item(f'v_mul_f32 v{tb + r}, v{tb + r}, v{tmp + r}') for r in range(4)]
                out += [Item(f'v_cvt_pk_bf16_f32 v{sg + dd}, v{tb + 2 * dd}, v{tb + 2 * dd + 1}') for dd in range(2)]
            out.append(Item(f'buffer_store_dwordx4 {vr(vSG + (j * 4 + qb) * 4, 4)}, v{vL16}, {sr(S_HF, 4)}, s{sST} offen{LOC()}',
                            pre=[f's_add_u32 s{sST}, s{sHq + qb}, {j * STEP}']))
    return out


def stream_x_epi(acc):
    out = []
    for qb in range(4):
        dst = vSG + qb * 4
        for half in range(2):
            tg = tile(acc, half, qb)
            tu = tile(acc, 2 + half, qb)
            tmp = vTMP + 6 + 4 * half
            st = [silu_ops(tg + r, tmp + r, None) + [f'v_mul_f32 v{tg + r}, v{tg + r}, v{tu + r}'] for r in range(4)]
            for s in range(6):
                for r in range(4):
                    out.append(Item(st[r][s]))
            for dd in range(2):
                out.append(Item(f'v_cvt_pk_bf16_f32 v{dst + 2 * half + dd}, v{tg + 2 * dd}, v{tg + 2 * dd + 1}'))
        out.append(Item(f'buffer_store_dwordx4 {vr(dst, 4)}, v{vL16}, {sr(S_HF, 4)}, s{sXS} offen offset:{1024 * qb}{SC1()}'))
    return out


def stream_q_epi(acc, ps, nbs=None):
    out = []
    for ksub in range(2):
        for half in range(2):
            for qb in range(4):
                tb = tile(acc, 2 * ksub + half, qb)
                nb = nbs[(ksub, half, qb)] if nbs else 0
                for r in range(4):
                    out.append(Item(f'v_mul_f32 v{tb + r}, s{sSCALE}, v{tb + r}', nb=nb))
                d = q_base(2 * ps + ksub, qb) + 2 * half
                nbw = nbs[('w', ksub, qb)] if nbs else 0
                for dd in range(2):
                    out.append(Item(f'v_cvt_pk_bf16_f32 v{d + dd}, v{tb + 2 * dd}, v{tb + 2 * dd + 1}', nb=max(nb, nbw)))
    return out


def LOC():
    return '' if OPT['loc'] else SC1()


def SC1():
    return ' sc1' if (OPT['sc1'] or OPT['fused']) else ''


sLOC = 69
S_J, sJB, sTGL = 40, 60, 61
vJ, vJA = 24, 28


def fmt_dma(i):
    out = []
    for pc in range(4):
        pp = [f's_add_u32 m0, s{sFL}, {(i & 1) * 4096 + pc * 1024}', f's_add_u32 s{sOFF}, s{sFS2 if i == 2 else sFS0}, {pc * 9216}']
        out.append(Item(I(f'buffer_load_dwordx4 v{vFD}, {sr((S_FD, S_FO, S_F2)[i], 4)}, s{sOFF} offen{NT()} lds', tag=('F', i)), pre=pp))
    return out


def fmt_inline(GG):
    force(GG, fmt_dma(0) + fmt_dma(1), list(range(8)))
    force(GG, fmt_dma(2), [BLK[3] + 24 + 2 * n for n in range(4)])
    rd_at = {0: 66, 1: PER + 2, 2: PER + 74}
    n = 0
    for i in range(3):
        for nb in range(4):
            r = vWF + ((i * 4 + nb) % 6) * 4
            a = vTMP + 3 + (nb & 1)
            g = rd_at[i] + (6 if i != 1 else 12) * nb
            force(GG, [Item(f'v_xor_b32 v{a}, {nb << 5}, v{vFA}')], [g])
            if nb == 0:
                force(GG, [Item(W(tags=[('F', i)]))], [g + 2])
            force(GG, [Item(f'ds_read_b64_tr_b16 {vr(r + 2 * t, 2)}, v{a} offset:{(i & 1) * 4096 + t * 2048}') for t in range(2)], [g + 2, g + 4])
            pre = [f's_add_u32 s{sFD0}, s{sFD0}, s3'] if (i == 1 and nb == 0) else []
            force(GG, [Item(f'buffer_store_dwordx4 {vr(r, 4)}, v{vL16}, {sr(S_WF, 4)}, s{sFD2 if i == 2 else sFD0} offen offset:{nb * 1024}{SC1()}', pre=pre)],
                  [(84, 100, 116, 132, 148, 164, 180, 196, 218, 232, 246, 260)[n]])
            n += 1


def job_items(T, g):
    g[32].append(I(f'buffer_store_dwordx4 {vr(vJ, 4)}, v{vL16}, {sr(S_J, 4)}, s{sJB} offen offset:{((T - 1) & 3) * 1024}{SC1()}'))
    g[33].append(I(f'v_xor_b32 v{vJA}, {(T & 3) << 5}, v{vFA}'))
    for t in range(2):
        g[BLK[2] + 32 + t].append(I(f'ds_read_b64_tr_b16 {vr(vJ + 2 * t, 2)}, v{vJA} offset:{t * 2048}'))
    if T == 3:
        g[BLK[3] + 13].append(I(f'v_xor_b32 v{vFA}, s{sTGL}, v{vFA}'))


def job_setup():
    return [f's_mov_b32 s{S_J}, s{S_WF}', f's_mov_b32 s{S_J + 1}, s{S_WF + 1}', f's_mov_b32 s{S_J + 2}, {PART_OFF + PART_BYTES - WF_OFF}',
            f's_mov_b32 s{S_J + 3}, 0x20000', f's_mov_b32 s{sJB}, 0x7f000000', f's_mov_b32 s{sTGL}, 0']


def side_jobs(p):
    sent = OPT['fused'] and F.OPT['sent']
    assert not (OPT['job'] and OPT['loc'])
    if OPT['loc'] and OPT['fused']:
        p('L_job0:')
        p(f's_cmp_lg_u32 s{sW}, 0')
        p('s_cbranch_scc1 L_job_b')
        for l in DBG_SRD:
            p(l)
        p(f's_and_b32 s{sT0}, s2, 7')
        p(f's_lshl_b32 s{sT0}, s{sT0}, 5')
        p(f's_getreg_b32 s{sT1}, hwreg(HW_REG_XCC_ID)')
        p(f's_and_b32 s{sT1}, s{sT1}, 7')
        p(f's_mul_i32 s{sT1}, s{sT1}, 6')
        p(f's_cmp_eq_u32 s{sCNT}, 6')
        p('s_cbranch_scc1 L_job1')
        p(f's_cmp_eq_u32 s{sCNT}, 5')
        p('s_cbranch_scc1 L_job2')
        p(f's_lshl_b64 s[62:63], 1, s{sT1}')
        p('v_mov_b32 v4, s62')
        p('v_mov_b32 v5, s63')
        p('s_mov_b64 exec, 1')
        p(f'buffer_atomic_add_x2 v[4:5], off, {sr(F.S_DBG, 4)}, s{sT0} offset:8 sc1')
        p('s_mov_b64 exec, -1')
        p('s_branch L_job_b')
        p('L_job1:')
        p(f'buffer_load_dwordx2 v[4:5], off, {sr(F.S_DBG, 4)}, s{sT0} offset:8 sc1')
        p('s_branch L_job_b')
        p('L_job2:')
        p('v_readfirstlane_b32 s62, v4')
        p('v_readfirstlane_b32 s63, v5')
        p('s_nop 1')
        p(f's_lshr_b64 s[62:63], s[62:63], s{sT1}')
        p('s_and_b32 s62, s62, 63')
        p(f's_cmp_eq_u32 s62, {99 if OPT["loc"] == 2 else 32}')
        p(f's_cselect_b32 s{sLOC}, 1, 0')
        p('s_cbranch_scc1 L_job3')
        p('buffer_wbl2 sc1')
        p('s_waitcnt vmcnt(0)')
        p('L_job3:')
        p(f'v_mov_b32 v{vTMP}, 1')
        p('s_mov_b64 exec, 1')
        p(f'buffer_atomic_add v{vTMP}, off, {sr(F.S_DBG, 4)}, s{sT0} sc1')
        p('s_mov_b64 exec, -1')
        p('s_branch L_job_b')
        return
    for k in (range(6) if OPT['job'] else [4]):
        p(f'L_job{k}:' if OPT['job'] else 'L_job0:')
        if k < 5 and OPT['job']:
            p(f's_cmp_lg_u32 s{sCNT}, {7 - k}')
            p(f's_cbranch_scc1 L_job{k + 1}')
        if k == 0:
            p(f's_mov_b32 s{sJB}, s{sFD0}')
            p(f's_mov_b32 s{sTGL}, 4096')
        elif k == 1:
            p(f's_add_u32 s{sJB}, s{sFD0}, s3')
        elif k == 2:
            p(f's_mov_b32 s{sJB}, s{sFD2}')
            for r in range(4):
                p(f'v_mov_b32 v{4 + r}, -1')
            p(f'v_add_u32 v{vTMP}, s{sFL}, v{vL16}')
            for r in range(4):
                p(f'ds_write_b128 v{vTMP}, v[4:7] offset:{4096 + 1024 * r}')
        elif k == 3:
            p(f's_mov_b32 s{sTGL}, 0')
            for l in (F.slab_offset(sJB, sT0) if sent else [f's_mov_b32 s{sJB}, 0x7f000000']):
                p(l)
        elif k == 4:
            p(f's_add_u32 s{sJB}, s{sJB}, 4096')
            if OPT['fused']:
                p(f's_cmp_lg_u32 s{sW}, 0')
                p('s_cbranch_scc1 L_job_b')
                for l in DBG_SRD:
                    p(l)
                p(f's_and_b32 s{sT0}, s2, 7')
                p(f's_lshl_b32 s{sT0}, s{sT0}, 5')
                p(f'v_mov_b32 v{vTMP}, 1')
                p('s_mov_b64 exec, 1')
                p(f'buffer_atomic_add v{vTMP}, off, {sr(F.S_DBG, 4)}, s{sT0} sc1')
                p('s_mov_b64 exec, -1')
        else:
            p(f's_mov_b32 s{sJB}, 0x7f000000')
        if k < 2:
            emit_items(p, fmt_dma(k + 1))
        p('s_branch L_job_b')


def k_reads(slot, kb, buf):
    return [I(f'ds_read_b128 {ar(aK + buf * 16 + ks * 4, 4)}, v{vKA + ks} offset:{slot * 16384 + kb * 4096}') for ks in range(4)]


def v_reads(slot, db, base, kks=(0, 1)):
    out = []
    for n, kk in enumerate(kks):
        for t in range(2):
            out.append(I(f'ds_read_b64_tr_b16 {ar(base + n * 4 + 2 * t, 2)}, v{vVA + db} offset:{slot * 16384 + kk * 8192 + t * 4096}'))
    return out


def qk_block(kb, c0=False):
    sb = vS + (kb & 1) * 16
    out = []
    for qb in range(4):
        for ks in range(4):
            d = vr(sb + qb * 4, 4)
            c = d if ks else ('0' if c0 else vr(vNEGM + qb * 4, 4))
            out.append(mfma(d, ar(aK + (kb & 1) * 16 + ks * 4, 4), q_reg(ks, qb), c))
    return out


def p_reg(buf, kk, qb):
    return vP + buf * 32 + (kk * 4 + qb) * 4


MS = (1, 3)
VS = (0, 2)
NMS = 2


def ones_mfma(pbuf, kk, qb, first=False):
    d = ar(aLS + (qb >> 1) * 4, 4)
    return mfma(d, ar(aONE, 4), vr(p_reg(pbuf, kk, qb), 4), '0' if first else d)


def pv_block(i, pbuf, first=False):
    out = []
    for db in (2 * i, 2 * i + 1):
        for qb in range(4):
            for kk in range(2):
                d = ar(aO + (db * 4 + qb) * 4, 4)
                c = '0' if (first and kk == 0) else d
                out.append(mfma(d, ar(aV + (db & 1) * 8 + kk * 4, 4), vr(p_reg(pbuf, kk, qb), 4), c))
    if i in (0, 2):
        out += [ones_mfma(pbuf, 0, i + 1, first), ones_mfma(pbuf, 1, i + 1)]
    return out


def sm_stream(kb, pbuf, sub=False, init=False):
    sb = vS + (kb & 1) * 16
    out = []
    for qb in range(4):
        for r in range(4):
            s = sb + qb * 4 + r
            if sub:
                out.append(Item(f'v_add_f32 v{s}, v{vNEGM + qb * 4}, v{s}'))
            out.append(Item(f'v_exp_f32 v{s}, v{s}'))
            if qb in VS:
                if init and r == 0:
                    out.append(Item(f'v_mov_b32 v{vL + qb}, v{s}'))
                else:
                    out.append(Item(f'v_add_f32 v{vL + qb}, v{vL + qb}, v{s}'))
            if r & 1:
                d = p_reg(pbuf, kb >> 1, qb) + (kb & 1) * 2 + (r >> 1)
                out.append(Item(f'v_cvt_pk_bf16_f32 v{d}, v{s - 1}, v{s}'))
    return out


def xlane(op, v, t):
    return [f'v_mov_b32 v{t}, v{v}', f'v_permlane16_swap_b32 v{t}, v{v}', f'{op} v{v}, v{v}, v{t}',
            f'v_mov_b32 v{t}, v{v}', f'v_permlane32_swap_b32 v{t}, v{v}', f'{op} v{v}, v{v}, v{t}']


BLK = [0, 34, 66, 100, 132]
PER = 132


def wr(ins_list):
    return [r for x in ins_list for r in x.writes]


def period_skeleton(T, first=False, final=False, nodma=False):
    mf, gaps = [], []
    ksl, vsl = (T + 1) & 3, T & 3
    dma = kv_dma('K', T & 3) + kv_dma('V', (T + 3) & 3)
    nodma = nodma or final
    for i in range(4):
        mf += qk_block(i) + pv_block(i, T & 1, first)
        g = [[] for _ in range(BLK[i + 1] - BLK[i])]
        vo = v_reads(vsl, 2 * i + 1, aV + 8)
        for n in range(4):
            g[1 + 2 * n].append(vo[n])
        if OPT['grp'] == 2:
            for n in range(0 if nodma else 2):
                it = dma[2 * i + n]
                g[8][0:0] = it.pre
                g[(9, 23)[n]].append(it.ins)
        elif OPT['grp']:
            for n in range(4 if (i & 1 and not nodma) else 0):
                it = dma[2 * (i - 1) + n]
                g[6][0:0] = it.pre
                g[8 + n].append(it.ins)
        else:
            for n in range(0 if nodma else 2):
                it = dma[2 * i + n]
                g[8 + 2 * n][0:0] = it.pre
                g[9 + 2 * n].append(it.ins)
        if i < 3:
            g[15].append(W(lgkm0=True))
            kr = k_reads(ksl, i + 1, (i + 1) & 1)
            ve = v_reads(vsl, 2 * i + 2, aV)
        else:
            g[15] += [W(tags=[('K', (T + 2) & 3), ('V', (T + 1) & 3)] + ([('K', 0)] if nodma else []), lgkm0=True), I('s_barrier')]
            g[24 if OPT['grp'] == 2 else 12].append(I(f's_add_u32 s{sTILE}, s{sTILE}, {0 if OPT["kvwrap"] else 16384}'))
            kr = k_reads((T + 2) & 3, 0, 0)
            if final:
                kr = v_reads(3, 1, aK, (0,)) + v_reads(3, 2, aK + 4, (0,))
            ve = v_reads((T + 1) & 3, 0, aV)
        for n in range(4):
            g[(15 if OPT['grp'] == 2 else 17) + 2 * n].append(kr[n])
            g[25 + 2 * n].append(ve[n])
        g[-1].insert(0, W(regs=wr(kr)))
        gaps += g
    return mf, gaps


def clone(ins):
    if ins.kind == 'autowait':
        return W(ins.reads, ins.meta['wait_tags'], ins.meta['wait_lgkm0'])
    m = {k: v for k, v in ins.meta.items() if k in ('tag', 'wait_tags', 'wait_lgkm0', 'own')}
    return Ins(ins.text, **m)


def place_softmax(G):
    n = len(G)
    plain = []
    for T in range(4):
        for kb in range(4):
            qk = (0, 2, 4, 6, 12, 13, 14, 15) if (OPT['grp'] == 1 and kb == 0) else (0, 2, 4, 6, 12, 13, 14, 16) if (OPT['grp'] == 1 and kb == 2) else range(0, 16, 2)
            pv = (18, 20, 22, 24, 26, 28, 30) if (OPT['grp'] == 1 and kb == 3) else range(16, 32, 2)
            if OPT['grp'] == 1 and kb == 3:
                qk = (0, 2, 4, 6, 8, 10, 11, 12, 14)
            eg = [T * PER + BLK[kb] + k for k in pv] + [T * PER + BLK[kb + 1] + k for k in qk]
            at = {}
            k = 0
            for it in sm_stream(kb, (T + 1) & 1):
                it.ins.meta['own'] = (T, kb)
                if it.ins.kind == 'trans':
                    assert slots(G[eg[k] % n]) == 0
                    G[eg[k] % n].append(it.ins)
                    at[it.ins.writes[0]] = eg[k]
                    k += 1
                else:
                    plain.append((max(at[r] for r in it.ins.reads if r in at) + 2, it.ins, T, kb))
    cur = 0
    cut = next(k for k, e in enumerate(plain) if e[0] > BLK[1])
    plain = plain[cut:] + [(lo + n, x, T + 4, kb) for lo, x, T, kb in plain[:cut]]
    for lo, x, T, kb in plain:
        qb = (int(x.reads[-1][1:]) - vS) % 16 // 4
        lim = T * PER + (BLK[kb + 2] if kb < 2 else PER + BLK[kb - 2]) + 4 * qb
        if kb >= 2 and x.op.startswith('v_cvt'):
            lim = min(lim, (T + 1) * PER + 16 + 2 * qb - 1)
        gi = max(lo, cur)
        top = min(lim, gi + OPT['lag'])
        assert gi < lim, (gi, lim, x.text)
        gi = min(range(gi, top), key=lambda k: (max(2, slots(G[k % n] + [x])), k))
        G[gi % n].append(x)
        cur = gi


def o_epi_items(j, tmpsets, nb=0):
    out = []
    for qb in range(4):
        t = tmpsets[(j * 4 + qb) % len(tmpsets)]
        for half in range(2):
            for r in range(4):
                out.append(Item(f'v_accvgpr_read_b32 v{t + 4 * half + r}, a{aO + ((2 * j + half) * 4 + qb) * 4 + r}', nb=nb))
        for r in range(8):
            out.append(Item(f'v_mul_f32 v{t + r}, v{t + r}, v{vRL + qb}'))
        for dd in range(4):
            out.append(Item(f'v_cvt_pk_bf16_f32 v{t + 8 + dd}, v{t + 2 * dd}, v{t + 2 * dd + 1}'))
        out.append(Item(f'buffer_store_dwordx4 {vr(t + 8, 4)}, v{vL16}, {sr(S_OF, 4)}, s{sST} offen{LOC()}',
                        pre=[f's_add_u32 s{sST}, s{sHq + qb}, {j * STEP}']))
    return out


DBG_SRD = [f's_mov_b32 s{F.S_DBG}, s{F.pDBG}', f's_mov_b32 s{F.S_DBG + 1}, s{F.pDBG + 1}',
           f's_mov_b32 s{F.S_DBG + 2}, 256', f's_mov_b32 s{F.S_DBG + 3}, 0x20000']


PIV, OWN, FL, XCH = 112, 116, 128, 160


def ln_loads(p, ST):
    t0, t1 = vTMP, vTMP + 1
    p(f'v_and_b32 v{t0}, 7, v{vLANE}')
    p(f'v_lshrrev_b32 v{t1}, 3, v{vLANE}')
    p(f'v_mul_u32_u24 v{vA + 2}, 1152, v{t0}')
    p(f'v_lshl_add_u32 v{vA}, v{t1}, 4, v{vA + 2}')
    p(f's_lshl_b32 s{sT0}, s{sRB}, 5')
    p(f's_add_u32 s{sT0}, s{sT0}, s{sH}')
    p(f's_mul_i32 s{sT1}, s{sT0}, 9216')
    p(f's_lshl_b32 s{sT2}, s{sW}, 8')
    p(f's_add_u32 s{sT2}, s{sT2}, s{sT1}')
    p('s_waitcnt lgkmcnt(0)')
    ST.stamp(p, 'kernarg')
    srd(p, S_K, 8, nbytes=X_BYTES)
    p(f'buffer_load_dword v{PIV}, v{vA + 2}, {sr(S_K, 4)}, s{sT1} offen')
    for i in range(3):
        p(f'buffer_load_dwordx4 {vr(OWN + 4 * i, 4)}, v{vA}, {sr(S_K, 4)}, s{sT2} offen offset:{128 * i}')
    p(f'v_lshlrev_b32 v{vA + 1}, 8, v{t1}')
    p(f'v_lshl_add_u32 v{vA + 1}, v{t0}, 4, v{vA + 1}')
    p(f'v_lshlrev_b32 v{vA + 2}, 5, v{t0}')
    p(f's_lshl_b32 s{sT1}, s{sW}, 3')
    p(f'v_add_u32 v{vA + 3}, s{sT1}, v{vA + 2}')
    p(f's_lshr_b32 s{sCNT}, s{sT0}, 1')
    p(f's_mul_i32 s{sCNT}, s{sCNT}, {XN_MB}')
    p(f's_and_b32 s{sT0}, s{sT0}, 1')
    p(f's_lshl_b32 s{sT0}, s{sT0}, 7')
    p(f's_add_u32 s{sCNT}, s{sCNT}, s{sT0}')
    p(f's_lshl_b32 s{sT0}, s{sW}, 12')
    p(f's_add_u32 s{sCNT}, s{sCNT}, s{sT0}')


def ln_compute(p, ST):
    a0, q0, a2, q2, m, v, t = vTMP, vTMP + 1, vTMP + 2, vTMP + 3, vTMP + 4, vTMP + 6, vTMP + 8
    p(f's_cmp_eq_u32 s{sW}, 3')
    p(f's_cselect_b32 s{sT1}, 1.0, 0')
    p(f's_cselect_b32 s{sT0}, 0, 0x7f000000')
    p(f's_add_u32 s{sT0}, s{sT0}, s{sCNT}')
    p(f's_add_u32 s{sT0}, s{sT0}, 4096')
    ST.stamp(p, 'setup1')
    if ST.on:
        p('s_waitcnt vmcnt(1)')
    ST.stamp(p, 'x here')
    p(f'v_lshlrev_b32 v{PIV}, 16, v{PIV}')
    for d in range(12):
        p(f'v_lshlrev_b32 v{FL + 2 * d}, 16, v{OWN + d}')
        p(f'v_and_b32 v{FL + 2 * d + 1}, s{sMASK}, v{OWN + d}')
    for k in range(24):
        sa, sq = (a0, q0) if k < 16 else (a2, q2)
        dtmp = XCH + (k & 3)
        p(f'v_sub_f32 v{dtmp}, v{FL + k}, v{PIV}')
        if k in (0, 16):
            p(f'v_mov_b32 v{sa}, v{dtmp}')
            p(f'v_mul_f32 v{sq}, v{dtmp}, v{dtmp}')
        else:
            p(f'v_add_f32 v{sa}, v{sa}, v{dtmp}')
            p(f'v_fmac_f32 v{sq}, v{dtmp}, v{dtmp}')
    p(f'v_fmac_f32 v{a0}, s{sT1}, v{a2}')
    p(f'v_fmac_f32 v{q0}, s{sT1}, v{q2}')
    for x in (a0, q0):
        p(f'v_add_f32_dpp v{x}, v{x}, v{x} row_ror:8 row_mask:0xf bank_mask:0xf')
    for sw in ('v_permlane16_swap_b32', 'v_permlane32_swap_b32'):
        p(f'v_mov_b32 v{a2}, v{a0}')
        p(f'v_mov_b32 v{q2}, v{q0}')
        p(f'{sw} v{a2}, v{a0}')
        p(f'{sw} v{q2}, v{q0}')
        p(f'v_add_f32 v{a0}, v{a0}, v{a2}')
        p(f'v_add_f32 v{q0}, v{q0}, v{q2}')
    p(f'ds_write_b64 v{vA + 3}, {vr(a0, 2)}')
    p('s_waitcnt lgkmcnt(0)')
    p('s_barrier')
    ST.stamp(p, 'xch')
    p(f'ds_read_b128 {vr(XCH, 4)}, v{vA + 2}')
    p(f'ds_read_b128 {vr(XCH + 4, 4)}, v{vA + 2} offset:16')
    p(f'v_add_f32 v{a0}, v{XCH}, v{XCH + 2}')
    p(f'v_add_f32 v{q0}, v{XCH + 1}, v{XCH + 3}')
    p(f'v_add_f32 v{a2}, v{XCH + 4}, v{XCH + 6}')
    p(f'v_add_f32 v{q2}, v{XCH + 5}, v{XCH + 7}')
    p(f'v_add_f32 v{a0}, v{a0}, v{a2}')
    p(f'v_add_f32 v{q0}, v{q0}, v{q2}')
    p(f'v_mul_f32 v{a0}, 0x3ae38e39, v{a0}')
    p(f'v_mul_f32 v{q0}, 0x3ae38e39, v{q0}')
    p(f'v_add_f32 v{m}, v{PIV}, v{a0}')
    p(f'v_fma_f32 v{v}, -v{a0}, v{a0}, v{q0}')
    p(f'v_max_f32 v{v}, 0, v{v}')
    p(f'v_cvt_pk_bf16_f32 v{t}, v{m}, v{v}')
    p(f'v_lshlrev_b32 v{m}, 16, v{t}')
    p(f'v_and_b32 v{v}, s{sMASK}, v{t}')
    p(f'v_add_f32 v{v}, 0x3727c5ac, v{v}')
    p(f'v_cvt_pk_bf16_f32 v{v}, v{v}, v{v}')
    p(f'v_and_b32 v{v}, s{sMASK}, v{v}')
    p(f'v_sqrt_f32 v{v}, v{v}')
    for k in range(8):
        p(f'v_sub_f32 v{FL + k}, v{FL + k}, v{m}')
    p(f'v_cvt_pk_bf16_f32 v{v}, v{v}, v{v}')
    p(f'v_and_b32 v{v}, s{sMASK}, v{v}')
    p(f'v_rcp_f32 v{v}, v{v}')
    for i in range(3):
        for k in range(0 if i else 1, 5):
            for dd in range(4):
                d = 4 * i + dd
                f = FL + 2 * d
                p([f'v_sub_f32 v{f}, v{f}, v{m}\nv_sub_f32 v{f + 1}, v{f + 1}, v{m}',
                   f'v_cvt_pk_bf16_f32 v{OWN + d}, v{f}, v{f + 1}',
                   f'v_lshlrev_b32 v{f}, 16, v{OWN + d}\nv_and_b32 v{f + 1}, s{sMASK}, v{OWN + d}',
                   f'v_mul_f32 v{f}, v{f}, v{v}\nv_mul_f32 v{f + 1}, v{f + 1}, v{v}',
                   f'v_cvt_pk_bf16_f32 v{OWN + d}, v{f}, v{f + 1}'][k])
        so, off = (sCNT, 2048 * i) if i < 2 else (sT0, 0)
        p(f'buffer_store_dwordx4 {vr(OWN + 4 * i, 4)}, v{vA + 1}, {sr(S_V, 4)}, s{so} offen offset:{off} sc1', tag='XN')


def ln_signal(p):
    p.add(W(tags=['XN']))
    p('s_barrier')
    p(f's_lshl_b32 s{sCNT}, s{sRB}, 5')
    p(f's_cmp_lg_u32 s{sW}, 0')
    p('s_cbranch_scc1 L_ln_sent')
    p(f'v_mov_b32 v{vTMP}, 1')
    p('s_mov_b64 exec, 1')
    p(f'buffer_atomic_add v{vTMP}, off, {sr(S_HF, 4)}, s{sCNT} offset:16 sc1')
    p('s_mov_b64 exec, -1')
    p('L_ln_sent:')


def ln_wait(p):
    p(f's_cmp_lg_u32 s{sW}, 0')
    p('s_cbranch_scc1 L_ln_ready')
    p(f's_mov_b32 s{sT0}, 0')
    p('L_ln_poll:')
    p(f'buffer_load_dword v{vTMP + 8}, off, {sr(S_HF, 4)}, s{sCNT} offset:16 sc1')
    p(f's_add_u32 s{sT0}, s{sT0}, 1')
    p('s_waitcnt vmcnt(0)')
    p(f'v_cmp_gt_u32 vcc, 32, v{vTMP + 8}')
    p(f's_cmp_ge_u32 s{sT0}, 0x40000')
    p('s_cbranch_scc1 L_ln_ready')
    p('s_cbranch_vccnz L_ln_poll')
    p('L_ln_ready:')
    p('s_barrier')


def setup(p, ST):
    p('s_cmp_ge_u32 s2, 256')
    p('s_cbranch_scc1 L_main_end')
    ST.stamp(p, 'start')
    ln = OPT['ln']
    if ln:
        p(f's_load_dwordx2 s[8:9], s[0:1], {KA_X}')
        p(f's_load_dwordx2 s[10:11], s[0:1], {KA_DBG}')
    p(f's_load_dwordx4 s[48:51], s[0:1], {KA_WG}')
    p(f's_load_dwordx2 s[46:47], s[0:1], {KA_WS}')
    p(f's_load_dwordx4 s[4:7], s[0:1], {KA_K}')
    p(f's_load_dwordx2 s[44:45], s[0:1], {KA_WQ}')
    p(f's_load_dwordx2 s[98:99], s[0:1], {KA_WO}')
    p(f's_load_dwordx2 s[92:93], s[0:1], {KA_WD}')
    p('v_lshrrev_b32 v2, 6, v0')
    p(f'v_and_b32 v{vLANE}, 63, v0')
    p(f'v_readfirstlane_b32 s{sW}, v2')
    p(f'v_lshlrev_b32 v{vL16}, 4, v{vLANE}')
    p(f's_and_b32 s{sT0}, s2, 3')
    p(f's_lshr_b32 s{sT1}, s2, 5')
    p(f's_lshl3_add_u32 s{sH}, s{sT0}, s{sT1}')
    p(f's_and_b32 s{sT0}, s2, 4')
    p(f's_bfe_u32 s{sT1}, s2, 0x20003')
    p(f's_add_u32 s{sRB}, s{sT0}, s{sT1}')
    t0, t1, t2 = vTMP, vTMP + 1, vTMP + 2
    if ln:
        ln_loads(p, ST)
    if OPT['cpf']:
        p('s_getpc_b64 s[20:21]')
        p('L_cpf:')
        p('s_mov_b32 s22, L_slow-L_cpf')
        p('s_mov_b32 s23, 0x20000')
        p(f's_lshr_b32 s{sT0}, s2, 3')
        p(f's_lshl2_add_u32 s{sT0}, s{sT0}, s{sW}')
        p(f's_mul_i32 s{sT0}, s{sT0}, 896')
        p(f'v_lshlrev_b32 v{t0}, 7, v{vLANE}')
        p('s_mov_b64 exec, 0x7f')
        p(f'buffer_load_dword v{vTMP + 12}, v{t0}, s[20:23], s{sT0} offen')
        p('s_mov_b64 exec, -1')
    if ln:
        srd(p, S_HF, 10, nbytes=256)
        srd(p, S_V, 46, off_imm=XN_OFF, nbytes=XN_BYTES)
        p(f's_mov_b32 s{sMASK}, 0xffff0000')
        ln_compute(p, ST)
        ST.stamp(p, 'ln done')
        ln_signal(p)
        ST.stamp(p, 'ln sent')
    p(f's_mov_b32 s{sT0}, s{sRB}' if OPT['rot'] else f's_mov_b32 s{sT0}, 0')
    if OPT['rot'] == 2:
        p(f's_and_b32 s{sT1}, s{sH}, 1')
        p(f's_mul_i32 s{sT1}, s{sT1}, 3')
        p(f's_add_u32 s{sT0}, s{sT0}, s{sT1}')
    for c in range(6):
        if c:
            p(f's_add_u32 s{sT0}, s{sT0}, 1')
        p(f's_sub_u32 s{sT1}, s{sT0}, 6')
        p(f's_cmp_ge_u32 s{sT0}, 6')
        p(f's_cselect_b32 s{sT0}, s{sT1}, s{sT0}')
        p(f's_mul_i32 s{sRX + c}, s{sT0}, 3072')
        p(f's_mul_i32 s{sRW + c}, s{sT0}, {96 * 9216}')
    p(f's_lshl_b32 s{sLW}, s{sW}, 10')
    t0, t1, t2 = vTMP, vTMP + 1, vTMP + 2
    p(f'v_lshrrev_b32 v{t0}, 3, v{vLANE}')
    p(f'v_bfe_u32 v{t1}, v{vLANE}, 4, 1')
    p(f's_and_b32 s{sT0}, s{sW}, 1')
    p(f's_lshl_b32 s{sT1}, s{sT0}, 1')
    p(f'v_or_b32 v{t1}, s{sT1}, v{t1}')
    p(f'v_lshlrev_b32 v{t1}, 1, v{t1}')
    p(f'v_and_b32 v{t2}, 7, v{vLANE}')
    p(f'v_xor_b32 v{t1}, v{t1}, v{t2}')
    p(f'v_lshlrev_b32 v{t1}, 4, v{t1}')
    p(f's_lshl_b32 s{sT1}, s{sW}, 3')
    p(f'v_add_u32 v{t0}, s{sT1}, v{t0}')
    p(f'v_mul_u32_u24 v{vWG}, 9216, v{t0}')
    p(f'v_add_u32 v{vWG}, v{vWG}, v{t1}')
    p(f'v_lshl_add_u32 v{vWQ}, v{t0}, 13, v{t1}')
    p(f's_lshl_b32 s{sT0}, s{sH}, 8')
    p(f's_lshl_b32 s{sT1}, s{sRB}, 4')
    p(f's_lshl2_add_u32 s{sST}, s{sW}, s{sT1}')
    p(f's_mul_i32 s{sT2}, s{sST}, {XN_MB}')
    p('s_waitcnt lgkmcnt(0)')
    srd(p, S_WG, 48, off_sgpr=sT0, nbytes=WG_BYTES, nbytes_minus_off=True)
    srd(p, S_WU, 50, off_sgpr=sT0, nbytes=WG_BYTES, nbytes_minus_off=True)
    srd(p, S_XN, 46, off_sgpr=sT2, off_imm=XN_OFF, nbytes=4 * XN_MB)
    emit_items(p, [x for c in range(OPT['wpre']) for x in w_dma(c)] if ln else w_dma(0) + xn_loads(0) + w_dma(1))
    p(f's_lshl_b32 s{sT0}, s{sH}, 8')
    srd(p, S_WQ, 44, off_sgpr=sT0, nbytes=WQ_BYTES, nbytes_minus_off=True)
    p(f's_lshl_b32 s{sT2}, s{sST}, 10')
    p(f's_add_u32 s{sTILE}, s46, s{sT2}')
    p(f's_addc_u32 s{sBIG}, s47, 0')
    srd(p, S_OF, 46, off_sgpr=sT2, off_imm=OF_OFF, nbytes=OF_BYTES, nbytes_minus_off=True)
    p(f's_lshl_b32 s{sT2}, s{sH}, 19')
    srd(p, S_K, 4, off_sgpr=sT2, nbytes=KV_HEAD)
    p('s_sub_u32 s6, s6, 16384')
    p('s_subb_u32 s7, s7, 0')
    srd(p, S_V, 6, off_sgpr=sT2, nbytes=KV_HEAD + 16384)
    p(f's_lshr_b32 s{sT0}, s{sH}, 4')
    p(f's_and_b32 s{sT1}, s{sH}, 7')
    p(f's_lshl3_add_u32 s{sT0}, s{sT0}, s{sT1}')
    p(f's_lshr_b32 s{sT1}, s{sT0}, 2')
    p(f's_mul_i32 s{sT1}, s{sT1}, 36')
    p(f's_and_b32 s{sT2}, s{sT0}, 3')
    p(f's_add_u32 s{sT1}, s{sT1}, s{sT2}')
    p(f's_add_u32 s{sT1}, s{sT1}, 32')
    p(f's_lshl_b32 s{sXS}, s{sT1}, 17')
    p(f's_lshr_b32 s{sT1}, s{sH}, 3')
    p(f's_add_u32 s{sT1}, s{sT1}, s{sH}')
    p(f's_lshl_b32 s{sHq}, s{sT1}, 19')
    for q in range(1, 4):
        p(f's_add_u32 s{sHq + q}, s{sHq}, {1024 * q}')
    p(f's_lshl_b32 s{sT0}, s{sT0}, 6')
    p(f's_add_u32 s{sT0}, s{sT0}, 8192')
    p(f's_cmp_ge_u32 s{sW}, 2')
    p('s_cselect_b64 s[44:45], s[50:51], s[48:49]')
    srd(p, S_WX, 44, off_sgpr=sT0, nbytes=WG_BYTES, nbytes_minus_off=True)
    srd(p, S_WF, 46, off_imm=WF_OFF, nbytes=WF_BYTES)
    srd(p, S_FD, 92, nbytes=WD_BYTES)
    srd(p, S_FO, 98, nbytes=WO_BYTES)
    p(f's_lshl2_add_u32 s{sT0}, s2, s{sW}')
    for fs, fd in ((sFS0, sFD0), (sFS2, sFD2)):
        if fs == sFS2:
            p(f's_cmp_ge_u32 s{sT0}, 272')
            p(f's_cselect_b64 {sr(S_F2, 2)}, s[98:99], s[92:93]')
            p(f's_mov_b32 s{S_F2 + 2}, {WD_BYTES}')
            p(f's_cselect_b32 s{S_F2 + 2}, {WO_BYTES}, s{S_F2 + 2}')
            p(f's_mov_b32 s{S_F2 + 3}, 0x20000')
            p(f's_cselect_b32 s{sT2}, {144 * 36864}, 0')
            p(f's_cselect_b32 s{sT1}, 272, 0')
            p(f's_sub_u32 s{sT0}, s{sT0}, s{sT1}')
            p(f's_add_u32 s{sT0}, s{sT0}, 1024')
        p(f's_mul_i32 s{sT1}, s{sT0}, 7282')
        p(f's_lshr_b32 s{sT1}, s{sT1}, 16')
        p(f's_mul_i32 s{sOFF}, s{sT1}, 9')
        p(f's_sub_u32 s{sOFF}, s{sT0}, s{sOFF}')
        p(f's_mul_i32 s{fd}, s{sT1}, 36864')
        p(f's_lshl_b32 s{fs}, s{sOFF}, 7')
        p(f's_add_u32 s{fs}, s{fs}, s{fd}')
        p(f's_lshl_b32 s{fd}, s{sOFF}, 12')
        p(f's_lshr_b32 s{sOFF}, s{sT1}, 5')
        if fs == sFS0:
            p(f's_mul_i32 s3, s{sOFF}, {-4 * 36864}')
            p(f's_add_u32 s3, s3, {144 * 36864}')
            p(f's_lshl2_add_u32 s{sT1}, s{sOFF}, s{sT1}')
        else:
            p(f's_lshl2_add_u32 s{sOFF}, s{sOFF}, s{sT1}')
            p(f's_bfe_u32 s{sLX}, s{sT1}, 0x20002')
            p(f's_mul_i32 s{sLX}, s{sLX}, 36')
            p(f's_and_b32 s{sLK}, s{sT1}, 3')
            p(f's_add_u32 s{sLK}, s{sLK}, 32')
            p(f's_add_u32 s{sLK}, s{sLK}, s{sLX}')
            p(f's_cmp_ge_u32 s{sT1}, 128')
            p(f's_cselect_b32 s{sOFF}, s{sLK}, s{sOFF}')
            p(f's_add_u32 s{sT1}, s{sT1}, 144')
            p(f's_cmp_eq_u32 s{sT2}, 0')
            p(f's_cselect_b32 s{sT1}, s{sOFF}, s{sT1}')
        p(f's_mul_i32 s{sT1}, s{sT1}, 36864')
        p(f's_add_u32 s{fd}, s{fd}, s{sT1}')
    p(f's_lshl_b32 s{sFL}, s{sW}, 13')
    p(f's_add_u32 s{sFL}, s{sFL}, 131072')
    p(f's_lshl_b32 s{sLK}, s{sW}, 12')
    p(f's_mul_i32 s{sLX}, s{sW}, 3072')
    p(f's_mov_b32 s{sMASK}, 0xffff0000')
    p(f's_mov_b32 s{sNL2E}, 0xbfb8aa3b')
    p(f's_mov_b32 s{sSCALE}, 0x3e0293ee')
    p(f'v_lshrrev_b32 v{t0}, 2, v{vLANE}')
    p(f'v_bfe_u32 v{t1}, v{vLANE}, 5, 1')
    p(f'v_lshlrev_b32 v{t1}, 1, v{t1}')
    p(f'v_and_b32 v{t2}, 3, v{vLANE}')
    p(f'v_xor_b32 v{t1}, v{t1}, v{t2}')
    p(f's_and_b32 s{sT0}, s{sW}, 1')
    p(f's_mul_i32 s{sT1}, s{sT0}, 48')
    p(f'v_add_u32 v{t0}, s{sT1}, v{t0}')
    p(f'v_mul_u32_u24 v{vWX}, 9216, v{t0}')
    p(f'v_lshl_add_u32 v{vWX}, v{t1}, 4, v{vWX}')
    p(f'v_lshrrev_b32 v{t0}, 3, v{vLANE}')
    p(f'v_lshrrev_b32 v{t1}, 4, v{vLANE}')
    p(f'v_lshlrev_b32 v{t1}, 1, v{t1}')
    p(f'v_and_b32 v{t2}, 7, v{vLANE}')
    p(f'v_xor_b32 v{t1}, v{t1}, v{t2}')
    p(f'v_mul_u32_u24 v{t0}, 1152, v{t0}')
    p(f'v_lshl_add_u32 v{vFD}, v{t1}, 4, v{t0}')
    p(f'v_lshrrev_b32 v{t0}, 2, v{vLANE}')
    p(f'v_and_b32 v{t1}, 3, v{vLANE}')
    p(f'v_lshlrev_b32 v{t1}, 3, v{t1}')
    p(f'v_lshl_add_u32 v{t2}, v{t0}, 7, v{t1}')
    p(f'v_bfe_u32 v{t0}, v{vLANE}, 3, 2')
    p(f'v_lshl_add_u32 v{t2}, v{t0}, 5, v{t2}')
    p(f'v_add_u32 v{vFA}, s{sFL}, v{t2}')
    for l in addr_gu(slot_base(0)):
        p(l)
    if ln:
        ln_wait(p)
        ST.stamp(p, 'ln ready')
        emit_items(p, xn_loads(0))
    p(f's_add_u32 s{S_HF}, s{sTILE}, {HF_OFF}')
    p(f's_addc_u32 s{S_HF + 1}, s{sBIG}, 0')
    p(f's_lshl_b32 s{sT2}, s{sST}, 10')
    p(f's_sub_u32 s{S_HF + 2}, {HF_BYTES}, s{sT2}')
    p(f's_mov_b32 s{S_HF + 3}, 0x20000')
    p(f's_mov_b32 s{sBIG}, 0x53800000')
    emit_items(p, [] if ln else w_dma(2) + w_dma(3) + xn_loads(1))


def plan_ab(plan):
    NC = len(plan.ch)
    units = [(c, nb) for c in range(NC) for nb in range(4)]
    mf, gaps = [], []
    for u, (c, nb) in enumerate(units):
        cc, ac = plan.ch[c][2:]
        rb = vWF + 12 * (u & 1)
        for qb in range(4):
            for kk in range(3):
                d = vr(tile(ac, nb, qb), 4)
                mf.append(mfma(d, vr(rb + kk * 4, 4), xn_reg(qb, 3 * cc + kk), '0' if (cc == 0 and kk == 0) else d))
                gaps.append([])
    reg = {nm: (48 * a, 48 * b) for nm, a, b in plan.regions}
    head = []
    win = slot_base(0)
    for u, (c, nb) in enumerate(units):
        kind = plan.ch[c][0]
        e = plan.epoch[c]
        base = slot_base(e) + plan.pos[c] * CH
        at = 12 * (u - 1)
        fix = []
        if nb == 0:
            if c and kind in 'XQ' and plan.ch[c - 1][0] != kind:
                win = slot_base(e)
                fix = addr_x(win) if kind == 'X' else addr_q(win)
            elif not (win <= base and base + CH <= win + 65536):
                d = slot_base(e) - win
                win = slot_base(e)
                fix = [f'v_add_u32 v{vA + k}, {d & 0xffffffff:#x}, v{vA + k}' for k in range(4 if kind in 'GU' else 2)]
        if fix:
            fill(gaps, [Item(x) for x in fix], start=at - 6, end=at, lat=1)
        if nb == 0 and plan.pos[c] == 0:
            tags = [('W', e)] + ([('K', 0), ('K', 1)] if c == NC - 2 else [])
            if u == 0:
                head += [W(tags=tags), I('s_barrier')]
            else:
                gaps[at - 1][0:0] = [W(tags=tags), I('s_barrier')]
        rb = vWF + 12 * (u & 1)
        for kk in range(3):
            for t in range(2):
                o = base - win
                if kind in 'GU':
                    a, o = vA + nb, o + kk * 4096 + t * 512
                elif kind == 'Q':
                    a, o = vA + (nb >> 1), o + kk * 4096 + t * 512 + (nb & 1) * 8
                else:
                    a, o = vA + (nb & 1), o + (nb >> 1) * 6144 + kk * 2048 + t * 256
                x = I(f'ds_read_b64_tr_b16 {vr(rb + kk * 4 + 2 * t, 2)}, v{a} offset:{o}')
                if u == 0:
                    head.append(x)
                else:
                    gaps[at + 2 * kk + t].append(x)
            if u:
                regs = [f'v{rb + kk * 4 + k}' for k in range(4)]
                g = gaps[12 * u - 1 + kk]
                if g and g[0].kind == 'autowait':
                    g[0].reads += regs
                else:
                    g.insert(0, W(regs=regs))
    early = {0: 'w4 w5', 1: 'x2', 2: 'w6 w7', 3: 'x3', 4: 'w8 w9', 5: 'x4', 6: 'w10 w11', 7: 'x5', 8: 'w12 w13', 9: 'w14',
             10: 'w15 w16', 11: 'w17'}
    if OPT['ln']:
        early.update({0: 'x1', 1: 'x2', 2: 'w6 w7', 3: 'x3', 4: 'w8 w9', 5: 'x4', 6: 'w10 w11', 7: 'x5', 8: 'w12 w13',
                      9: 'w14 w15', 10: 'w16', 11: 'w17'})
        if OPT['wpre'] == 4:
            early.update({0: 'x1', 1: 'w4 w5', 2: 'x2', 3: 'w6 w7', 4: 'x3', 5: 'w8 w9', 6: 'x4', 7: 'w10 w11', 8: 'x5 w12',
                          9: 'w13 w14', 10: 'w15 w16', 11: 'w17'})
    for c in range(NC):
        vm = []
        e = plan.epoch[c]
        if c < 12:
            for k in early[c].split():
                vm += w_dma(int(k[1:]), plan) if k[0] == 'w' else xn_loads(int(k[1:]))
        elif e + 3 < len(plan.members):
            nxt, me = plan.members[e + 3], plan.members[e]
            for k, cn in enumerate(nxt):
                if min(k, len(me) - 1) == plan.pos[c]:
                    vm += w_dma(cn, plan)
        kv = {8: ('K', 0), 7: ('K', 1), 6: ('K', 2), 5: ('K', 3), 4: ('V', 0), 2: ('V', 1), 1: ('V', 2)}.get(NC - c)
        if kv:
            vm += kv_dma(kv[0], kv[1], kv[1])
        g0, lim = 48 * c, 48 * c + 35
        free = [gi for gi in range(g0, lim) if slots(gaps[gi]) == 0]
        step = len(free) / max(1, len(vm))
        pos = [free[int(n * step + step * 0.5)] for n in range(len(vm))]
        if OPT['grpab'] and c >= 12 and len(vm) <= 9:
            pos = [g0 + 12 * (n // 3) + 7 + n % 3 for n in range(len(vm))]
            pos = pos if all(q in free for q in pos) else [free[int(n * step + step * 0.5)] for n in range(len(vm))]
        put_vmem(gaps, vm, pos)
    e0 = reg['GU'][1]
    for nb in range(4):
        for qb in range(4):
            t = nb * 4 + qb
            tb, sg = tile(vACC1, nb, qb), sg_reg(nb, qb)
            lo = e0 - 48 + 3 * t + 2 + 7
            fill(gaps, [Item(f'v_cvt_pk_bf16_f32 v{sg + dd}, v{tb + 2 * dd}, v{tb + 2 * dd + 1}') for dd in range(2)],
                 start=lo, end=min(lo + 8, e0 + 3 * t - 1))
    kda = [Item(x) for x in kv_dma_addr()]
    streams = [('G2', stream_h_direct(vACC0), 0), ('U2', stream_silu(vACC1), 0)]
    if plan.heavy:
        streams += [('X', stream_finish_h(vACC0, 1), 0), ('Q1', kda + stream_x_epi(vACC1), 0)]
    else:
        streams += [('Q1', kda + stream_finish_h(vACC0, 1), 0)]
    streams.append(('Q2', stream_q_epi(plan.q1, 0) + [Item(x) for x in kv_read_addr()], 48))
    for nm, st, cut in streams:
        fill(gaps, st, start=reg[nm][0] + (12 if nm == 'G2' else 2), end=reg[nm][1] - cut)
    n = len(gaps)
    nbs = {}
    for ksub in range(2):
        for half in range(2):
            for qb in range(4):
                nbs[(ksub, half, qb)] = n - 48 + (2 * ksub + half) * 12 + qb * 3 + 2 + 6
        for qb in range(4):
            nbs[('w', ksub, qb)] = n
    ptrs = [I(f's_load_dwordx2 {sr(F.pX, 2)}, s[0:1], {KA_X}'), I(f's_load_dwordx4 {sr(F.pOUT, 4)}, s[0:1], {KA_OUT}')] if OPT['fused'] else [I('s_nop 1')]
    gaps.append(ptrs + k_reads(0, 0, 0) + k_reads(0, 1, 1))
    gaps[-1] += [I(f'v_accvgpr_write_b32 a{aONE + k}, v{vTMP + 3}') for k in range(4)]
    gaps[n - 50].append(I(f'v_mov_b32 v{vTMP + 3}, 0x3f803f80'))
    fill(gaps, stream_q_epi(plan.q2, 1, nbs), start=n - 48, end=n + 1, look=200)
    return head, mf, gaps, reg


def phase_ab(p, ST):
    plans = [PLAN, Plan(False)]
    built = [plan_ab(pl) for pl in plans]
    cut = built[0][3]['U2'][0]
    txt = [[(m.text, [(x.text, tuple(x.reads)) for x in g]) for m, g in zip(b[1][:cut], b[2][:cut])] for b in built]
    assert txt[0] == txt[1]
    head, mf, gaps, reg = built[0]
    for x in head:
        p.add(x)
    ST.stamp(p, 'first reads')
    for nm in ('GU', 'G2'):
        p.mark('r' + nm)
        weave(p, mf[reg[nm][0]:reg[nm][1]], gaps[reg[nm][0]:reg[nm][1]])
        if nm == 'GU':
            ST.stamp(p, nm)
    p('s_bitcmp1_b32 s2, 0')
    p('s_cbranch_scc1 L_light')
    n0 = ST.n
    for k, (pl, (head, mf, gaps, reg)) in enumerate(zip(plans, built)):
        p.mark('v%d' % k)
        if k:
            p('L_light:')
            ST.n = n0
        ST.stamp(p, 'G2')
        for nm, _, _ in pl.regions[2:]:
            p.mark(f'r{nm}{k}')
            a, b = reg[nm]
            weave(p, mf[a:b], gaps[a:b])
            if nm == 'Q2':
                for x in gaps[-1]:
                    p.add(x)
            ST.stamp(p, nm)
            if k and nm == 'U2':
                ST.stamp(p, 'X')
        if k == 0:
            p('s_branch L_ab_done')
            names = list(ST.names)
    ST.names = names
    p.mark('ps7')
    p('L_ab_done:')


def attention(p, ST, force_slow):
    p(f's_mov_b32 s{sTILE}, {4 * 16384}')
    p(f's_lshl_b32 s{sHq}, s{sH}, 19')
    for q in range(1, 4):
        p(f's_add_u32 s{sHq + q}, s{sHq}, {1024 * q}')
    if OPT['fused']:
        for l in F.flag_setup():
            p(l)
        p(f's_and_b32 s{sT0}, s2, 4')
        p(f's_lshr_b32 s{sT1}, s2, 3')
        p(f's_lshl_b32 s{sT0}, s{sT0}, 3')
        p(f's_add_u32 s{sT0}, s{sT0}, s{sT1}')
        p(f's_lshl_b32 s{sT0}, s{sT0}, 7')
        p(f's_and_b32 s{sT1}, s2, 3')
        p(f's_lshl2_add_u32 s{sT0}, s{sT1}, s{sT0}')
        p(f'v_lshl_add_u32 v{vFZ}, v{vLANE}, 6, s{sT0}')
        p(f's_lshl_b32 s{sT0}, s{sRB}, 7')
        p(f's_lshl2_add_u32 s{sT0}, s{sH}, s{sT0}')
        p(f's_add_u32 s{sT0}, s{sT0}, {F.FLAG_O}')
        p(f'v_writelane_b32 v{vFZ}, s{sT0}, 2')
        p(f'v_mov_b32 v{vTMP}, 0')
        p('s_mov_b64 exec, 7')
        p(f'buffer_store_dword v{vTMP}, v{vFZ}, {sr(F.S_FLAG, 4)}, 0 offen sc1')
        p('s_mov_b64 exec, -1')
    p('s_nop 1')
    mf = qk_block(0, True) + qk_block(1, True) + qk_block(2) + qk_block(3)
    gaps = [[] for _ in range(64)]
    for n, x in enumerate(k_reads(0, 2, 0)):
        gaps[16 + n].append(x)
    for n, x in enumerate(k_reads(0, 3, 1)):
        gaps[32 + n].append(x)
    gaps[47] += [W(tags=[('K', 1), ('V', 0)], lgkm0=True), I('s_barrier')]
    kr = k_reads(1, 0, 0)
    for n, x in enumerate(kr):
        gaps[48 + n].append(x)
    for n, x in enumerate(v_reads(0, 0, aV)):
        gaps[52 + n].append(x)
    gaps[63].append(W(regs=wr(kr)))
    st = []
    for qb in range(4):
        s, m = vS + qb * 4, vNEGM + qb * 4
        nb = 4 * qb + 3 + 8
        st.append(Item(f'v_max3_f32 v{m}, v{s}, v{s + 1}, v{s + 2}', nb=nb))
        st.append(Item(f'v_max_f32 v{m}, v{m}, v{s + 3}', nb=nb))
    for k in range(6):
        for qb in range(4):
            st.append(Item(xlane('v_max_f32', vNEGM + qb * 4, vTMP + qb)[k]))
    for qb in range(4):
        st.append(Item(f'v_sub_f32 v{vNEGM + qb * 4}, 0, v{vNEGM + qb * 4}'))
    for r in range(1, 4):
        for qb in range(4):
            st.append(Item(f'v_mov_b32 v{vNEGM + qb * 4 + r}, v{vNEGM + qb * 4}'))
    st += sm_stream(0, 0, sub=True, init=True)
    fill(gaps, st, start=8, end=32)
    fill(gaps, sm_stream(1, 0, sub=True), start=32, end=47)
    fill(gaps, sm_stream(2, 0), start=48, end=64)
    weave(p, mf, gaps)
    ST.stamp(p, 'att prologue')

    sk = [period_skeleton(T) for T in range(4)]
    for T in range(4 if OPT['job'] else 0):
        job_items(T, sk[T][1])
        for g in sk[T][1]:
            for x in g:
                if x.kind in ('valu', 'ds', 'vmem') and (f'v{vJ}' in x.reads + x.writes or f'v{vJ + 2}' in x.writes or f'v{vFA}' in x.reads):
                    x.meta['job'] = True
    G = [g for T in range(4) for g in sk[T][1]]
    place_softmax(G)
    mf0, g0 = period_skeleton(0, first=True)
    for gi in range(PER):
        g0[gi] = [clone(x) for x in sk[0][1][gi] if x.meta.get('own') != (3, 3) and not x.meta.get('job')]
    fill(g0, [Item(x.ins, nb=4) if n == 0 else x for n, x in enumerate(sm_stream(3, 0))], start=0, end=16)
    if OPT['job']:
        force(g0, fmt_dma(0), [BLK[3] + 24 + 2 * n for n in range(4)])
        fill(g0, [Item(x) for x in job_setup()], start=40, end=60, look=2)
        p.mark('t0')
        weave(p, mf0, g0)
        p(f's_mov_b32 s{sCNT}, 7')
        p('s_branch L_att_p1')
    else:
        mf1, _ = period_skeleton(1)
        g1 = [[clone(x) for x in g] for g in sk[1][1]]
        fmt_inline(g0 + g1)
        p.mark('t0')
        weave(p, mf0 + mf1, g0 + g1)
        ST.stamp(p, 'T0 T1')
        p(f's_mov_b32 s{sCNT}, 7')
        p('s_branch L_att_p2')
    mf29, g29 = period_skeleton(1, nodma=True)
    mf30, g30 = period_skeleton(2, final=True)
    for gi in range(PER):
        g29[gi] += [clone(x) for x in sk[1][1][gi] if 'own' in x.meta]
        g30[gi] += [clone(x) for x in sk[2][1][gi] if 'own' in x.meta]
    fused = OPT['fused']
    if fused:
        a, b = F.early_setup()
        lane = [f'v_and_b32 v{F.vFL + 2}, 7, v{vLANE}', f'v_lshlrev_b32 v{F.vFL + 3}, 5, v{F.vFL + 2}', f'v_lshlrev_b32 v{F.vFL + 2}, 2, v{F.vFL + 2}']
        fill(g29, [Item(x) for x in DBG_SRD + lane], start=0, end=9, look=3, lat=1)
        g29[9].append(F.POLLS['a']())
        if F.OPT['sent'] and not OPT['job']:
            fill(g29, [Item(x) for x in F.slab_offset(sT0, sT1) + job_setup()[:4] + [f'v_mov_b32 v{vJ + r}, -1' for r in range(4)]],
                 start=10, end=24, look=3, lat=1)
            force(g29, [Item(f'buffer_store_dwordx4 {vr(vJ, 4)}, v{vL16}, {sr(S_J, 4)}, s{sT0} offen offset:{1024 * (n & 3)} sc1',
                             pre=[f's_add_u32 s{sT0}, s{sT0}, 4096'] if n == 4 else []) for n in range(7)],
                  [24, 43, 57, 75, 89, 109, 123])
        fill(g29, [Item(x) for x in a], start=44, end=90, look=4, lat=1)
        g29[BLK[3] + 11] += [I(x) for x in b]
        g29[BLK[2] + 11] += F.check('a')
        ld = F.early_loads(' sc1')
        ld = ld[9:17] + ld[26:] + F.act_loads(1, 1, ' sc1') + ld[:9] + ld[17:26]
        force(g30, ld[:25], [1 + 5 * n + (n & 1) for n in range(25)])
    if OPT['xp']:
        for T in range(4):
            for g in sk[T][1]:
                g[:] = [x for x in g if not ((OPT['xp'] & 1 and x.kind == 'barrier') or (OPT['xp'] & 2 and x.kind == 'vmem')
                                             or (OPT['xp'] & 4 and x.kind == 'ds') or (OPT['xp'] & 8 and x.kind in ('valu', 'trans')))]
    p.mark('p0')
    p('.p2align 6')
    p('L_att_p0:')
    put_head(sk[0][1], I(f's_cmp_ge_u32 s{sCNT}, 2' if OPT['job'] else f's_cmp_ge_u32 s{sCNT}, 5' if OPT['loc'] else f's_cmp_eq_u32 s{sCNT}, 6'), BLK[3] + 26, BLK[3] + 26)
    sk[0][1][BLK[3] + 26] += [I('s_cbranch_scc1 L_job0'), I('L_job_b:')]
    put_head(sk[0][1], I(f's_sub_u32 s{sCNT}, s{sCNT}, 1'), 127, 128)
    put_head(sk[0][1], I(f's_cmp_eq_u32 s{sCNT}, 0'), 129, 130)
    weave(p, *sk[0])
    p('s_cbranch_scc1 L_att_last')
    p.mark('p1')
    p('L_att_p1:')
    weave(p, *sk[1])
    p.mark('p2')
    p('L_att_p2:')
    weave(p, *sk[2])
    p.mark('p3')
    weave(p, *sk[3])
    p('s_branch L_att_p0')
    p.mark('last')
    p('L_att_last:')
    ST.stamp(p, 'att loop')
    weave(p, mf29 + mf30, g29 + g30)
    p.mark('t31')
    ST.stamp(p, 'T30')
    rest = [Item(clone(x)) for g in sk[3][1] for x in g if x.meta.get('own') == (2, 3)]
    order = [(db, 0) for db in range(8)] + [(db, 1) for db in range(8)]
    fr = {(0, 0): aV, (0, 1): aV + 4}
    for n, key in enumerate(k for k in order if k[0]):
        fr[key] = aK + (n % 8) * 4
    mf = []
    for db, kk in order:
        if db == 0:
            mf += [ones_mfma(1, kk, qb) for qb in MS]
        for qb in range(4):
            d = ar(aO + (db * 4 + qb) * 4, 4)
            mf.append(mfma(d, ar(fr[(db, kk)], 4), vr(p_reg(1, kk, qb), 4), d))
    nm = len(mf)
    h = nm // 2
    gaps = [[] for _ in range(nm + 1)]
    rd = [x for key in order if key[0] and key not in ((1, 0), (2, 0)) for x in v_reads(3, key[0], fr[key], (key[1],))]
    for n, x in enumerate(rd):
        gaps[2 * n].append(x)
    if fused:
        put_vmem(gaps, ld[25:], [1 + 4 * n for n in range(9)])
    st = list(rest)
    for k in range(6):
        for qb in VS:
            st.append(Item(xlane('v_add_f32', vL + qb, vTMP + qb)[k]))
    fill(gaps, st, start=0, end=h - 2)
    st = [Item(f'v_accvgpr_read_b32 v{vL + qb}, a{aLS + 4 * (qb >> 1)}', nb=h + NMS + 5) for qb in MS]
    st = [Item(f'v_rcp_f32 v{vRL + qb}, v{vL + qb}') for qb in VS] + st + [Item(f'v_rcp_f32 v{vRL + qb}, v{vL + qb}') for qb in MS]
    fill(gaps, st, start=h, end=h + 13)
    thr = '0' if force_slow else f's{sBIG}'
    for qb in range(4):
        gaps[h + 13 + qb] += [I(f'v_cmp_nge_f32 vcc, {thr}, v{vL + qb}'), I('s_cbranch_vccnz L_slow')]
    if fused:
        tmpsets = [F.vACS + 12 * k for k in range(4)]
        fill(gaps, [Item(x) for x in F.late_setup()], start=h - 8, end=nm - 8, look=4, lat=1)
        force(gaps, [Item(x) for x in F.fin_head()], [nm - 8, nm - 8] + list(range(nm - 7, nm - 1)))
    else:
        tmpsets = [vS, vS + 12, vP, vP + 12]
        st = []
        for j in range(4):
            st += o_epi_items(j, tmpsets, nb=h + NMS + 8 * j + 7 + 6)
        fill(gaps, st, start=h + 17, end=nm + 1, look=30)
    weave(p, mf, gaps[:nm])
    if not fused:
        p('s_nop 4')
        for x in gaps[nm]:
            p.add(x)
    return tmpsets


def slow_path(p, tmpsets):
    p.mark('slow')
    p('L_slow:')
    p('s_waitcnt vmcnt(0) lgkmcnt(0)')
    p('s_nop 7')
    vM, vKG, vVG, vAL = vNEGM, vTMP + 2, vTMP + 3, vNEGM + 4
    for i in range(128):
        p(f'v_accvgpr_write_b32 a{aO + i}, 0')
    for qb in range(4):
        p(f'v_mov_b32 v{vM + qb}, 0xff800000')
        p(f'v_mov_b32 v{vL + qb}, 0')
    p(f'v_and_b32 v{vTMP}, 15, v{vLANE}')
    p(f'v_lshrrev_b32 v{vTMP + 1}, 4, v{vLANE}')
    p(f'v_lshlrev_b32 v{vKG}, 8, v{vTMP}')
    p(f'v_lshl_add_u32 v{vKG}, v{vTMP + 1}, 4, v{vKG}')
    p(f'v_subrev_u32 v{vVG}, s{sLK}, v{vVD}')
    p(f'v_subrev_u32 v{vVG + 1}, s{sLK}, v{vVD + 1}')
    p(f's_lshl_b32 s{sT0}, s{sW}, 13')
    p(f's_add_u32 s{sT0}, s{sT0}, 131072')
    p(f's_sub_u32 s{sT1}, s{sT0}, 65536')
    for db in range(8):
        p(f'v_add_u32 v{vVA + db}, s{sT1}, v{vVA + db}')
    p(f's_mov_b32 s{sTILE}, 0')
    p.mark('slow_loop')
    p('L_slow_loop:')
    for kb in range(2):
        p(f's_add_u32 s{sOFF}, s{sTILE}, {kb * 4096}')
        for ks in range(4):
            p(f'buffer_load_dwordx4 {ar(aK + kb * 16 + ks * 4, 4)}, v{vKG}, {sr(S_K, 4)}, s{sOFF} offen offset:{64 * ks}')
    for hf in range(2):
        p(f's_add_u32 m0, s{sT0}, {hf * 4096}')
        p(f's_add_u32 s{sOFF}, s{sTILE}, {hf * 4096 + 16384}')
        for pc in range(4):
            p(f'buffer_load_dwordx4 v{vVG + (pc & 1)}, {sr(S_V, 4)}, s{sOFF} offen offset:{1024 * pc} lds')
    p('s_waitcnt vmcnt(0)')
    for db in range(8):
        for t in range(2):
            p(f'ds_read_b64_tr_b16 {vr(vP + 32 + db * 4 + 2 * t, 2)}, v{vVA + db} offset:{t * 4096}')
    for x in qk_block(0, True) + qk_block(1, True):
        p.add(x)
    p('s_nop 7')
    for qb in range(4):
        s0, s1, t, t2 = vS + qb * 4, vS + 16 + qb * 4, vTMP, vTMP + 1
        p(f'v_max3_f32 v{t}, v{s0}, v{s0 + 1}, v{s0 + 2}')
        p(f'v_max3_f32 v{t}, v{t}, v{s0 + 3}, v{s1}')
        p(f'v_max3_f32 v{t}, v{t}, v{s1 + 1}, v{s1 + 2}')
        p(f'v_max3_f32 v{t}, v{t}, v{s1 + 3}, v{vM + qb}')
        for x in xlane('v_max_f32', t, t2):
            if 'permlane' in x:
                p('s_nop 1')
            p(x)
        p(f'v_sub_f32 v{vAL + qb}, v{vM + qb}, v{t}')
        p(f'v_exp_f32 v{vAL + qb}, v{vAL + qb}')
        p(f'v_mov_b32 v{vM + qb}, v{t}')
        p(f'v_mul_f32 v{vL + qb}, v{vL + qb}, v{vAL + qb}')
        for kb in range(2):
            for r in range(4):
                s = vS + kb * 16 + qb * 4 + r
                p(f'v_sub_f32 v{s}, v{s}, v{t}')
                p(f'v_exp_f32 v{s}, v{s}')
                p('s_nop 0')
                p(f'v_add_f32 v{vL + qb}, v{vL + qb}, v{s}')
            for dd in range(2):
                s = vS + kb * 16 + qb * 4 + 2 * dd
                p(f'v_cvt_pk_bf16_f32 v{p_reg(0, 0, qb) + kb * 2 + dd}, v{s}, v{s + 1}')
        for db in range(8):
            for r in range(4):
                a = aO + (db * 4 + qb) * 4 + r
                p(f'v_accvgpr_read_b32 v{t2}, a{a}')
                p(f'v_mul_f32 v{t2}, v{t2}, v{vAL + qb}')
                p(f'v_accvgpr_write_b32 a{a}, v{t2}')
    p('s_nop 1')
    for db in range(8):
        for qb in range(4):
            d = ar(aO + (db * 4 + qb) * 4, 4)
            p.add(mfma(d, vr(vP + 32 + db * 4, 4), vr(p_reg(0, 0, qb), 4), d))
    p('s_nop 7')
    p(f's_add_u32 s{sTILE}, s{sTILE}, 8192')
    p(f's_cmp_lt_u32 s{sTILE}, {KV_HEAD}')
    p('s_cbranch_scc1 L_slow_loop')
    p.mark('slow_end')
    for qb in range(4):
        for x in xlane('v_add_f32', vL + qb, vTMP):
            if 'permlane' in x:
                p('s_nop 1')
            p(x)
        p(f'v_rcp_f32 v{vRL + qb}, v{vL + qb}')
    p('s_nop 0')
    if OPT['fused']:
        for l in F.late_setup():
            p(l)
        p('s_waitcnt vmcnt(0)')
        for x in F.fin_head():
            p.add(x)
        p('s_waitcnt lgkmcnt(0)')
        p('s_branch L_fin_join')
    else:
        for j in range(4):
            emit_items(p, o_epi_items(j, tmpsets))


def gen_main(name='main_kernel', force_slow=False, stamps=False):
    p = Prog()
    ST = Stamps(stamps, 252, 40)
    p.mark('start')
    setup(p, ST)
    phase_ab(p, ST)
    tmpsets = attention(p, ST, force_slow)
    ST.stamp(p, 'last issued')
    p.mark('att_end')
    if OPT['fused']:
        p('L_fin_join:')
        outline = F.fin_body(p, ST, True, [x for j in range(4) for x in o_epi_items(j, tmpsets)])
    if stamps:
        p('s_waitcnt vmcnt(0)')
    ST.stamp(p, 'stores done')
    ST.dump(p, 0, vTMP)
    p.mark('end')
    p('L_main_end:')
    p('s_endpgm')
    if OPT['fused']:
        wb = [f's_cmp_eq_u32 s{sLOC}, 1', 's_cbranch_scc1 L_o_local', 'buffer_wbl2 sc1', 's_waitcnt vmcnt(0)', 'L_o_local:'] if OPT['loc'] else []
        outline(p, wb + [f's_lshl_b32 s{F.fT1}, s{sRB}, 7', f's_lshl2_add_u32 s{F.fT1}, s{sH}, s{F.fT1}', f's_add_u32 s{F.fT1}, s{F.fT1}, {F.FLAG_O}'])
        F.spin(p, 'a')
    p.mark('jobs')
    side_jobs(p)
    p.mark('jobs_end')
    slow_path(p, tmpsets)
    p('s_endpgm')
    p.mark('fin')
    S = p.seg
    rest = S('ps7', 'p0') + S('p1' if OPT['job'] else 'p2', 'last') + S('p0', 'last') + S('p0', 'p1') + S('last', 'end')
    settle([S('start', 'v1') + rest, S('start', 'v0') + S('v1', 'ps7') + rest, S('slow', 'slow_end') + S('slow_loop', 'fin'), S('jobs', 'jobs_end')], name)
    if not QUIET[0]:
        nms = ['rGU', 'rG2', 'rU20', 'rX0', 'rQ10', 'rQ20', 'rU21', 'rQ11', 'rQ21', 'ps7']
        for a, b in zip(nms, nms[1:]):
            estimate(S(a, b), a)
        estimate(S('ps7', 't0'), 'att prologue')
        estimate(S('t0', 'p0'), 'T0')
        for a, b in (('p0', 'p1'), ('p1', 'p2'), ('p2', 'p3'), ('p3', 'last'), ('last', 't31'), ('t31', 'att_end')) + ((('fin0', 'fin1'), ('fin1', 'fin2')) if OPT['fused'] else ()):
            estimate(S(a, b), a)
    return header(name) + render(p.ins), descriptor(name, 512, 102, 256), ST.names
```

```python
from asmlib import *

KA_X, KA_K, KA_V, KA_WQ, KA_WO, KA_BX, KA_WG, KA_WU, KA_WD, KA_OUT, KA_DBG, KA_WS = [8 * i for i in range(12)]

XN_OFF = 0
XN_MB = 18 * 1024
XN_BYTES = 128 * XN_MB
HF_OFF = 0x400000
STEP = 128 * 1024
HF_BYTES = 144 * STEP
OF_OFF = 0x1800000
OF_BYTES = 128 * STEP

WF_OFF = 0x2A00000
WF_BYTES = 272 * 36864
FLAG_OFF = 0x2900000
FLAG_BYTES = 9216
PART_OFF = 0x3400000
PART_SLAB = 10240
PART_BYTES = 2 * 64 * 16 * PART_SLAB

X_BYTES = 2048 * 576 * 2
KV_HEAD = 2048 * 128 * 2
WQ_BYTES = 576 * 4096 * 2
WG_BYTES = 576 * 4608 * 2
WO_BYTES = 4096 * 576 * 2
WD_BYTES = 4608 * 576 * 2


def vr(b, n=1):
    return f'v{b}' if n == 1 else f'v[{b}:{b + n - 1}]'


def ar(b, n=1):
    return f'a{b}' if n == 1 else f'a[{b}:{b + n - 1}]'


def sr(b, n=1):
    return f's{b}' if n == 1 else f's[{b}:{b + n - 1}]'


def header(name):
    return (f'.globl {name}\n.p2align 8\n.type {name},@function\n{name}:\n')


def descriptor(name, vgpr, sgpr, accum):
    return (f'.amdhsa_kernel {name}\n'
            f'  .amdhsa_next_free_vgpr {vgpr}\n'
            f'  .amdhsa_next_free_sgpr {sgpr}\n'
            f'  .amdhsa_accum_offset {accum}\n'
            f'  .amdhsa_group_segment_fixed_size 0\n'
            f'  .amdhsa_kernarg_size 96\n'
            f'  .amdhsa_user_sgpr_count 2\n'
            f'  .amdhsa_user_sgpr_kernarg_segment_ptr 1\n'
            f'  .amdhsa_system_sgpr_workgroup_id_x 1\n'
            f'  .amdhsa_float_denorm_mode_32 3\n'
            f'.end_amdhsa_kernel\n')


def srd(p, d, base, off_sgpr=None, off_imm=0, nbytes=0, nbytes_minus_off=False):
    if off_imm:
        p(f's_add_u32 s{d}, s{base}, {off_imm}')
        p(f's_addc_u32 s{d + 1}, s{base + 1}, 0')
        if off_sgpr is not None:
            p(f's_add_u32 s{d}, s{d}, s{off_sgpr}')
            p(f's_addc_u32 s{d + 1}, s{d + 1}, 0')
    elif off_sgpr is not None:
        p(f's_add_u32 s{d}, s{base}, s{off_sgpr}')
        p(f's_addc_u32 s{d + 1}, s{base + 1}, 0')
    else:
        p(f's_mov_b32 s{d}, s{base}')
        p(f's_mov_b32 s{d + 1}, s{base + 1}')
    if nbytes_minus_off:
        p(f's_sub_u32 s{d + 2}, {nbytes}, s{off_sgpr}')
    else:
        p(f's_mov_b32 s{d + 2}, {nbytes}')
    p(f's_mov_b32 s{d + 3}, 0x20000')


def finish(p, trace, name):
    settle([trace], name)
    return render(p.ins)


DBGDUMP = [None]
STAMP_OFF = 0x6000000
class Stamps:
    def __init__(self, on, first_sgpr, nmax):
        self.on, self.base, self.n, self.nmax = on, first_sgpr, 0, nmax
        self.names = []
    def stamp(self, p, name):
        if not self.on:
            return
        assert self.n < self.nmax
        p('s_waitcnt lgkmcnt(0)')
        p('s_memtime s[100:101]')
        p('s_waitcnt lgkmcnt(0)')
        p(f'v_writelane_b32 v{self.base}, s100, {self.n}')
        p('s_memrealtime s[100:101]')
        p('s_waitcnt lgkmcnt(0)')
        p(f'v_writelane_b32 v{self.base + 1}, s100, {self.n}')
        self.n += 1
        self.names.append(name)
    def dump(self, p, region, t):
        if not self.on:
            return
        p(f's_load_dwordx2 s[96:97], s[0:1], {KA_WS}')
        p('s_getreg_b32 s100, hwreg(HW_REG_XCC_ID)')
        p(f'v_writelane_b32 v{self.base}, s100, 40')
        p('s_getreg_b32 s100, hwreg(HW_REG_HW_ID)')
        p(f'v_writelane_b32 v{self.base}, s100, 41')
        p('s_waitcnt lgkmcnt(0)')
        p(f's_add_u32 s96, s96, {STAMP_OFF + region * 0x100000}')
        p('s_addc_u32 s97, s97, 0')
        p('s_mov_b32 s98, 0x100000')
        p('s_mov_b32 s99, 0x20000')
        p('s_lshl_b32 s100, s2, 11')
        p(f'v_lshlrev_b32 v{t}, 3, v0')
        p(f'buffer_store_dwordx2 v[{self.base}:{self.base + 1}], v{t}, s[96:99], s100 offen')
        p('s_waitcnt vmcnt(0)')
        if DBGDUMP[0]:
            p('s_cmp_lg_u32 s2, 100')
            p('s_cbranch_scc1 L_nodump')
            p(f's_load_dwordx2 s[96:97], s[0:1], {KA_DBG}')
            p(f'v_readlane_b32 s100, v{self.base + 1}, 0')
            p('s_waitcnt lgkmcnt(0)')
            p('s_mov_b32 s98, 256')
            p(f'v_subrev_u32 v{self.base + 1}, s100, v{self.base + 1}')
            p(f'v_mov_b32 v{t}, 0x1000')
            for k, idx in enumerate(DBGDUMP[0][:6]):
                p(f's_mov_b32 s100, {(36 + 4 * k) if k < 3 else (40 + 4 * k)}')
                p(f'v_writelane_b32 v{t}, s100, {idx}')
            p(f'v_cmp_gt_u32 vcc, 64, v0')
            p('s_and_saveexec_b64 s[94:95], vcc')
            p('s_cbranch_execz L_nodump')
            p(f'buffer_store_dword v{self.base + 1}, v{t}, s[96:99], 0 offen')
            p('L_nodump:')
```

```python
from common import *
from sched import *
import sched
import k_fin5 as F
from k_ln import row_sum

S_FO, S_XN, S_WG, S_WU, S_WQ, S_K, S_V, S_HF, S_OF, S_WX, S_FD, S_WF, S_F2 = 4, 8, 12, 16, 20, 24, 28, 32, 36, 40, 44, 48, 92
sW, sH, sRB, sT0, sT1, sT2, sOFF, sST = 52, 53, 54, 55, 56, 57, 58, 59
sXq, sHq, sXS = 60, 64, 68
sLW, sLX, sLK, sMASK, sNL2E, sSCALE, sTILE, sCNT, sBIG, sFL = 70, 71, 72, 73, 74, 75, 76, 77, 78, 79
sRW = 80
sRX = 86
sFS0, sFD0, sFS2, sFD2 = 96, 97, 98, 99
vLANE, vL16, vWG, vWX, vWQ = 1, 2, 3, 4, 5
vA = 6
vTMP = 10
vWF = 24
vXNV = 48
vSG = 80
vACC0, vACC1 = 112, 176
vKD, vVD = 240, 244
vVA = 16
vKA = 246
vL = 124
vS = 128
vNEGM = 160
vP = 176
vRL = 240
aO, aK, aV = 0, 128, 160

aONE, aLS = 192, 196
vFD, vFA, vFZ = 254, 255, 11
OPT = dict(xp=0, grp=2, grpab=0, job=0, lag=9, ln=True, wpre=6, bal=True, cpf=True, nt=True, rot=True, kvwrap=False, fmt=True, sc1=False, fused=True)
RING0, SLOT = 40960, 24576
CH = 12288


def slot_base(e):
    return RING0 + SLOT * ((e + 2) % 5)


def xn_reg(qb, ks):
    i = ks * 4 + qb
    return vr(vXNV + 4 * (i - 64), 4) if i >= 64 else ar(4 * i, 4)


def q_reg(ks, qb):
    return vr((vSG if ks < 2 else vXNV) + ((ks & 1) * 4 + qb) * 4, 4)


def q_base(ks, qb):
    return (vSG if ks < 2 else vXNV) + ((ks & 1) * 4 + qb) * 4


def mfma(d, a, b, c):
    return I(f'v_mfma_f32_16x16x32_bf16 {d}, {a}, {b}, {c}')


def NT():
    return ' nt' if OPT['nt'] else ''


class Plan:
    def __init__(self, heavy):
        six = lambda k, h, acc: [(k, h, cc, acc) for cc in range(6)]
        self.heavy = heavy
        self.ch = [(k, 0, cc, acc) for cc in range(6) for k, acc in (('G', vACC0), ('U', vACC1))] + six('G', 1, vACC1) + six('U', 1, vACC0)
        self.regions = [('GU', 0, 12), ('G2', 12, 18), ('U2', 18, 24)]
        sizes = [2] * 12
        if heavy:
            self.ch += six('X', 0, vACC1)
            self.regions.append(('X', 24, 30))
            sizes += [2, 1, 1, 1, 1]
        n = len(self.ch)
        self.q1, self.q2 = (vACC0, vACC1) if heavy else (vACC1, vACC0)
        self.ch += six('Q', 0, self.q1) + six('Q', 1, self.q2)
        self.regions += [('Q1', n, n + 6), ('Q2', n + 6, n + 12)]
        sizes += [2] * 6
        self.epoch = [e for e, k in enumerate(sizes) for _ in range(k)]
        self.pos = [i for k in sizes for i in range(k)]
        self.members = [[c for c in range(len(self.ch)) if self.epoch[c] == e] for e in range(len(sizes))]


PLAN = Plan(True)


def w_dma(c, plan=PLAN):
    kind, half, cc, _ = plan.ch[c]
    e = plan.epoch[c]
    lds = slot_base(e) + plan.pos[c] * CH
    out = []
    for i in range(3):
        if kind in 'GU':
            srd_, vo, sl = (S_WG if kind == 'G' else S_WU), vWG, sLW
            so = i * 32 * 9216 + half * 128
            l = lds + i * 4096
        elif kind == 'Q':
            srd_, vo, sl = S_WQ, vWQ, sLW
            so = i * 32 * 8192 + half * 128
            l = lds + i * 4096
        else:
            srd_, vo, sl = S_WX, vWX, sLX
            so = i * 16 * 9216
            l = lds + i * 1024
        pre = [f's_add_u32 m0, s{sl}, {l}', f's_add_u32 s{sOFF}, s{sRW + cc}, {so}']
        if kind == 'Q' and half == 0 and i == 0:
            pre = [f's_mul_i32 s{sRW + cc}, s{sRX + cc}, 256'] + pre
        out.append(Item(I(f'buffer_load_dwordx4 v{vo}, {sr(srd_, 4)}, s{sOFF} offen{NT()} lds', tag=('W', e)), pre=pre))
    return out


def kv_dma(which, slot, tile=None):
    out = []
    base = (0 if which == 'K' else 65536) + slot * 16384
    for pc in range(4):
        pre = []
        so = sTILE if tile is None else sOFF
        if pc == 0:
            pre.append(f's_add_u32 m0, s{sLK}, {base}')
            if tile is not None:
                pre.append(f's_mov_b32 s{sOFF}, {(tile + (which == "V")) * 16384}')
        vo = vKD + pc if which == 'K' else vVD + (pc & 1)
        srd_ = S_K if which == 'K' else S_V
        out.append(Item(I(f'buffer_load_dwordx4 v{vo}, {sr(srd_, 4)}, s{so} offen offset:{1024 * pc}{NT()} lds',
                          tag=(which, slot)), pre=pre))
    return out


def xn_loads(c):
    out = []
    for qb in range(4):
        for kk in range(3):
            pre = [f's_add_u32 s{sT0}, s{sRX + c}, {qb * XN_MB}'] if kk == 0 else []
            out.append(Item(I(f'buffer_load_dwordx4 {xn_reg(qb, 3 * c + kk)}, v{vL16}, {sr(S_XN, 4)}, s{sT0} offen offset:{1024 * kk}{" sc1" if OPT["ln"] else ""}'),
                            pre=pre))
    return out


def emit_items(p, items):
    for it in items:
        for x in it.pre:
            p.add(x)
        p.add(it.ins)


def addr_gu(base):
    t0, t1, t2 = vTMP, vTMP + 1, vTMP + 2
    L = [f'v_lshrrev_b32 v{t0}, 4, v{vLANE}',
         f'v_bfe_u32 v{t1}, v{vLANE}, 2, 2',
         f'v_lshl_add_u32 v{t2}, v{t0}, 3, v{t1}',
         f'v_lshlrev_b32 v{t2}, 7, v{t2}',
         f'v_and_b32 v{t0}, 1, v{t0}',
         f'v_lshrrev_b32 v{t1}, 1, v{t1}',
         f'v_lshl_or_b32 v{t0}, v{t0}, 1, v{t1}',
         f'v_and_b32 v{t1}, 3, v{vLANE}',
         f'v_lshl_add_u32 v{t2}, v{t1}, 3, v{t2}',
         f'v_add_u32 v{t2}, {base}, v{t2}']
    for nb in range(4):
        L += [f'v_xor_b32 v{t1}, {nb}, v{t0}', f'v_lshl_add_u32 v{vA + nb}, v{t1}, 5, v{t2}']
    return L


def addr_x(base):
    t0, t1, t2 = vTMP, vTMP + 1, vTMP + 2
    L = [f'v_lshrrev_b32 v{t0}, 4, v{vLANE}',
         f'v_bfe_u32 v{t1}, v{vLANE}, 2, 2',
         f'v_lshl_add_u32 v{t2}, v{t0}, 3, v{t1}',
         f'v_lshlrev_b32 v{t2}, 6, v{t2}',
         f'v_and_b32 v{t0}, 1, v{t0}',
         f'v_and_b32 v{t1}, 3, v{vLANE}',
         f'v_lshl_add_u32 v{t2}, v{t1}, 3, v{t2}',
         f'v_add_u32 v{t2}, {base}, v{t2}']
    for nb in range(2):
        L += [f'v_xor_b32 v{t1}, {nb}, v{t0}', f'v_lshl_add_u32 v{vA + nb}, v{t1}, 5, v{t2}']
    return L


def addr_q(base):
    t0, t1, t2 = vTMP, vTMP + 1, vTMP + 2
    L = [f'v_lshrrev_b32 v{t0}, 4, v{vLANE}',
         f'v_bfe_u32 v{t1}, v{vLANE}, 2, 2',
         f'v_lshl_add_u32 v{t2}, v{t0}, 3, v{t1}',
         f'v_lshlrev_b32 v{t2}, 7, v{t2}',
         f'v_add_u32 v{t2}, {base}, v{t2}',
         f'v_and_b32 v{t0}, 1, v{t0}',
         f'v_lshrrev_b32 v{t1}, 1, v{t1}',
         f'v_lshl_or_b32 v{t0}, v{t0}, 1, v{t1}',
         f'v_lshlrev_b32 v{t0}, 1, v{t0}',
         f'v_and_b32 v{t1}, 3, v{vLANE}',
         f'v_xor_b32 v{t0}, v{t0}, v{t1}',
         f'v_lshl_add_u32 v{vA}, v{t0}, 4, v{t2}',
         f'v_xor_b32 v{t0}, 4, v{t0}',
         f'v_lshl_add_u32 v{vA + 1}, v{t0}, 4, v{t2}']
    return L


def kv_dma_addr():
    t0, t1, t2 = vTMP + 3, vTMP + 4, vTMP + 5
    L = [f'v_lshrrev_b32 v{t0}, 4, v{vLANE}',
         f'v_and_b32 v{t1}, 15, v{vLANE}',
         f'v_lshlrev_b32 v{t2}, 8, v{t0}',
         f'v_add_u32 v{t2}, s{sLK}, v{t2}']
    for pc in range(4):
        L += [f'v_or_b32 v{vKD + pc}, {4 * pc}, v{t0}', f'v_xor_b32 v{vKD + pc}, v{vKD + pc}, v{t1}',
              f'v_lshl_add_u32 v{vKD + pc}, v{vKD + pc}, 4, v{t2}']
    for pc in range(2):
        L += [f'v_or_b32 v{vVD + pc}, {4 * pc}, v{t0}', f'v_lshlrev_b32 v{vVD + pc}, 1, v{vVD + pc}',
              f'v_xor_b32 v{vVD + pc}, v{vVD + pc}, v{t1}', f'v_lshl_add_u32 v{vVD + pc}, v{vVD + pc}, 4, v{t2}']
    return L


def kv_read_addr(vbase=65536):
    t0, t1, t2 = vTMP + 3, vTMP + 4, vTMP + 5
    L = [f'v_lshrrev_b32 v{t0}, 4, v{vLANE}',
         f'v_and_b32 v{t1}, 15, v{vLANE}',
         f'v_lshlrev_b32 v{t2}, 8, v{t1}',
         f'v_xor_b32 v{t1}, v{t0}, v{t1}']
    for ks in range(4):
        L += [f'v_xor_b32 v{vKA + ks}, {4 * ks}, v{t1}', f'v_lshl_add_u32 v{vKA + ks}, v{vKA + ks}, 4, v{t2}']
    L += [f'v_lshrrev_b32 v{t0}, 2, v{vLANE}',
          f'v_and_b32 v{t1}, 3, v{vLANE}',
          f'v_lshlrev_b32 v{t1}, 3, v{t1}',
          f'v_lshl_add_u32 v{t2}, v{t0}, 8, v{t1}',
          f'v_add_u32 v{t2}, {vbase}, v{t2}',
          f'v_and_b32 v{t0}, 7, v{t0}']
    for db in range(8):
        L += [f'v_xor_b32 v{vVA + db}, {db}, v{t0}', f'v_lshl_add_u32 v{vVA + db}, v{vVA + db}, 5, v{t2}']
    return L


def tile(acc, nb, qb, nq=4):
    return acc + (nb * nq + qb) * 4


def silu_ops(g, t0, t1):
    return [f'v_mul_f32 v{t0}, s{sNL2E}, v{g}', f'v_exp_f32 v{t0}, v{t0}', f'v_add_f32 v{t0}, 1.0, v{t0}',
            f'v_rcp_f32 v{t0}, v{t0}', f'v_mul_f32 v{g}, v{g}, v{t0}']


def stream_silu(acc):
    out = []
    for j in range(2):
        for qb in range(4):
            for half in range(2):
                tb = tile(acc, 2 * j + half, qb)
                tmp = vTMP + 6 + 4 * (half & 1)
                st = [silu_ops(tb + r, tmp + r, None) for r in range(4)]
                for s in range(5):
                    for r in range(4):
                        out.append(Item(st[r][s]))
                sg = vSG + (j * 4 + qb) * 4 + 2 * half
                out.append(Item(f'v_cvt_pk_bf16_f32 v{sg}, v{tb}, v{tb + 1}'))
                out.append(Item(f'v_cvt_pk_bf16_f32 v{sg + 1}, v{tb + 2}, v{tb + 3}'))
    return out


def stream_finish_h(acc, pair):
    out = []
    n = 0
    for j in range(2):
        for qb in range(4):
            sg = vSG + (j * 4 + qb) * 4
            for half in range(2):
                tb = tile(acc, 2 * j + half, qb)
                tmp = vTMP + 6 + 4 * (n & 1)
                n += 1
                for dd in range(2):
                    out.append(Item(f'v_lshlrev_b32 v{tmp + 2 * dd}, 16, v{sg + 2 * half + dd}'))
                    out.append(Item(f'v_and_b32 v{tmp + 2 * dd + 1}, s{sMASK}, v{sg + 2 * half + dd}'))
                for r in range(4):
                    out.append(Item(f'v_mul_f32 v{tb + r}, v{tb + r}, v{tmp + r}'))
                for dd in range(2):
                    out.append(Item(f'v_cvt_pk_bf16_f32 v{sg + 2 * half + dd}, v{tb + 2 * dd}, v{tb + 2 * dd + 1}'))
            out.append(Item(f'buffer_store_dwordx4 {vr(sg, 4)}, v{vL16}, {sr(S_HF, 4)}, s{sST} offen{SC1()}',
                            pre=[f's_add_u32 s{sST}, s{sHq + qb}, {(2 * pair + j) * STEP}']))
    return out


def sg_reg(nb, qb):
    return vSG + ((nb >> 1) * 4 + qb) * 4 + 2 * (nb & 1)


def stream_h_direct(acc):
    out = []
    n = 0
    for j in range(2):
        for qb in range(4):
            for half in range(2):
                tb, sg = tile(acc, 2 * j + half, qb), sg_reg(2 * j + half, qb)
                tmp = vTMP + 6 + 4 * (n & 1)
                n += 1
                st = [silu_ops(tb + r, tmp + r, None) for r in range(4)]
                for k in range(5):
                    out += [Item(st[r][k]) for r in range(4)]
                for dd in range(2):
                    out.append(Item(f'v_lshlrev_b32 v{tmp + 2 * dd}, 16, v{sg + dd}'))
                    out.append(Item(f'v_and_b32 v{tmp + 2 * dd + 1}, s{sMASK}, v{sg + dd}'))
                out += [Item(f'v_mul_f32 v{tb + r}, v{tb + r}, v{tmp + r}') for r in range(4)]
                out += [Item(f'v_cvt_pk_bf16_f32 v{sg + dd}, v{tb + 2 * dd}, v{tb + 2 * dd + 1}') for dd in range(2)]
            out.append(Item(f'buffer_store_dwordx4 {vr(vSG + (j * 4 + qb) * 4, 4)}, v{vL16}, {sr(S_HF, 4)}, s{sST} offen{SC1()}',
                            pre=[f's_add_u32 s{sST}, s{sHq + qb}, {j * STEP}']))
    return out


def stream_x_epi(acc):
    out = []
    for qb in range(4):
        dst = vSG + qb * 4
        for half in range(2):
            tg = tile(acc, half, qb)
            tu = tile(acc, 2 + half, qb)
            tmp = vTMP + 6 + 4 * half
            st = [silu_ops(tg + r, tmp + r, None) + [f'v_mul_f32 v{tg + r}, v{tg + r}, v{tu + r}'] for r in range(4)]
            for s in range(6):
                for r in range(4):
                    out.append(Item(st[r][s]))
            for dd in range(2):
                out.append(Item(f'v_cvt_pk_bf16_f32 v{dst + 2 * half + dd}, v{tg + 2 * dd}, v{tg + 2 * dd + 1}'))
        out.append(Item(f'buffer_store_dwordx4 {vr(dst, 4)}, v{vL16}, {sr(S_HF, 4)}, s{sXS} offen offset:{1024 * qb}{SC1()}'))
    return out


def stream_q_epi(acc, ps, nbs=None):
    out = []
    for ksub in range(2):
        for half in range(2):
            for qb in range(4):
                tb = tile(acc, 2 * ksub + half, qb)
                nb = nbs[(ksub, half, qb)] if nbs else 0
                for r in range(4):
                    out.append(Item(f'v_mul_f32 v{tb + r}, s{sSCALE}, v{tb + r}', nb=nb))
                d = q_base(2 * ps + ksub, qb) + 2 * half
                nbw = nbs[('w', ksub, qb)] if nbs else 0
                for dd in range(2):
                    out.append(Item(f'v_cvt_pk_bf16_f32 v{d + dd}, v{tb + 2 * dd}, v{tb + 2 * dd + 1}', nb=max(nb, nbw)))
    return out


def SC1():
    return ' sc1' if (OPT['sc1'] or OPT['fused']) else ''


S_J, sJB, sTGL = 40, 60, 61
vJ, vJA = 24, 28


def fmt_dma(i):
    out = []
    for pc in range(4):
        pp = [f's_add_u32 m0, s{sFL}, {(i & 1) * 4096 + pc * 1024}', f's_add_u32 s{sOFF}, s{sFS2 if i == 2 else sFS0}, {pc * 9216}']
        out.append(Item(I(f'buffer_load_dwordx4 v{vFD}, {sr((S_FD, S_FO, S_F2)[i], 4)}, s{sOFF} offen{NT()} lds', tag=('F', i)), pre=pp))
    return out


def fmt_inline(GG):
    force(GG, fmt_dma(0) + fmt_dma(1), list(range(8)))
    force(GG, fmt_dma(2), [BLK[3] + 24 + 2 * n for n in range(4)])
    rd_at = {0: 66, 1: PER + 2, 2: PER + 74}
    n = 0
    for i in range(3):
        for nb in range(4):
            r = vWF + ((i * 4 + nb) % 6) * 4
            a = vTMP + 3 + (nb & 1)
            g = rd_at[i] + (6 if i != 1 else 12) * nb
            force(GG, [Item(f'v_xor_b32 v{a}, {nb << 5}, v{vFA}')], [g])
            if nb == 0:
                force(GG, [Item(W(tags=[('F', i)]))], [g + 2])
            force(GG, [Item(f'ds_read_b64_tr_b16 {vr(r + 2 * t, 2)}, v{a} offset:{(i & 1) * 4096 + t * 2048}') for t in range(2)], [g + 2, g + 4])
            pre = [f's_add_u32 s{sFD0}, s{sFD0}, {144 * 36864}'] if (i == 1 and nb == 0) else []
            force(GG, [Item(f'buffer_store_dwordx4 {vr(r, 4)}, v{vL16}, {sr(S_WF, 4)}, s{sFD2 if i == 2 else sFD0} offen offset:{nb * 1024}{SC1()}', pre=pre)],
                  [(84, 100, 116, 132, 148, 164, 180, 196, 218, 232, 246, 260)[n]])
            n += 1


def job_items(T, g):
    g[32].append(I(f'buffer_store_dwordx4 {vr(vJ, 4)}, v{vL16}, {sr(S_J, 4)}, s{sJB} offen offset:{((T - 1) & 3) * 1024}{SC1()}'))
    g[33].append(I(f'v_xor_b32 v{vJA}, {(T & 3) << 5}, v{vFA}'))
    for t in range(2):
        g[BLK[2] + 32 + t].append(I(f'ds_read_b64_tr_b16 {vr(vJ + 2 * t, 2)}, v{vJA} offset:{t * 2048}'))
    if T == 3:
        g[BLK[3] + 13].append(I(f'v_xor_b32 v{vFA}, s{sTGL}, v{vFA}'))


def job_setup():
    return [f's_mov_b32 s{S_J}, s{S_WF}', f's_mov_b32 s{S_J + 1}, s{S_WF + 1}', f's_mov_b32 s{S_J + 2}, {PART_OFF + PART_BYTES - WF_OFF}',
            f's_mov_b32 s{S_J + 3}, 0x20000', f's_mov_b32 s{sJB}, 0x7f000000', f's_mov_b32 s{sTGL}, 0']


def side_jobs(p):
    sent = OPT['fused'] and F.OPT['sent']
    for k in (range(6) if OPT['job'] else [4]):
        p(f'L_job{k}:' if OPT['job'] else 'L_job0:')
        if k < 5 and OPT['job']:
            p(f's_cmp_lg_u32 s{sCNT}, {7 - k}')
            p(f's_cbranch_scc1 L_job{k + 1}')
        if k == 0:
            p(f's_mov_b32 s{sJB}, s{sFD0}')
            p(f's_mov_b32 s{sTGL}, 4096')
        elif k == 1:
            p(f's_add_u32 s{sJB}, s{sFD0}, {144 * 36864}')
        elif k == 2:
            p(f's_mov_b32 s{sJB}, s{sFD2}')
            for r in range(4):
                p(f'v_mov_b32 v{4 + r}, -1')
            p(f'v_add_u32 v{vTMP}, s{sFL}, v{vL16}')
            for r in range(4):
                p(f'ds_write_b128 v{vTMP}, v[4:7] offset:{4096 + 1024 * r}')
        elif k == 3:
            p(f's_mov_b32 s{sTGL}, 0')
            for l in (F.slab_offset(sJB, sT0) if sent else [f's_mov_b32 s{sJB}, 0x7f000000']):
                p(l)
        elif k == 4:
            p(f's_add_u32 s{sJB}, s{sJB}, 4096')
            if OPT['fused']:
                p(f's_cmp_lg_u32 s{sW}, 0')
                p('s_cbranch_scc1 L_job_b')
                for l in DBG_SRD:
                    p(l)
                p(f's_and_b32 s{sT0}, s2, 7')
                p(f's_lshl_b32 s{sT0}, s{sT0}, 5')
                p(f'v_mov_b32 v{vTMP}, 1')
                p('s_mov_b64 exec, 1')
                p(f'buffer_atomic_add v{vTMP}, off, {sr(F.S_DBG, 4)}, s{sT0} sc1')
                p('s_mov_b64 exec, -1')
        else:
            p(f's_mov_b32 s{sJB}, 0x7f000000')
        if k < 2:
            emit_items(p, fmt_dma(k + 1))
        p('s_branch L_job_b')


def k_reads(slot, kb, buf):
    return [I(f'ds_read_b128 {ar(aK + buf * 16 + ks * 4, 4)}, v{vKA + ks} offset:{slot * 16384 + kb * 4096}') for ks in range(4)]


def v_reads(slot, db, base, kks=(0, 1)):
    out = []
    for n, kk in enumerate(kks):
        for t in range(2):
            out.append(I(f'ds_read_b64_tr_b16 {ar(base + n * 4 + 2 * t, 2)}, v{vVA + db} offset:{slot * 16384 + kk * 8192 + t * 4096}'))
    return out


def qk_block(kb, c0=False):
    sb = vS + (kb & 1) * 16
    out = []
    for qb in range(4):
        for ks in range(4):
            d = vr(sb + qb * 4, 4)
            c = d if ks else ('0' if c0 else vr(vNEGM + qb * 4, 4))
            out.append(mfma(d, ar(aK + (kb & 1) * 16 + ks * 4, 4), q_reg(ks, qb), c))
    return out


def p_reg(buf, kk, qb):
    return vP + buf * 32 + (kk * 4 + qb) * 4


MS = (1, 3)
VS = (0, 2)
NMS = 2


def ones_mfma(pbuf, kk, qb, first=False):
    d = ar(aLS + (qb >> 1) * 4, 4)
    return mfma(d, ar(aONE, 4), vr(p_reg(pbuf, kk, qb), 4), '0' if first else d)


def pv_block(i, pbuf, first=False):
    out = []
    for db in (2 * i, 2 * i + 1):
        for qb in range(4):
            for kk in range(2):
                d = ar(aO + (db * 4 + qb) * 4, 4)
                c = '0' if (first and kk == 0) else d
                out.append(mfma(d, ar(aV + (db & 1) * 8 + kk * 4, 4), vr(p_reg(pbuf, kk, qb), 4), c))
    if i in (0, 2):
        out += [ones_mfma(pbuf, 0, i + 1, first), ones_mfma(pbuf, 1, i + 1)]
    return out


def sm_stream(kb, pbuf, sub=False, init=False):
    sb = vS + (kb & 1) * 16
    out = []
    for qb in range(4):
        for r in range(4):
            s = sb + qb * 4 + r
            if sub:
                out.append(Item(f'v_add_f32 v{s}, v{vNEGM + qb * 4}, v{s}'))
            out.append(Item(f'v_exp_f32 v{s}, v{s}'))
            if qb in VS:
                if init and r == 0:
                    out.append(Item(f'v_mov_b32 v{vL + qb}, v{s}'))
                else:
                    out.append(Item(f'v_add_f32 v{vL + qb}, v{vL + qb}, v{s}'))
            if r & 1:
                d = p_reg(pbuf, kb >> 1, qb) + (kb & 1) * 2 + (r >> 1)
                out.append(Item(f'v_cvt_pk_bf16_f32 v{d}, v{s - 1}, v{s}'))
    return out


def xlane(op, v, t):
    return [f'v_mov_b32 v{t}, v{v}', f'v_permlane16_swap_b32 v{t}, v{v}', f'{op} v{v}, v{v}, v{t}',
            f'v_mov_b32 v{t}, v{v}', f'v_permlane32_swap_b32 v{t}, v{v}', f'{op} v{v}, v{v}, v{t}']


BLK = [0, 34, 66, 100, 132]
PER = 132


def wr(ins_list):
    return [r for x in ins_list for r in x.writes]


def period_skeleton(T, first=False, final=False, nodma=False):
    mf, gaps = [], []
    ksl, vsl = (T + 1) & 3, T & 3
    dma = kv_dma('K', T & 3) + kv_dma('V', (T + 3) & 3)
    nodma = nodma or final
    for i in range(4):
        mf += qk_block(i) + pv_block(i, T & 1, first)
        g = [[] for _ in range(BLK[i + 1] - BLK[i])]
        vo = v_reads(vsl, 2 * i + 1, aV + 8)
        for n in range(4):
            g[1 + 2 * n].append(vo[n])
        if OPT['grp'] == 2:
            for n in range(0 if nodma else 2):
                it = dma[2 * i + n]
                g[8][0:0] = it.pre
                g[(9, 23)[n]].append(it.ins)
        elif OPT['grp']:
            for n in range(4 if (i & 1 and not nodma) else 0):
                it = dma[2 * (i - 1) + n]
                g[6][0:0] = it.pre
                g[8 + n].append(it.ins)
        else:
            for n in range(0 if nodma else 2):
                it = dma[2 * i + n]
                g[8 + 2 * n][0:0] = it.pre
                g[9 + 2 * n].append(it.ins)
        if i < 3:
            g[15].append(W(lgkm0=True))
            kr = k_reads(ksl, i + 1, (i + 1) & 1)
            ve = v_reads(vsl, 2 * i + 2, aV)
        else:
            g[15] += [W(tags=[('K', (T + 2) & 3), ('V', (T + 1) & 3)] + ([('K', 0)] if nodma else []), lgkm0=True), I('s_barrier')]
            g[24 if OPT['grp'] == 2 else 12].append(I(f's_add_u32 s{sTILE}, s{sTILE}, {0 if OPT["kvwrap"] else 16384}'))
            kr = k_reads((T + 2) & 3, 0, 0)
            if final:
                kr = v_reads(3, 1, aK, (0,)) + v_reads(3, 2, aK + 4, (0,))
            ve = v_reads((T + 1) & 3, 0, aV)
        for n in range(4):
            g[(15 if OPT['grp'] == 2 else 17) + 2 * n].append(kr[n])
            g[25 + 2 * n].append(ve[n])
        g[-1].insert(0, W(regs=wr(kr)))
        gaps += g
    return mf, gaps


def clone(ins):
    if ins.kind == 'autowait':
        return W(ins.reads, ins.meta['wait_tags'], ins.meta['wait_lgkm0'])
    m = {k: v for k, v in ins.meta.items() if k in ('tag', 'wait_tags', 'wait_lgkm0', 'own')}
    return Ins(ins.text, **m)


def place_softmax(G):
    n = len(G)
    plain = []
    for T in range(4):
        for kb in range(4):
            qk = (0, 2, 4, 6, 12, 13, 14, 15) if (OPT['grp'] == 1 and kb == 0) else (0, 2, 4, 6, 12, 13, 14, 16) if (OPT['grp'] == 1 and kb == 2) else range(0, 16, 2)
            pv = (18, 20, 22, 24, 26, 28, 30) if (OPT['grp'] == 1 and kb == 3) else range(16, 32, 2)
            if OPT['grp'] == 1 and kb == 3:
                qk = (0, 2, 4, 6, 8, 10, 11, 12, 14)
            eg = [T * PER + BLK[kb] + k for k in pv] + [T * PER + BLK[kb + 1] + k for k in qk]
            at = {}
            k = 0
            for it in sm_stream(kb, (T + 1) & 1):
                it.ins.meta['own'] = (T, kb)
                if it.ins.kind == 'trans':
                    assert slots(G[eg[k] % n]) == 0
                    G[eg[k] % n].append(it.ins)
                    at[it.ins.writes[0]] = eg[k]
                    k += 1
                else:
                    plain.append((max(at[r] for r in it.ins.reads if r in at) + 2, it.ins, T, kb))
    cur = 0
    cut = next(k for k, e in enumerate(plain) if e[0] > BLK[1])
    plain = plain[cut:] + [(lo + n, x, T + 4, kb) for lo, x, T, kb in plain[:cut]]
    for lo, x, T, kb in plain:
        qb = (int(x.reads[-1][1:]) - vS) % 16 // 4
        lim = T * PER + (BLK[kb + 2] if kb < 2 else PER + BLK[kb - 2]) + 4 * qb
        if kb >= 2 and x.op.startswith('v_cvt'):
            lim = min(lim, (T + 1) * PER + 16 + 2 * qb - 1)
        gi = max(lo, cur)
        top = min(lim, gi + OPT['lag'])
        assert gi < lim, (gi, lim, x.text)
        gi = min(range(gi, top), key=lambda k: (max(2, slots(G[k % n] + [x])), k))
        G[gi % n].append(x)
        cur = gi


def o_epi_items(j, tmpsets, nb=0):
    out = []
    for qb in range(4):
        t = tmpsets[(j * 4 + qb) % len(tmpsets)]
        for half in range(2):
            for r in range(4):
                out.append(Item(f'v_accvgpr_read_b32 v{t + 4 * half + r}, a{aO + ((2 * j + half) * 4 + qb) * 4 + r}', nb=nb))
        for r in range(8):
            out.append(Item(f'v_mul_f32 v{t + r}, v{t + r}, v{vRL + qb}'))
        for dd in range(4):
            out.append(Item(f'v_cvt_pk_bf16_f32 v{t + 8 + dd}, v{t + 2 * dd}, v{t + 2 * dd + 1}'))
        out.append(Item(f'buffer_store_dwordx4 {vr(t + 8, 4)}, v{vL16}, {sr(S_OF, 4)}, s{sST} offen{SC1()}',
                        pre=[f's_add_u32 s{sST}, s{sHq + qb}, {j * STEP}']))
    return out


DBG_SRD = [f's_mov_b32 s{F.S_DBG}, s{F.pDBG}', f's_mov_b32 s{F.S_DBG + 1}, s{F.pDBG + 1}',
           f's_mov_b32 s{F.S_DBG + 2}, 256', f's_mov_b32 s{F.S_DBG + 3}, 0x20000']


PIV, OWN, FL, XCH = 112, 116, 128, 160


def ln_loads(p, ST):
    t0, t1 = vTMP, vTMP + 1
    p(f'v_and_b32 v{t0}, 7, v{vLANE}')
    p(f'v_lshrrev_b32 v{t1}, 3, v{vLANE}')
    p(f'v_mul_u32_u24 v{vA + 2}, 1152, v{t0}')
    p(f'v_lshl_add_u32 v{vA}, v{t1}, 4, v{vA + 2}')
    p(f's_lshl_b32 s{sT0}, s{sRB}, 5')
    p(f's_add_u32 s{sT0}, s{sT0}, s{sH}')
    p(f's_mul_i32 s{sT1}, s{sT0}, 9216')
    p(f's_lshl_b32 s{sT2}, s{sW}, 8')
    p(f's_add_u32 s{sT2}, s{sT2}, s{sT1}')
    p('s_waitcnt lgkmcnt(0)')
    ST.stamp(p, 'kernarg')
    srd(p, S_K, 8, nbytes=X_BYTES)
    p(f'buffer_load_dword v{PIV}, v{vA + 2}, {sr(S_K, 4)}, s{sT1} offen')
    for i in range(3):
        p(f'buffer_load_dwordx4 {vr(OWN + 4 * i, 4)}, v{vA}, {sr(S_K, 4)}, s{sT2} offen offset:{128 * i}')
    p(f'v_lshlrev_b32 v{vA + 1}, 8, v{t1}')
    p(f'v_lshl_add_u32 v{vA + 1}, v{t0}, 4, v{vA + 1}')
    p(f'v_lshlrev_b32 v{vA + 2}, 5, v{t0}')
    p(f's_lshl_b32 s{sT1}, s{sW}, 3')
    p(f'v_add_u32 v{vA + 3}, s{sT1}, v{vA + 2}')
    p(f's_lshr_b32 s{sCNT}, s{sT0}, 1')
    p(f's_mul_i32 s{sCNT}, s{sCNT}, {XN_MB}')
    p(f's_and_b32 s{sT0}, s{sT0}, 1')
    p(f's_lshl_b32 s{sT0}, s{sT0}, 7')
    p(f's_add_u32 s{sCNT}, s{sCNT}, s{sT0}')
    p(f's_lshl_b32 s{sT0}, s{sW}, 12')
    p(f's_add_u32 s{sCNT}, s{sCNT}, s{sT0}')


def ln_compute(p, ST):
    a0, q0, a2, q2, m, v, t = vTMP, vTMP + 1, vTMP + 2, vTMP + 3, vTMP + 4, vTMP + 6, vTMP + 8
    p(f's_cmp_eq_u32 s{sW}, 3')
    p(f's_cselect_b32 s{sT1}, 1.0, 0')
    p(f's_cselect_b32 s{sT0}, 0, 0x7f000000')
    p(f's_add_u32 s{sT0}, s{sT0}, s{sCNT}')
    p(f's_add_u32 s{sT0}, s{sT0}, 4096')
    ST.stamp(p, 'setup1')
    if ST.on:
        p('s_waitcnt vmcnt(1)')
    ST.stamp(p, 'x here')
    p(f'v_lshlrev_b32 v{PIV}, 16, v{PIV}')
    for d in range(12):
        p(f'v_lshlrev_b32 v{FL + 2 * d}, 16, v{OWN + d}')
        p(f'v_and_b32 v{FL + 2 * d + 1}, s{sMASK}, v{OWN + d}')
    for k in range(24):
        sa, sq = (a0, q0) if k < 16 else (a2, q2)
        dtmp = XCH + (k & 3)
        p(f'v_sub_f32 v{dtmp}, v{FL + k}, v{PIV}')
        if k in (0, 16):
            p(f'v_mov_b32 v{sa}, v{dtmp}')
            p(f'v_mul_f32 v{sq}, v{dtmp}, v{dtmp}')
        else:
            p(f'v_add_f32 v{sa}, v{sa}, v{dtmp}')
            p(f'v_fmac_f32 v{sq}, v{dtmp}, v{dtmp}')
    p(f'v_fmac_f32 v{a0}, s{sT1}, v{a2}')
    p(f'v_fmac_f32 v{q0}, s{sT1}, v{q2}')
    for x in (a0, q0):
        p(f'v_add_f32_dpp v{x}, v{x}, v{x} row_ror:8 row_mask:0xf bank_mask:0xf')
    for sw in ('v_permlane16_swap_b32', 'v_permlane32_swap_b32'):
        p(f'v_mov_b32 v{a2}, v{a0}')
        p(f'v_mov_b32 v{q2}, v{q0}')
        p(f'{sw} v{a2}, v{a0}')
        p(f'{sw} v{q2}, v{q0}')
        p(f'v_add_f32 v{a0}, v{a0}, v{a2}')
        p(f'v_add_f32 v{q0}, v{q0}, v{q2}')
    p(f'ds_write_b64 v{vA + 3}, {vr(a0, 2)}')
    p('s_waitcnt lgkmcnt(0)')
    p('s_barrier')
    ST.stamp(p, 'xch')
    p(f'ds_read_b128 {vr(XCH, 4)}, v{vA + 2}')
    p(f'ds_read_b128 {vr(XCH + 4, 4)}, v{vA + 2} offset:16')
    p(f'v_add_f32 v{a0}, v{XCH}, v{XCH + 2}')
    p(f'v_add_f32 v{q0}, v{XCH + 1}, v{XCH + 3}')
    p(f'v_add_f32 v{a2}, v{XCH + 4}, v{XCH + 6}')
    p(f'v_add_f32 v{q2}, v{XCH + 5}, v{XCH + 7}')
    p(f'v_add_f32 v{a0}, v{a0}, v{a2}')
    p(f'v_add_f32 v{q0}, v{q0}, v{q2}')
    p(f'v_mul_f32 v{a0}, 0x3ae38e39, v{a0}')
    p(f'v_mul_f32 v{q0}, 0x3ae38e39, v{q0}')
    p(f'v_add_f32 v{m}, v{PIV}, v{a0}')
    p(f'v_fma_f32 v{v}, -v{a0}, v{a0}, v{q0}')
    p(f'v_max_f32 v{v}, 0, v{v}')
    p(f'v_cvt_pk_bf16_f32 v{t}, v{m}, v{v}')
    p(f'v_lshlrev_b32 v{m}, 16, v{t}')
    p(f'v_and_b32 v{v}, s{sMASK}, v{t}')
    p(f'v_add_f32 v{v}, 0x3727c5ac, v{v}')
    p(f'v_cvt_pk_bf16_f32 v{v}, v{v}, v{v}')
    p(f'v_and_b32 v{v}, s{sMASK}, v{v}')
    p(f'v_sqrt_f32 v{v}, v{v}')
    for k in range(8):
        p(f'v_sub_f32 v{FL + k}, v{FL + k}, v{m}')
    p(f'v_cvt_pk_bf16_f32 v{v}, v{v}, v{v}')
    p(f'v_and_b32 v{v}, s{sMASK}, v{v}')
    p(f'v_rcp_f32 v{v}, v{v}')
    for i in range(3):
        for k in range(0 if i else 1, 5):
            for dd in range(4):
                d = 4 * i + dd
                f = FL + 2 * d
                p([f'v_sub_f32 v{f}, v{f}, v{m}\nv_sub_f32 v{f + 1}, v{f + 1}, v{m}',
                   f'v_cvt_pk_bf16_f32 v{OWN + d}, v{f}, v{f + 1}',
                   f'v_lshlrev_b32 v{f}, 16, v{OWN + d}\nv_and_b32 v{f + 1}, s{sMASK}, v{OWN + d}',
                   f'v_mul_f32 v{f}, v{f}, v{v}\nv_mul_f32 v{f + 1}, v{f + 1}, v{v}',
                   f'v_cvt_pk_bf16_f32 v{OWN + d}, v{f}, v{f + 1}'][k])
        so, off = (sCNT, 2048 * i) if i < 2 else (sT0, 0)
        p(f'buffer_store_dwordx4 {vr(OWN + 4 * i, 4)}, v{vA + 1}, {sr(S_V, 4)}, s{so} offen offset:{off} sc1', tag='XN')


def ln_signal(p):
    p.add(W(tags=['XN']))
    p('s_barrier')
    p(f's_lshl_b32 s{sCNT}, s{sRB}, 5')
    p(f's_cmp_lg_u32 s{sW}, 0')
    p('s_cbranch_scc1 L_ln_sent')
    p(f'v_mov_b32 v{vTMP}, 1')
    p('s_mov_b64 exec, 1')
    p(f'buffer_atomic_add v{vTMP}, off, {sr(S_HF, 4)}, s{sCNT} offset:16 sc1')
    p('s_mov_b64 exec, -1')
    p('L_ln_sent:')


def ln_wait(p):
    p(f's_cmp_lg_u32 s{sW}, 0')
    p('s_cbranch_scc1 L_ln_ready')
    p(f's_mov_b32 s{sT0}, 0')
    p('L_ln_poll:')
    p(f'buffer_load_dword v{vTMP + 8}, off, {sr(S_HF, 4)}, s{sCNT} offset:16 sc1')
    p(f's_add_u32 s{sT0}, s{sT0}, 1')
    p('s_waitcnt vmcnt(0)')
    p(f'v_cmp_gt_u32 vcc, 32, v{vTMP + 8}')
    p(f's_cmp_ge_u32 s{sT0}, 0x40000')
    p('s_cbranch_scc1 L_ln_ready')
    p('s_cbranch_vccnz L_ln_poll')
    p('L_ln_ready:')
    p('s_barrier')


def setup(p, ST):
    p('s_cmp_ge_u32 s2, 256')
    p('s_cbranch_scc1 L_main_end')
    ST.stamp(p, 'start')
    ln = OPT['ln']
    if ln:
        p(f's_load_dwordx2 s[8:9], s[0:1], {KA_X}')
        p(f's_load_dwordx2 s[10:11], s[0:1], {KA_DBG}')
    p(f's_load_dwordx4 s[48:51], s[0:1], {KA_WG}')
    p(f's_load_dwordx2 s[46:47], s[0:1], {KA_WS}')
    p(f's_load_dwordx4 s[4:7], s[0:1], {KA_K}')
    p(f's_load_dwordx2 s[44:45], s[0:1], {KA_WQ}')
    p(f's_load_dwordx2 s[98:99], s[0:1], {KA_WO}')
    p(f's_load_dwordx2 s[92:93], s[0:1], {KA_WD}')
    p('v_lshrrev_b32 v2, 6, v0')
    p(f'v_and_b32 v{vLANE}, 63, v0')
    p(f'v_readfirstlane_b32 s{sW}, v2')
    p(f'v_lshlrev_b32 v{vL16}, 4, v{vLANE}')
    p(f's_and_b32 s{sT0}, s2, 7')
    p(f's_lshr_b32 s{sT1}, s2, 3')
    p(f's_and_b32 s{sRB}, s{sT1}, 7')
    p(f's_lshr_b32 s{sT1}, s{sT1}, 3')
    p(f's_lshl2_add_u32 s{sH}, s{sT0}, s{sT1}')
    t0, t1, t2 = vTMP, vTMP + 1, vTMP + 2
    if ln:
        ln_loads(p, ST)
    if OPT['cpf']:
        p('s_getpc_b64 s[20:21]')
        p('L_cpf:')
        p('s_mov_b32 s22, L_slow-L_cpf')
        p('s_mov_b32 s23, 0x20000')
        p(f's_lshr_b32 s{sT0}, s2, 3')
        p(f's_lshl2_add_u32 s{sT0}, s{sT0}, s{sW}')
        p(f's_mul_i32 s{sT0}, s{sT0}, 896')
        p(f'v_lshlrev_b32 v{t0}, 7, v{vLANE}')
        p('s_mov_b64 exec, 0x7f')
        p(f'buffer_load_dword v{vTMP + 12}, v{t0}, s[20:23], s{sT0} offen')
        p('s_mov_b64 exec, -1')
    if ln:
        srd(p, S_HF, 10, nbytes=256)
        srd(p, S_V, 46, off_imm=XN_OFF, nbytes=XN_BYTES)
        p(f's_mov_b32 s{sMASK}, 0xffff0000')
        ln_compute(p, ST)
        ST.stamp(p, 'ln done')
        ln_signal(p)
        ST.stamp(p, 'ln sent')
    p(f's_mov_b32 s{sT0}, s{sRB}' if OPT['rot'] else f's_mov_b32 s{sT0}, 0')
    if OPT['rot'] == 2:
        p(f's_and_b32 s{sT1}, s{sH}, 1')
        p(f's_mul_i32 s{sT1}, s{sT1}, 3')
        p(f's_add_u32 s{sT0}, s{sT0}, s{sT1}')
    for c in range(6):
        if c:
            p(f's_add_u32 s{sT0}, s{sT0}, 1')
        p(f's_sub_u32 s{sT1}, s{sT0}, 6')
        p(f's_cmp_ge_u32 s{sT0}, 6')
        p(f's_cselect_b32 s{sT0}, s{sT1}, s{sT0}')
        p(f's_mul_i32 s{sRX + c}, s{sT0}, 3072')
        p(f's_mul_i32 s{sRW + c}, s{sT0}, {96 * 9216}')
    p(f's_lshl_b32 s{sLW}, s{sW}, 10')
    t0, t1, t2 = vTMP, vTMP + 1, vTMP + 2
    p(f'v_lshrrev_b32 v{t0}, 3, v{vLANE}')
    p(f'v_bfe_u32 v{t1}, v{vLANE}, 4, 1')
    p(f's_and_b32 s{sT0}, s{sW}, 1')
    p(f's_lshl_b32 s{sT1}, s{sT0}, 1')
    p(f'v_or_b32 v{t1}, s{sT1}, v{t1}')
    p(f'v_lshlrev_b32 v{t1}, 1, v{t1}')
    p(f'v_and_b32 v{t2}, 7, v{vLANE}')
    p(f'v_xor_b32 v{t1}, v{t1}, v{t2}')
    p(f'v_lshlrev_b32 v{t1}, 4, v{t1}')
    p(f's_lshl_b32 s{sT1}, s{sW}, 3')
    p(f'v_add_u32 v{t0}, s{sT1}, v{t0}')
    p(f'v_mul_u32_u24 v{vWG}, 9216, v{t0}')
    p(f'v_add_u32 v{vWG}, v{vWG}, v{t1}')
    p(f'v_lshl_add_u32 v{vWQ}, v{t0}, 13, v{t1}')
    p(f's_lshl_b32 s{sT0}, s{sH}, 8')
    p(f's_lshl_b32 s{sT1}, s{sRB}, 4')
    p(f's_lshl2_add_u32 s{sST}, s{sW}, s{sT1}')
    p(f's_mul_i32 s{sT2}, s{sST}, {XN_MB}')
    p('s_waitcnt lgkmcnt(0)')
    srd(p, S_WG, 48, off_sgpr=sT0, nbytes=WG_BYTES, nbytes_minus_off=True)
    srd(p, S_WU, 50, off_sgpr=sT0, nbytes=WG_BYTES, nbytes_minus_off=True)
    srd(p, S_XN, 46, off_sgpr=sT2, off_imm=XN_OFF, nbytes=4 * XN_MB)
    emit_items(p, [x for c in range(OPT['wpre']) for x in w_dma(c)] if ln else w_dma(0) + xn_loads(0) + w_dma(1))
    p(f's_lshl_b32 s{sT0}, s{sH}, 8')
    srd(p, S_WQ, 44, off_sgpr=sT0, nbytes=WQ_BYTES, nbytes_minus_off=True)
    p(f's_lshl_b32 s{sT2}, s{sST}, 10')
    p(f's_add_u32 s{sTILE}, s46, s{sT2}')
    p(f's_addc_u32 s{sBIG}, s47, 0')
    srd(p, S_OF, 46, off_sgpr=sT2, off_imm=OF_OFF, nbytes=OF_BYTES, nbytes_minus_off=True)
    p(f's_lshl_b32 s{sT2}, s{sH}, 19')
    srd(p, S_K, 4, off_sgpr=sT2, nbytes=KV_HEAD)
    p('s_sub_u32 s6, s6, 16384')
    p('s_subb_u32 s7, s7, 0')
    srd(p, S_V, 6, off_sgpr=sT2, nbytes=KV_HEAD + 16384)
    p(f's_lshr_b32 s{sT0}, s{sH}, 3')
    p(f's_and_b32 s{sT1}, s{sH}, 3')
    p(f's_lshl2_add_u32 s{sT0}, s{sT0}, s{sT1}')
    p(f's_lshl_b32 s{sT2}, s{sT0}, 17')
    p(f's_add_u32 s{sXS}, s{sT2}, {128 * STEP}')
    p(f's_lshl_b32 s{sHq}, s{sH}, 19')
    for q in range(1, 4):
        p(f's_add_u32 s{sHq + q}, s{sHq}, {1024 * q}')
    p(f's_lshl_b32 s{sT0}, s{sT0}, 6')
    p(f's_add_u32 s{sT0}, s{sT0}, 8192')
    p(f's_cmp_ge_u32 s{sW}, 2')
    p('s_cselect_b64 s[44:45], s[50:51], s[48:49]')
    srd(p, S_WX, 44, off_sgpr=sT0, nbytes=WG_BYTES, nbytes_minus_off=True)
    srd(p, S_WF, 46, off_imm=WF_OFF, nbytes=WF_BYTES)
    srd(p, S_FD, 92, nbytes=WD_BYTES)
    srd(p, S_FO, 98, nbytes=WO_BYTES)
    p(f's_lshl2_add_u32 s{sT0}, s2, s{sW}')
    for fs, fd in ((sFS0, sFD0), (sFS2, sFD2)):
        if fs == sFS2:
            p(f's_cmp_ge_u32 s{sT0}, 272')
            p(f's_cselect_b64 {sr(S_F2, 2)}, s[98:99], s[92:93]')
            p(f's_mov_b32 s{S_F2 + 2}, {WD_BYTES}')
            p(f's_cselect_b32 s{S_F2 + 2}, {WO_BYTES}, s{S_F2 + 2}')
            p(f's_mov_b32 s{S_F2 + 3}, 0x20000')
            p(f's_cselect_b32 s{sT2}, {144 * 36864}, 0')
            p(f's_cselect_b32 s{sT1}, 272, 0')
            p(f's_sub_u32 s{sT0}, s{sT0}, s{sT1}')
            p(f's_add_u32 s{sT0}, s{sT0}, 1024')
        p(f's_mul_i32 s{sT1}, s{sT0}, 7282')
        p(f's_lshr_b32 s{sT1}, s{sT1}, 16')
        p(f's_mul_i32 s{sOFF}, s{sT1}, 9')
        p(f's_sub_u32 s{sOFF}, s{sT0}, s{sOFF}')
        p(f's_mul_i32 s{sT1}, s{sT1}, 36864')
        p(f's_lshl_b32 s{fs}, s{sOFF}, 7')
        p(f's_add_u32 s{fs}, s{fs}, s{sT1}')
        p(f's_lshl_b32 s{fd}, s{sOFF}, 12')
        p(f's_add_u32 s{fd}, s{fd}, s{sT1}')
    p(f's_add_u32 s{sFD2}, s{sFD2}, s{sT2}')
    p(f's_lshl_b32 s{sFL}, s{sW}, 13')
    p(f's_add_u32 s{sFL}, s{sFL}, 131072')
    p(f's_lshl_b32 s{sLK}, s{sW}, 12')
    p(f's_mul_i32 s{sLX}, s{sW}, 3072')
    p(f's_mov_b32 s{sMASK}, 0xffff0000')
    p(f's_mov_b32 s{sNL2E}, 0xbfb8aa3b')
    p(f's_mov_b32 s{sSCALE}, 0x3e0293ee')
    p(f'v_lshrrev_b32 v{t0}, 2, v{vLANE}')
    p(f'v_bfe_u32 v{t1}, v{vLANE}, 5, 1')
    p(f'v_lshlrev_b32 v{t1}, 1, v{t1}')
    p(f'v_and_b32 v{t2}, 3, v{vLANE}')
    p(f'v_xor_b32 v{t1}, v{t1}, v{t2}')
    p(f's_and_b32 s{sT0}, s{sW}, 1')
    p(f's_mul_i32 s{sT1}, s{sT0}, 48')
    p(f'v_add_u32 v{t0}, s{sT1}, v{t0}')
    p(f'v_mul_u32_u24 v{vWX}, 9216, v{t0}')
    p(f'v_lshl_add_u32 v{vWX}, v{t1}, 4, v{vWX}')
    p(f'v_lshrrev_b32 v{t0}, 3, v{vLANE}')
    p(f'v_lshrrev_b32 v{t1}, 4, v{vLANE}')
    p(f'v_lshlrev_b32 v{t1}, 1, v{t1}')
    p(f'v_and_b32 v{t2}, 7, v{vLANE}')
    p(f'v_xor_b32 v{t1}, v{t1}, v{t2}')
    p(f'v_mul_u32_u24 v{t0}, 1152, v{t0}')
    p(f'v_lshl_add_u32 v{vFD}, v{t1}, 4, v{t0}')
    p(f'v_lshrrev_b32 v{t0}, 2, v{vLANE}')
    p(f'v_and_b32 v{t1}, 3, v{vLANE}')
    p(f'v_lshlrev_b32 v{t1}, 3, v{t1}')
    p(f'v_lshl_add_u32 v{t2}, v{t0}, 7, v{t1}')
    p(f'v_bfe_u32 v{t0}, v{vLANE}, 3, 2')
    p(f'v_lshl_add_u32 v{t2}, v{t0}, 5, v{t2}')
    p(f'v_add_u32 v{vFA}, s{sFL}, v{t2}')
    for l in addr_gu(slot_base(0)):
        p(l)
    if ln:
        ln_wait(p)
        ST.stamp(p, 'ln ready')
        emit_items(p, xn_loads(0))
    p(f's_add_u32 s{S_HF}, s{sTILE}, {HF_OFF}')
    p(f's_addc_u32 s{S_HF + 1}, s{sBIG}, 0')
    p(f's_lshl_b32 s{sT2}, s{sST}, 10')
    p(f's_sub_u32 s{S_HF + 2}, {HF_BYTES}, s{sT2}')
    p(f's_mov_b32 s{S_HF + 3}, 0x20000')
    p(f's_mov_b32 s{sBIG}, 0x53800000')
    emit_items(p, [] if ln else w_dma(2) + w_dma(3) + xn_loads(1))


def plan_ab(plan):
    NC = len(plan.ch)
    units = [(c, nb) for c in range(NC) for nb in range(4)]
    mf, gaps = [], []
    for u, (c, nb) in enumerate(units):
        cc, ac = plan.ch[c][2:]
        rb = vWF + 12 * (u & 1)
        for qb in range(4):
            for kk in range(3):
                d = vr(tile(ac, nb, qb), 4)
                mf.append(mfma(d, vr(rb + kk * 4, 4), xn_reg(qb, 3 * cc + kk), '0' if (cc == 0 and kk == 0) else d))
                gaps.append([])
    reg = {nm: (48 * a, 48 * b) for nm, a, b in plan.regions}
    head = []
    win = slot_base(0)
    for u, (c, nb) in enumerate(units):
        kind = plan.ch[c][0]
        e = plan.epoch[c]
        base = slot_base(e) + plan.pos[c] * CH
        at = 12 * (u - 1)
        fix = []
        if nb == 0:
            if c and kind in 'XQ' and plan.ch[c - 1][0] != kind:
                win = slot_base(e)
                fix = addr_x(win) if kind == 'X' else addr_q(win)
            elif not (win <= base and base + CH <= win + 65536):
                d = slot_base(e) - win
                win = slot_base(e)
                fix = [f'v_add_u32 v{vA + k}, {d & 0xffffffff:#x}, v{vA + k}' for k in range(4 if kind in 'GU' else 2)]
        if fix:
            fill(gaps, [Item(x) for x in fix], start=at - 6, end=at, lat=1)
        if nb == 0 and plan.pos[c] == 0:
            tags = [('W', e)] + ([('K', 0), ('K', 1)] if c == NC - 2 else [])
            if u == 0:
                head += [W(tags=tags), I('s_barrier')]
            else:
                gaps[at - 1][0:0] = [W(tags=tags), I('s_barrier')]
        rb = vWF + 12 * (u & 1)
        for kk in range(3):
            for t in range(2):
                o = base - win
                if kind in 'GU':
                    a, o = vA + nb, o + kk * 4096 + t * 512
                elif kind == 'Q':
                    a, o = vA + (nb >> 1), o + kk * 4096 + t * 512 + (nb & 1) * 8
                else:
                    a, o = vA + (nb & 1), o + (nb >> 1) * 6144 + kk * 2048 + t * 256
                x = I(f'ds_read_b64_tr_b16 {vr(rb + kk * 4 + 2 * t, 2)}, v{a} offset:{o}')
                if u == 0:
                    head.append(x)
                else:
                    gaps[at + 2 * kk + t].append(x)
            if u:
                regs = [f'v{rb + kk * 4 + k}' for k in range(4)]
                g = gaps[12 * u - 1 + kk]
                if g and g[0].kind == 'autowait':
                    g[0].reads += regs
                else:
                    g.insert(0, W(regs=regs))
    early = {0: 'w4 w5', 1: 'x2', 2: 'w6 w7', 3: 'x3', 4: 'w8 w9', 5: 'x4', 6: 'w10 w11', 7: 'x5', 8: 'w12 w13', 9: 'w14',
             10: 'w15 w16', 11: 'w17'}
    if OPT['ln']:
        early.update({0: 'x1', 1: 'x2', 2: 'w6 w7', 3: 'x3', 4: 'w8 w9', 5: 'x4', 6: 'w10 w11', 7: 'x5', 8: 'w12 w13',
                      9: 'w14 w15', 10: 'w16', 11: 'w17'})
        if OPT['wpre'] == 4:
            early.update({0: 'x1', 1: 'w4 w5', 2: 'x2', 3: 'w6 w7', 4: 'x3', 5: 'w8 w9', 6: 'x4', 7: 'w10 w11', 8: 'x5 w12',
                          9: 'w13 w14', 10: 'w15 w16', 11: 'w17'})
    for c in range(NC):
        vm = []
        e = plan.epoch[c]
        if c < 12:
            for k in early[c].split():
                vm += w_dma(int(k[1:]), plan) if k[0] == 'w' else xn_loads(int(k[1:]))
        elif e + 3 < len(plan.members):
            nxt, me = plan.members[e + 3], plan.members[e]
            for k, cn in enumerate(nxt):
                if min(k, len(me) - 1) == plan.pos[c]:
                    vm += w_dma(cn, plan)
        kv = {8: ('K', 0), 7: ('K', 1), 6: ('K', 2), 5: ('K', 3), 4: ('V', 0), 2: ('V', 1), 1: ('V', 2)}.get(NC - c)
        if kv:
            vm += kv_dma(kv[0], kv[1], kv[1])
        g0, lim = 48 * c, 48 * c + 35
        free = [gi for gi in range(g0, lim) if slots(gaps[gi]) == 0]
        step = len(free) / max(1, len(vm))
        pos = [free[int(n * step + step * 0.5)] for n in range(len(vm))]
        if OPT['grpab'] and c >= 12 and len(vm) <= 9:
            pos = [g0 + 12 * (n // 3) + 7 + n % 3 for n in range(len(vm))]
            pos = pos if all(q in free for q in pos) else [free[int(n * step + step * 0.5)] for n in range(len(vm))]
        put_vmem(gaps, vm, pos)
    e0 = reg['GU'][1]
    for nb in range(4):
        for qb in range(4):
            t = nb * 4 + qb
            tb, sg = tile(vACC1, nb, qb), sg_reg(nb, qb)
            lo = e0 - 48 + 3 * t + 2 + 7
            fill(gaps, [Item(f'v_cvt_pk_bf16_f32 v{sg + dd}, v{tb + 2 * dd}, v{tb + 2 * dd + 1}') for dd in range(2)],
                 start=lo, end=min(lo + 8, e0 + 3 * t - 1))
    kda = [Item(x) for x in kv_dma_addr()]
    streams = [('G2', stream_h_direct(vACC0), 0), ('U2', stream_silu(vACC1), 0)]
    if plan.heavy:
        streams += [('X', stream_finish_h(vACC0, 1), 0), ('Q1', kda + stream_x_epi(vACC1), 0)]
    else:
        streams += [('Q1', kda + stream_finish_h(vACC0, 1), 0)]
    streams.append(('Q2', stream_q_epi(plan.q1, 0) + [Item(x) for x in kv_read_addr()], 48))
    for nm, st, cut in streams:
        fill(gaps, st, start=reg[nm][0] + (12 if nm == 'G2' else 2), end=reg[nm][1] - cut)
    n = len(gaps)
    nbs = {}
    for ksub in range(2):
        for half in range(2):
            for qb in range(4):
                nbs[(ksub, half, qb)] = n - 48 + (2 * ksub + half) * 12 + qb * 3 + 2 + 6
        for qb in range(4):
            nbs[('w', ksub, qb)] = n
    ptrs = [I(f's_load_dwordx2 {sr(F.pX, 2)}, s[0:1], {KA_X}'), I(f's_load_dwordx4 {sr(F.pOUT, 4)}, s[0:1], {KA_OUT}')] if OPT['fused'] else [I('s_nop 1')]
    gaps.append(ptrs + k_reads(0, 0, 0) + k_reads(0, 1, 1))
    gaps[-1] += [I(f'v_accvgpr_write_b32 a{aONE + k}, v{vTMP + 3}') for k in range(4)]
    gaps[n - 50].append(I(f'v_mov_b32 v{vTMP + 3}, 0x3f803f80'))
    fill(gaps, stream_q_epi(plan.q2, 1, nbs), start=n - 48, end=n + 1, look=200)
    return head, mf, gaps, reg


def phase_ab(p, ST):
    plans = [PLAN, Plan(False)]
    built = [plan_ab(pl) for pl in plans]
    cut = built[0][3]['U2'][0]
    txt = [[(m.text, [(x.text, tuple(x.reads)) for x in g]) for m, g in zip(b[1][:cut], b[2][:cut])] for b in built]
    assert txt[0] == txt[1]
    head, mf, gaps, reg = built[0]
    for x in head:
        p.add(x)
    ST.stamp(p, 'first reads')
    for nm in ('GU', 'G2'):
        p.mark('r' + nm)
        weave(p, mf[reg[nm][0]:reg[nm][1]], gaps[reg[nm][0]:reg[nm][1]])
        if nm == 'GU':
            ST.stamp(p, nm)
    p('s_bitcmp1_b32 s2, 0')
    p('s_cbranch_scc1 L_light')
    n0 = ST.n
    for k, (pl, (head, mf, gaps, reg)) in enumerate(zip(plans, built)):
        p.mark('v%d' % k)
        if k:
            p('L_light:')
            ST.n = n0
        ST.stamp(p, 'G2')
        for nm, _, _ in pl.regions[2:]:
            p.mark(f'r{nm}{k}')
            a, b = reg[nm]
            weave(p, mf[a:b], gaps[a:b])
            if nm == 'Q2':
                for x in gaps[-1]:
                    p.add(x)
            ST.stamp(p, nm)
            if k and nm == 'U2':
                ST.stamp(p, 'X')
        if k == 0:
            p('s_branch L_ab_done')
            names = list(ST.names)
    ST.names = names
    p.mark('ps7')
    p('L_ab_done:')


def attention(p, ST, force_slow):
    p(f's_mov_b32 s{sTILE}, {4 * 16384}')
    if OPT['fused']:
        for l in F.flag_setup():
            p(l)
        p(f's_and_b32 s{sT0}, s2, 1')
        p(f's_lshr_b32 s{sT1}, s2, 3')
        p(f's_lshl_b32 s{sT0}, s{sT0}, 5')
        p(f's_add_u32 s{sT0}, s{sT0}, s{sT1}')
        p(f's_lshl_b32 s{sT0}, s{sT0}, 7')
        p(f's_bfe_u32 s{sT1}, s2, 0x20001')
        p(f's_lshl2_add_u32 s{sT0}, s{sT1}, s{sT0}')
        p(f'v_lshl_add_u32 v{vFZ}, v{vLANE}, 6, s{sT0}')
        p(f's_lshl_b32 s{sT0}, s{sRB}, 7')
        p(f's_lshl2_add_u32 s{sT0}, s{sH}, s{sT0}')
        p(f's_add_u32 s{sT0}, s{sT0}, {F.FLAG_O}')
        p(f'v_writelane_b32 v{vFZ}, s{sT0}, 2')
        p(f'v_mov_b32 v{vTMP}, 0')
        p('s_mov_b64 exec, 7')
        p(f'buffer_store_dword v{vTMP}, v{vFZ}, {sr(F.S_FLAG, 4)}, 0 offen sc1')
        p('s_mov_b64 exec, -1')
    p('s_nop 1')
    mf = qk_block(0, True) + qk_block(1, True) + qk_block(2) + qk_block(3)
    gaps = [[] for _ in range(64)]
    for n, x in enumerate(k_reads(0, 2, 0)):
        gaps[16 + n].append(x)
    for n, x in enumerate(k_reads(0, 3, 1)):
        gaps[32 + n].append(x)
    gaps[47] += [W(tags=[('K', 1), ('V', 0)], lgkm0=True), I('s_barrier')]
    kr = k_reads(1, 0, 0)
    for n, x in enumerate(kr):
        gaps[48 + n].append(x)
    for n, x in enumerate(v_reads(0, 0, aV)):
        gaps[52 + n].append(x)
    gaps[63].append(W(regs=wr(kr)))
    st = []
    for qb in range(4):
        s, m = vS + qb * 4, vNEGM + qb * 4
        nb = 4 * qb + 3 + 8
        st.append(Item(f'v_max3_f32 v{m}, v{s}, v{s + 1}, v{s + 2}', nb=nb))
        st.append(Item(f'v_max_f32 v{m}, v{m}, v{s + 3}', nb=nb))
    for k in range(6):
        for qb in range(4):
            st.append(Item(xlane('v_max_f32', vNEGM + qb * 4, vTMP + qb)[k]))
    for qb in range(4):
        st.append(Item(f'v_sub_f32 v{vNEGM + qb * 4}, 0, v{vNEGM + qb * 4}'))
    for r in range(1, 4):
        for qb in range(4):
            st.append(Item(f'v_mov_b32 v{vNEGM + qb * 4 + r}, v{vNEGM + qb * 4}'))
    st += sm_stream(0, 0, sub=True, init=True)
    fill(gaps, st, start=8, end=32)
    fill(gaps, sm_stream(1, 0, sub=True), start=32, end=47)
    fill(gaps, sm_stream(2, 0), start=48, end=64)
    weave(p, mf, gaps)
    ST.stamp(p, 'att prologue')

    sk = [period_skeleton(T) for T in range(4)]
    for T in range(4 if OPT['job'] else 0):
        job_items(T, sk[T][1])
        for g in sk[T][1]:
            for x in g:
                if x.kind in ('valu', 'ds', 'vmem') and (f'v{vJ}' in x.reads + x.writes or f'v{vJ + 2}' in x.writes or f'v{vFA}' in x.reads):
                    x.meta['job'] = True
    G = [g for T in range(4) for g in sk[T][1]]
    place_softmax(G)
    mf0, g0 = period_skeleton(0, first=True)
    for gi in range(PER):
        g0[gi] = [clone(x) for x in sk[0][1][gi] if x.meta.get('own') != (3, 3) and not x.meta.get('job')]
    fill(g0, [Item(x.ins, nb=4) if n == 0 else x for n, x in enumerate(sm_stream(3, 0))], start=0, end=16)
    if OPT['job']:
        force(g0, fmt_dma(0), [BLK[3] + 24 + 2 * n for n in range(4)])
        fill(g0, [Item(x) for x in job_setup()], start=40, end=60, look=2)
        p.mark('t0')
        weave(p, mf0, g0)
        p(f's_mov_b32 s{sCNT}, 7')
        p('s_branch L_att_p1')
    else:
        mf1, _ = period_skeleton(1)
        g1 = [[clone(x) for x in g] for g in sk[1][1]]
        fmt_inline(g0 + g1)
        p.mark('t0')
        weave(p, mf0 + mf1, g0 + g1)
        ST.stamp(p, 'T0 T1')
        p(f's_mov_b32 s{sCNT}, 7')
        p('s_branch L_att_p2')
    mf29, g29 = period_skeleton(1, nodma=True)
    mf30, g30 = period_skeleton(2, final=True)
    for gi in range(PER):
        g29[gi] += [clone(x) for x in sk[1][1][gi] if 'own' in x.meta]
        g30[gi] += [clone(x) for x in sk[2][1][gi] if 'own' in x.meta]
    fused = OPT['fused']
    if fused:
        a, b = F.early_setup()
        lane = [f'v_and_b32 v{F.vFL + 2}, 7, v{vLANE}', f'v_lshlrev_b32 v{F.vFL + 3}, 5, v{F.vFL + 2}', f'v_lshlrev_b32 v{F.vFL + 2}, 2, v{F.vFL + 2}']
        fill(g29, [Item(x) for x in DBG_SRD + lane], start=0, end=9, look=3, lat=1)
        g29[9].append(F.POLLS['a']())
        if F.OPT['sent'] and not OPT['job']:
            fill(g29, [Item(x) for x in F.slab_offset(sT0, sT1) + job_setup()[:4] + [f'v_mov_b32 v{vJ + r}, -1' for r in range(4)]],
                 start=10, end=24, look=3, lat=1)
            force(g29, [Item(f'buffer_store_dwordx4 {vr(vJ, 4)}, v{vL16}, {sr(S_J, 4)}, s{sT0} offen offset:{1024 * (n & 3)} sc1',
                             pre=[f's_add_u32 s{sT0}, s{sT0}, 4096'] if n == 4 else []) for n in range(7)],
                  [24, 43, 57, 75, 89, 109, 123])
        fill(g29, [Item(x) for x in a], start=44, end=90, look=4, lat=1)
        g29[BLK[3] + 11] += [I(x) for x in b]
        g29[BLK[2] + 11] += F.check('a')
        ld = F.early_loads(' sc1')
        ld = ld[9:17] + ld[26:] + F.act_loads(1, 1, ' sc1') + ld[:9] + ld[17:26]
        force(g30, ld[:25], [1 + 5 * n + (n & 1) for n in range(25)])
    if OPT['xp']:
        for T in range(4):
            for g in sk[T][1]:
                g[:] = [x for x in g if not ((OPT['xp'] & 1 and x.kind == 'barrier') or (OPT['xp'] & 2 and x.kind == 'vmem')
                                             or (OPT['xp'] & 4 and x.kind == 'ds') or (OPT['xp'] & 8 and x.kind in ('valu', 'trans')))]
    p.mark('p0')
    p('.p2align 6')
    p('L_att_p0:')
    put_head(sk[0][1], I(f's_cmp_ge_u32 s{sCNT}, 2' if OPT['job'] else f's_cmp_eq_u32 s{sCNT}, 6'), BLK[3] + 26, BLK[3] + 26)
    sk[0][1][BLK[3] + 26] += [I('s_cbranch_scc1 L_job0'), I('L_job_b:')]
    put_head(sk[0][1], I(f's_sub_u32 s{sCNT}, s{sCNT}, 1'), 127, 128)
    put_head(sk[0][1], I(f's_cmp_eq_u32 s{sCNT}, 0'), 129, 130)
    weave(p, *sk[0])
    p('s_cbranch_scc1 L_att_last')
    p.mark('p1')
    p('L_att_p1:')
    weave(p, *sk[1])
    p.mark('p2')
    p('L_att_p2:')
    weave(p, *sk[2])
    p.mark('p3')
    weave(p, *sk[3])
    p('s_branch L_att_p0')
    p.mark('last')
    p('L_att_last:')
    ST.stamp(p, 'att loop')
    weave(p, mf29 + mf30, g29 + g30)
    p.mark('t31')
    ST.stamp(p, 'T30')
    rest = [Item(clone(x)) for g in sk[3][1] for x in g if x.meta.get('own') == (2, 3)]
    order = [(db, 0) for db in range(8)] + [(db, 1) for db in range(8)]
    fr = {(0, 0): aV, (0, 1): aV + 4}
    for n, key in enumerate(k for k in order if k[0]):
        fr[key] = aK + (n % 8) * 4
    mf = []
    for db, kk in order:
        if db == 0:
            mf += [ones_mfma(1, kk, qb) for qb in MS]
        for qb in range(4):
            d = ar(aO + (db * 4 + qb) * 4, 4)
            mf.append(mfma(d, ar(fr[(db, kk)], 4), vr(p_reg(1, kk, qb), 4), d))
    nm = len(mf)
    h = nm // 2
    gaps = [[] for _ in range(nm + 1)]
    rd = [x for key in order if key[0] and key not in ((1, 0), (2, 0)) for x in v_reads(3, key[0], fr[key], (key[1],))]
    for n, x in enumerate(rd):
        gaps[2 * n].append(x)
    if fused:
        put_vmem(gaps, ld[25:], [1 + 4 * n for n in range(9)])
    st = list(rest)
    for k in range(6):
        for qb in VS:
            st.append(Item(xlane('v_add_f32', vL + qb, vTMP + qb)[k]))
    fill(gaps, st, start=0, end=h - 2)
    st = [Item(f'v_accvgpr_read_b32 v{vL + qb}, a{aLS + 4 * (qb >> 1)}', nb=h + NMS + 5) for qb in MS]
    st = [Item(f'v_rcp_f32 v{vRL + qb}, v{vL + qb}') for qb in VS] + st + [Item(f'v_rcp_f32 v{vRL + qb}, v{vL + qb}') for qb in MS]
    fill(gaps, st, start=h, end=h + 13)
    thr = '0' if force_slow else f's{sBIG}'
    for qb in range(4):
        gaps[h + 13 + qb] += [I(f'v_cmp_nge_f32 vcc, {thr}, v{vL + qb}'), I('s_cbranch_vccnz L_slow')]
    if fused:
        tmpsets = [F.vACS + 12 * k for k in range(4)]
        fill(gaps, [Item(x) for x in F.late_setup()], start=h - 8, end=nm - 8, look=4, lat=1)
        force(gaps, [Item(x) for x in F.fin_head()], [nm - 8, nm - 8] + list(range(nm - 7, nm - 1)))
    else:
        tmpsets = [vS, vS + 12, vP, vP + 12]
        st = []
        for j in range(4):
            st += o_epi_items(j, tmpsets, nb=h + NMS + 8 * j + 7 + 6)
        fill(gaps, st, start=h + 17, end=nm + 1, look=30)
    weave(p, mf, gaps[:nm])
    if not fused:
        p('s_nop 4')
        for x in gaps[nm]:
            p.add(x)
    return tmpsets


def slow_path(p, tmpsets):
    p.mark('slow')
    p('L_slow:')
    p('s_waitcnt vmcnt(0) lgkmcnt(0)')
    p('s_nop 7')
    vM, vKG, vVG, vAL = vNEGM, vTMP + 2, vTMP + 3, vNEGM + 4
    for i in range(128):
        p(f'v_accvgpr_write_b32 a{aO + i}, 0')
    for qb in range(4):
        p(f'v_mov_b32 v{vM + qb}, 0xff800000')
        p(f'v_mov_b32 v{vL + qb}, 0')
    p(f'v_and_b32 v{vTMP}, 15, v{vLANE}')
    p(f'v_lshrrev_b32 v{vTMP + 1}, 4, v{vLANE}')
    p(f'v_lshlrev_b32 v{vKG}, 8, v{vTMP}')
    p(f'v_lshl_add_u32 v{vKG}, v{vTMP + 1}, 4, v{vKG}')
    p(f'v_subrev_u32 v{vVG}, s{sLK}, v{vVD}')
    p(f'v_subrev_u32 v{vVG + 1}, s{sLK}, v{vVD + 1}')
    p(f's_lshl_b32 s{sT0}, s{sW}, 13')
    p(f's_add_u32 s{sT0}, s{sT0}, 131072')
    p(f's_sub_u32 s{sT1}, s{sT0}, 65536')
    for db in range(8):
        p(f'v_add_u32 v{vVA + db}, s{sT1}, v{vVA + db}')
    p(f's_mov_b32 s{sTILE}, 0')
    p.mark('slow_loop')
    p('L_slow_loop:')
    for kb in range(2):
        p(f's_add_u32 s{sOFF}, s{sTILE}, {kb * 4096}')
        for ks in range(4):
            p(f'buffer_load_dwordx4 {ar(aK + kb * 16 + ks * 4, 4)}, v{vKG}, {sr(S_K, 4)}, s{sOFF} offen offset:{64 * ks}')
    for hf in range(2):
        p(f's_add_u32 m0, s{sT0}, {hf * 4096}')
        p(f's_add_u32 s{sOFF}, s{sTILE}, {hf * 4096 + 16384}')
        for pc in range(4):
            p(f'buffer_load_dwordx4 v{vVG + (pc & 1)}, {sr(S_V, 4)}, s{sOFF} offen offset:{1024 * pc} lds')
    p('s_waitcnt vmcnt(0)')
    for db in range(8):
        for t in range(2):
            p(f'ds_read_b64_tr_b16 {vr(vP + 32 + db * 4 + 2 * t, 2)}, v{vVA + db} offset:{t * 4096}')
    for x in qk_block(0, True) + qk_block(1, True):
        p.add(x)
    p('s_nop 7')
    for qb in range(4):
        s0, s1, t, t2 = vS + qb * 4, vS + 16 + qb * 4, vTMP, vTMP + 1
        p(f'v_max3_f32 v{t}, v{s0}, v{s0 + 1}, v{s0 + 2}')
        p(f'v_max3_f32 v{t}, v{t}, v{s0 + 3}, v{s1}')
        p(f'v_max3_f32 v{t}, v{t}, v{s1 + 1}, v{s1 + 2}')
        p(f'v_max3_f32 v{t}, v{t}, v{s1 + 3}, v{vM + qb}')
        for x in xlane('v_max_f32', t, t2):
            if 'permlane' in x:
                p('s_nop 1')
            p(x)
        p(f'v_sub_f32 v{vAL + qb}, v{vM + qb}, v{t}')
        p(f'v_exp_f32 v{vAL + qb}, v{vAL + qb}')
        p(f'v_mov_b32 v{vM + qb}, v{t}')
        p(f'v_mul_f32 v{vL + qb}, v{vL + qb}, v{vAL + qb}')
        for kb in range(2):
            for r in range(4):
                s = vS + kb * 16 + qb * 4 + r
                p(f'v_sub_f32 v{s}, v{s}, v{t}')
                p(f'v_exp_f32 v{s}, v{s}')
                p('s_nop 0')
                p(f'v_add_f32 v{vL + qb}, v{vL + qb}, v{s}')
            for dd in range(2):
                s = vS + kb * 16 + qb * 4 + 2 * dd
                p(f'v_cvt_pk_bf16_f32 v{p_reg(0, 0, qb) + kb * 2 + dd}, v{s}, v{s + 1}')
        for db in range(8):
            for r in range(4):
                a = aO + (db * 4 + qb) * 4 + r
                p(f'v_accvgpr_read_b32 v{t2}, a{a}')
                p(f'v_mul_f32 v{t2}, v{t2}, v{vAL + qb}')
                p(f'v_accvgpr_write_b32 a{a}, v{t2}')
    p('s_nop 1')
    for db in range(8):
        for qb in range(4):
            d = ar(aO + (db * 4 + qb) * 4, 4)
            p.add(mfma(d, vr(vP + 32 + db * 4, 4), vr(p_reg(0, 0, qb), 4), d))
    p('s_nop 7')
    p(f's_add_u32 s{sTILE}, s{sTILE}, 8192')
    p(f's_cmp_lt_u32 s{sTILE}, {KV_HEAD}')
    p('s_cbranch_scc1 L_slow_loop')
    p.mark('slow_end')
    for qb in range(4):
        for x in xlane('v_add_f32', vL + qb, vTMP):
            if 'permlane' in x:
                p('s_nop 1')
            p(x)
        p(f'v_rcp_f32 v{vRL + qb}, v{vL + qb}')
    p('s_nop 0')
    if OPT['fused']:
        for l in F.late_setup():
            p(l)
        p('s_waitcnt vmcnt(0)')
        for x in F.fin_head():
            p.add(x)
        p('s_waitcnt lgkmcnt(0)')
        p('s_branch L_fin_join')
    else:
        for j in range(4):
            emit_items(p, o_epi_items(j, tmpsets))


def gen_main(name='main_kernel', force_slow=False, stamps=False):
    p = Prog()
    ST = Stamps(stamps, 252, 40)
    p.mark('start')
    setup(p, ST)
    phase_ab(p, ST)
    tmpsets = attention(p, ST, force_slow)
    ST.stamp(p, 'last issued')
    p.mark('att_end')
    if OPT['fused']:
        p('L_fin_join:')
        outline = F.fin_body(p, ST, True, [x for j in range(4) for x in o_epi_items(j, tmpsets)])
    if stamps:
        p('s_waitcnt vmcnt(0)')
    ST.stamp(p, 'stores done')
    ST.dump(p, 0, vTMP)
    p.mark('end')
    p('L_main_end:')
    p('s_endpgm')
    if OPT['fused']:
        outline(p, [f's_lshl_b32 s{F.fT1}, s{sRB}, 7', f's_lshl2_add_u32 s{F.fT1}, s{sH}, s{F.fT1}', f's_add_u32 s{F.fT1}, s{F.fT1}, {F.FLAG_O}'])
        F.spin(p, 'a')
    p.mark('jobs')
    side_jobs(p)
    p.mark('jobs_end')
    slow_path(p, tmpsets)
    p('s_endpgm')
    p.mark('fin')
    S = p.seg
    rest = S('ps7', 'p0') + S('p1' if OPT['job'] else 'p2', 'last') + S('p0', 'last') + S('p0', 'p1') + S('last', 'end')
    settle([S('start', 'v1') + rest, S('start', 'v0') + S('v1', 'ps7') + rest, S('slow', 'slow_end') + S('slow_loop', 'fin'), S('jobs', 'jobs_end')], name)
    if not QUIET[0]:
        nms = ['rGU', 'rG2', 'rU20', 'rX0', 'rQ10', 'rQ20', 'rU21', 'rQ11', 'rQ21', 'ps7']
        for a, b in zip(nms, nms[1:]):
            estimate(S(a, b), a)
        estimate(S('ps7', 't0'), 'att prologue')
        estimate(S('t0', 'p0'), 'T0')
        for a, b in (('p0', 'p1'), ('p1', 'p2'), ('p2', 'p3'), ('p3', 'last'), ('last', 't31'), ('t31', 'att_end')) + ((('fin0', 'fin1'), ('fin1', 'fin2')) if OPT['fused'] else ()):
            estimate(S(a, b), a)
    return header(name) + render(p.ins), descriptor(name, 512, 102, 256), ST.names
```
